```python
import torch

def _softmax(x, axis=-1):
    return torch.softmax(x, dim=axis)

def _gelu(x):
    return torch.nn.functional.gelu(x, approximate='tanh')

def _silu(x):
    return torch.nn.functional.silu(x)

def _sigmoid(x):
    return torch.sigmoid(x)

def _layernorm(x, axis=-1, eps=1e-05):
    m = x.mean(dim=axis, keepdim=True)
    v = x.var(dim=axis, keepdim=True, unbiased=False)
    return (x - m) / torch.sqrt(v + eps)

def _scatter_add(tgt, idx, src, axis=0):
    return tgt.clone().index_add_(axis, idx, src)

def _segment_sum(src, seg, n):
    out = torch.zeros((n,) + src.shape[1:], dtype=src.dtype)
    return out.index_add_(0, seg, src)

def _pad(x, pw):
    flat = tuple((v for pair in reversed(pw) for v in pair))
    return torch.nn.functional.pad(x, flat)
kernel_name = 'concat_heads__memory_aug_recurrent_mem_tr__sliding_block__prompt'

def setup_inputs():

    _w = lambda a: (lambda t: t.to(torch.bfloat16) if t.is_floating_point() else t)(torch.as_tensor(a))

    def _A_setup():
        B, S, Dm = (1, 2048, 1024)
        H, Dh = (32, 128)
        M, seg = (8, 32)
        seg = min(seg, S)
        S = S // seg * seg
        return {'x': _w((lambda *s: torch.randn(*s, dtype=torch.bfloat16) * 0.05)(B, S, Dm)), 'mem0': _w((lambda *s: torch.randn(*s, dtype=torch.bfloat16) * 1.6)(B, M, Dm)), 'Wq': _w((lambda *s: torch.randn(*s, dtype=torch.bfloat16) * 0.8)(Dm, H, Dh) * Dm ** (-0.5)), 'Wk': _w((lambda *s: torch.randn(*s, dtype=torch.bfloat16) * 0.8)(Dm, H, Dh) * Dm ** (-0.5)), 'Wv': _w((lambda *s: torch.randn(*s, dtype=torch.bfloat16) * 1.6)(Dm, H, Dh) * Dm ** (-0.5)), 'Wo': _w((lambda *s: torch.randn(*s, dtype=torch.bfloat16) * 1.6)(H, Dh, Dm) * (H * Dh) ** (-0.5)), 'seg_len': seg}
    _A_in = _A_setup()

    def _B_setup():
        B, S, D = (1, 2048, 1024)
        return {'x': _w((lambda *s: torch.randn(*s, dtype=torch.bfloat16) * 0.2)(B, S, D)), 'wqkv': _w((lambda *s: torch.randn(*s, dtype=torch.bfloat16) * 0.2)(D, 3 * D)), 'wo': _w((lambda *s: torch.randn(*s, dtype=torch.bfloat16) * 0.05)(D, D))}
    _B_in = _B_setup()
    return {'A_x': _A_in['x'], 'A_mem0': _A_in['mem0'], 'A_Wq': _A_in['Wq'], 'A_Wk': _A_in['Wk'], 'A_Wv': _A_in['Wv'], 'A_Wo': _A_in['Wo'], 'A_seg_len': _A_in['seg_len'], 'B_x': _B_in['x'], 'B_wqkv': _B_in['wqkv'], 'B_wo': _B_in['wo']}

def reference(A_x, A_mem0, A_Wq, A_Wk, A_Wv, A_Wo, A_seg_len, B_x, B_wqkv, B_wo):

    def _A_ref(x, mem0, Wq, Wk, Wv, Wo, seg_len):
        B, S, Dm = x.shape
        H, Dh = (Wq.shape[1], Wq.shape[2])
        M = mem0.shape[1]
        scale = Dh ** (-0.5)
        n_seg = S // seg_len
        L = M + seg_len
        idx = torch.arange(L)
        mask = (idx[:, None] < M) | (idx[:, None] >= idx[None, :])
        mem = mem0
        outs = []
        for s in range(n_seg):
            xs = x[:, s * seg_len:(s + 1) * seg_len, :].clone()
            h = torch.concatenate([mem, xs], axis=1)
            q = torch.einsum('btd,dhe->bhte', h, Wq)
            k = torch.einsum('btd,dhe->bhte', h, Wk)
            v = torch.einsum('btd,dhe->bhte', h, Wv)
            scores = torch.einsum('bhqe,bhke->bhqk', q, k) * scale
            scores = torch.where(mask[None, None], scores, -1000000000.0)
            p = _softmax(scores, axis=-1)
            o = torch.einsum('bhqk,bhke->bhqe', p, v)
            o = torch.einsum('bhte,hed->btd', o, Wo)
            mem = o[:, :M, :].clone()
            outs.append(o[:, M:, :])
        return torch.concatenate(outs, axis=1)

    def _B_ref(x, wqkv, wo):
        B, S, D = x.shape
        H = 32
        Dh = D // H
        W = 256
        qkv = (lambda x, *d: x.permute(*d))((x @ wqkv).reshape(B, S, 3, H, Dh), 2, 0, 3, 1, 4)
        q, k, v = (qkv[0], qkv[1], qkv[2])
        scores = torch.einsum('bhqd,bhkd->bhqk', q, k) * Dh ** (-0.5)
        idx = torch.arange(S)
        mask = (idx[:, None] - idx[None, :] >= 0) & (idx[:, None] - idx[None, :] < W)
        scores = torch.where(mask[None, None], scores, -1000000000.0)
        p = _softmax(scores, axis=-1)
        o = torch.einsum('bhqk,bhkd->bhqd', p, v)
        return (lambda x, *d: x.permute(*d))(o, 0, 2, 1, 3).reshape(B, S, D) @ wo
    a = _A_ref(A_x, A_mem0, A_Wq, A_Wk, A_Wv, A_Wo, A_seg_len)
    b = _B_ref(B_x, B_wqkv, B_wo)
    return torch.concatenate([a, b], axis=-1)
```

```python
import re

REG_RE = re.compile(r'^(v|a|s)(?:(\d+)|\[(\d+):(\d+)\])$')

def parse_reg(tok):
    tok = tok.strip()
    neg = False
    if tok.startswith('-'): tok = tok[1:]
    if tok.startswith('abs(') or tok.startswith('|'):
        tok = tok.strip('|'); tok = tok.replace('abs(', '').rstrip(')')
    if tok == 'vcc': return [('s', 106), ('s', 107)]
    if tok == 'vcc_lo': return [('s', 106)]
    if tok == 'vcc_hi': return [('s', 107)]
    if tok == 'exec': return [('s', 126), ('s', 127)]
    if tok == 'm0': return [('s', 124)]
    m = REG_RE.match(tok)
    if not m: return []
    k = m.group(1)
    if m.group(2) is not None: return [(k, int(m.group(2)))]
    return [(k, i) for i in range(int(m.group(3)), int(m.group(4)) + 1)]

TRANS = ('v_exp_f32', 'v_log_f32', 'v_rcp_f32', 'v_rsq_f32', 'v_sqrt_f32', 'v_sin_f32', 'v_cos_f32', 'v_rcp_iflag_f32')

class Ins:
    def __init__(self, text):
        self.text = text
        t = text.split(';')[0].strip()
        self.label = None; self.op = None
        self.kind = 'other'; self.w = []; self.r = []; self.srcC = []; self.srcAB = []
        self.passes = 0; self.ws = 1; self.target = None
        self.dpp = False; self.store_data = []; self.wide_store = False
        if not t: self.kind = 'none'; self.ws = 0; return
        if t.endswith(':'): self.label = t[:-1]; self.kind = 'label'; self.ws = 0; return
        if t.startswith('.'): self.kind = 'none'; self.ws = 0; return
        parts = t.split(None, 1)
        op = parts[0]; self.op = op
        rest = parts[1] if len(parts) > 1 else ''
        ops = []; cur = ''; depth = 0
        for ch in rest:
            if ch in '[(': depth += 1
            if ch in '])': depth -= 1
            if ch == ',' and depth == 0: ops.append(cur.strip()); cur = ''
            else: cur += ch
        if cur.strip(): ops.append(cur.strip())
        mods = ''
        if ops:
            last = ops[-1].split(None, 1)
            if len(last) > 1: ops[-1] = last[0]; mods = last[1]
        self.mods = mods
        R = [parse_reg(o) for o in ops]
        if op == 's_nop':
            self.kind = 'nop'; self.ws = int(ops[0], 0) + 1; return
        if op.startswith('s_cbranch') or op == 's_branch':
            self.kind = 'branch'; self.target = ops[0]; return
        if op.startswith('v_mfma') or op.startswith('v_smfmac'):
            self.kind = 'mfma'
            if '32x32' in op: self.passes = 8
            elif '16x16' in op: self.passes = 4
            else: raise ValueError('unknown mfma ' + op)
            self.w = R[0]; self.srcAB = R[1] + R[2]
            if op.startswith('v_smfmac'):
                self.srcC = R[0]; self.srcAB += R[3]
            else: self.srcC = R[3]
            self.r = self.srcAB + self.srcC
            return
        if op.startswith('v_'):
            self.kind = 'valu'
            self.dpp = ('_dpp' in op) or ('row_' in mods) or ('quad_perm' in mods)
            if op.startswith('v_permlane') and 'swap' in op:
                self.w = R[0] + R[1]; self.r = R[0] + R[1]
            elif op.startswith('v_cmpx'):
                self.w = R[0] + parse_reg('exec'); self.r = sum(R[1:], [])
            elif op.startswith('v_add_co') or op.startswith('v_sub_co') or op.startswith('v_addc_co') or op.startswith('v_subb_co'):
                self.w = R[0] + R[1]; self.r = sum(R[2:], [])
            else:
                self.w = R[0]; self.r = sum(R[1:], [])
                if op.startswith('v_fmac') or op.startswith('v_pk_fmac') or op.startswith('v_dot2c') or self.dpp or op.startswith('v_writelane'):
                    self.r = self.r + R[0]
                if op.startswith('v_cndmask') and len(ops) == 3: self.r += parse_reg('vcc')
            return
        if op.startswith('ds_'):
            self.kind = 'ds'
            if op.startswith('ds_read') or op.startswith('ds_bpermute') or op.startswith('ds_permute') or op.startswith('ds_swizzle') or '_rtn' in op:
                self.w = R[0]; self.r = sum(R[1:], [])
            else: self.r = sum(R, [])
            return
        if op.startswith('buffer_') or op.startswith('global_'):
            self.kind = 'vmem'
            if op in ('buffer_wbl2', 'buffer_inv'): return
            lds = re.search(r'\blds\b', mods) is not None
            if op.startswith('buffer_load'):
                if lds: self.r = sum(R, []) + parse_reg('m0'); self.ldsdma = True
                else: self.w = R[0]; self.r = sum(R[1:], [])
            elif op.startswith('buffer_store'):
                self.r = sum(R, []); self.store_data = R[0]; self.wide_store = op.endswith('x4') or op.endswith('x3')
            elif op.startswith('buffer_atomic'):
                self.r = sum(R, [])
                if 'sc0' in mods: self.w = R[0]
            else: raise ValueError('unhandled vmem ' + op)
            return
        if op.startswith('s_'):
            self.kind = 'salu'
            if op.startswith('s_cmp') or op in ('s_waitcnt', 's_barrier', 's_endpgm', 's_sleep', 's_setprio', 's_bitcmp1_b32', 's_bitcmp0_b32'):
                self.r = sum(R, [])
            else:
                self.w = R[0] if R else []; self.r = sum(R[1:], [])
                if 'saveexec' in op: self.w = self.w + parse_reg('exec')
            return
        raise ValueError('unknown instruction ' + text)

def inter(a, b):
    return bool(set(a) & set(b))

def required(p, c):
    n = 0
    if p.kind == 'valu':
        vw = [x for x in p.w if x[0] in 'va']; sw = [x for x in p.w if x[0] == 's']
        if c.kind == 'mfma' and inter(vw, c.r): n = max(n, 2)
        if c.kind == 'mfma' and inter(sw, parse_reg('exec')): n = max(n, 4)
        if c.kind == 'valu':
            if c.op.startswith('v_permlane') and inter(vw, c.r): n = max(n, 2)
            if c.dpp and inter(vw, c.r): n = max(n, 2)
            if (c.op.startswith('v_readlane') or c.op.startswith('v_readfirstlane')) and inter(vw, c.r): n = max(n, 1)
            if p.op in TRANS and inter(vw, c.r): n = max(n, 1)
            if inter(sw, c.r):
                n = max(n, 4 if (c.op.startswith('v_readlane') or c.op.startswith('v_writelane')) else 2)
            if inter(sw, parse_reg('exec')):
                if c.dpp: n = max(n, 5)
                if c.op.startswith('v_read') or c.op.startswith('v_writelane') or c.op.startswith('v_permlane'): n = max(n, 4)
        if c.kind == 'vmem' and inter(sw, c.r): n = max(n, 5)
        if c.kind == 'salu' and inter(sw, c.r): n = max(n, 1)
        if p.op in TRANS and c.kind in ('vmem', 'ds') and inter(vw, c.r): n = max(n, 1)
    if p.kind == 'mfma':
        full = {4: 8, 8: 12}[p.passes]; ovl = {4: 6, 8: 10}[p.passes]; war = {4: 3, 8: 7}[p.passes]
        if c.kind == 'mfma':
            if inter(p.w, c.srcAB): n = max(n, full)
            if inter(p.w, c.srcC):
                if not (p.w == c.srcC and p.op == c.op): n = max(n, ovl)
            elif inter(p.w, c.w): n = max(n, full)
        elif c.kind in ('valu', 'vmem', 'ds'):
            if inter(p.w, c.r) or inter(p.w, c.w): n = max(n, full)
            if c.kind == 'valu' and inter(p.srcC, c.w): n = max(n, war)
    if p.kind == 'vmem' and p.wide_store:
        if inter(p.store_data, c.w): n = max(n, 2 if c.kind in ('valu', 'mfma') else 1)
    if p.kind == 'salu' and inter(p.w, parse_reg('m0')):
        if getattr(c, 'ldsdma', False): n = max(n, 1)
    if p.kind == 'salu' and inter(p.w, parse_reg('exec')) and c.kind == 'valu' and c.dpp:
        n = max(n, 1)
    return n

WINDOW = 14

class Asm:
    def __init__(self):
        self.lines = []
    def __call__(self, text):
        for t in text.split('\n'):
            self.lines.append(t.strip() if not t.strip().startswith(';') else t)
    def finish(self):
        out = []
        for t in self.lines:
            c = Ins(t)
            if c.kind not in ('none', 'label', 'nop'):
                need = 0; dist = 0
                for p in reversed(out):
                    if p.kind == 'branch' and p.op == 's_branch': break
                    if p.op == 's_endpgm': break
                    if dist >= WINDOW: break
                    if p.ws:
                        r = required(p, c)
                        if r > dist: need = max(need, r - dist)
                    dist += p.ws
                if need > 0:
                    out.append(Ins(f's_nop {need-1}'))
            out.append(c)
        labels = {c.label: i for i, c in enumerate(out) if c.kind == 'label'}
        for i, b in enumerate(out):
            if b.kind != 'branch': continue
            if b.target not in labels: raise ValueError('unknown label ' + b.target)
            prods = []; dist = 0
            for p in reversed(out[:i + 1]):
                if p is not b and p.kind == 'branch' and p.op == 's_branch': break
                if dist >= WINDOW: break
                if p.ws: prods.append((p, dist))
                dist += p.ws
            d2 = 0
            for c in out[labels[b.target]:]:
                if d2 >= WINDOW: break
                if c.kind not in ('none', 'label', 'nop'):
                    for p, dist in prods:
                        r = required(p, c)
                        if r > dist + d2:
                            raise ValueError(f'hazard across branch to {b.target}: "{p.text}" -> "{c.text}" needs {r}, has {dist+d2}')
                if c.kind == 'branch' and c.op == 's_branch': break
                if c.op == 's_endpgm': break
                d2 += c.ws
        return '\n'.join(c.text for c in out) + '\n'

class Regs:
    def __init__(self, kind, start, limit):
        self.kind = kind; self.next = start; self.limit = limit; self.names = {}
    def alloc(self, name, n=1, align=None):
        if align is None: align = 1 if n == 1 else (2 if self.kind != 's' or n == 2 else 4)
        if self.kind in 'va' and n >= 4: align = max(align, 4) if align else 4
        self.next = (self.next + align - 1) // align * align
        base = self.next; self.next += n
        if self.next > self.limit: raise ValueError(f'out of {self.kind} regs at {name}')
        self.names[name] = (base, n)
        return R(self.kind, base, n)

class R:
    def __init__(self, kind, base, n): self.kind = kind; self.base = base; self.n = n
    def __str__(self):
        return f'{self.kind}{self.base}' if self.n == 1 else f'{self.kind}[{self.base}:{self.base+self.n-1}]'
    def __getitem__(self, i):
        if isinstance(i, slice):
            a = i.start or 0; b = i.stop if i.stop is not None else self.n
            assert 0 <= a < b <= self.n
            return R(self.kind, self.base + a, b - a)
        assert 0 <= i < self.n
        return R(self.kind, self.base + i, 1)
    def __format__(self, spec): return str(self)
```

```python
from asmlib import Asm, Regs, R
from layout import *
import math

NSEG = 64
def kd(name, vgpr, accum, sgpr=102):
    return f'''.section .rodata,"a"
.p2align 6
.amdhsa_kernel {name}
  .amdhsa_next_free_vgpr {vgpr}
  .amdhsa_next_free_sgpr {sgpr}
  .amdhsa_accum_offset {accum}
  .amdhsa_group_segment_fixed_size 0
  .amdhsa_kernarg_size 104
  .amdhsa_user_sgpr_count 2
  .amdhsa_user_sgpr_kernarg_segment_ptr 1
  .amdhsa_system_sgpr_workgroup_id_x 1
.end_amdhsa_kernel
.text
'''

def srd(A, d, base, nbytes):
    A(f"s_mov_b32 s{d}, s{base}"); A(f"s_mov_b32 s{d+1}, s{base+1}")
    A(f"s_mov_b32 s{d+2}, {nbytes}"); A(f"s_mov_b32 s{d+3}, 0x20000")

P_AX, P_MEM0, P_WQ, P_WK, P_WV, P_WO, P_SEG, P_BX, P_WQKV, P_WOB, P_OUT, P_DBG, P_WS = [64 + 2 * i for i in range(13)]
WS = "s[4:7]"; DBG = "s[8:11]"; SW = "s[12:15]"; SX = "s[16:19]"

def load_kernargs(A):
    A("s_load_dwordx16 s[64:79], s[0:1], 0")
    A("s_load_dwordx8 s[80:87], s[0:1], 64")
    A("s_load_dwordx2 s[88:89], s[0:1], 96")

def gen_main(name, opt):
    A = Asm()
    PRE = opt.get('pre', (8, 1, 1, 1))
    STAMP = opt.get('stamp', False)
    A(f".globl {name}\n.p2align 8\n.type {name},@function\n{name}:")
    s_xcc, s_wave, s_role, s_mode, s_tick = "s3", "s20", "s21", "s22", "s23"
    s_t0, s_t1, s_t2, s_t3 = "s24", "s25", "s26", "s27"
    s_bud = "s28"
    A("s_cmp_ge_u32 s2, 256\ns_cbranch_scc1 L_end")
    load_kernargs(A)
    A(f"s_getreg_b32 {s_xcc}, hwreg(HW_REG_XCC_ID)\ns_and_b32 {s_xcc}, {s_xcc}, 7")
    V = Regs('v', 1, 256)
    vLane = V.alloc('lane'); vL16 = V.alloc('l16'); vG = V.alloc('g'); vJ = V.alloc('j'); vT0 = V.alloc('t0'); vT1 = V.alloc('t1'); vT2 = V.alloc('t2')
    vPoi = V.alloc('poi', 4)
    A(f"v_lshrrev_b32 {vT0}, 6, v0\nv_and_b32 {vLane}, 63, v0")
    A(f"v_readfirstlane_b32 {s_wave}, {vT0}")
    A(f"v_lshlrev_b32 {vL16}, 4, {vLane}\nv_lshrrev_b32 {vG}, 4, {vLane}\nv_and_b32 {vJ}, 15, {vLane}")
    for i in range(4): A(f"v_mov_b32 {vPoi[i]}, -1")
    A(f"s_mov_b32 {s_bud}, 400000")
    A("s_waitcnt lgkmcnt(0)")
    srd(A, 4, P_WS, WS_BYTES); srd(A, 8, P_DBG, 256)
    srd(A, 12, P_WQ, 8 * MB); srd(A, 16, P_AX, 4 * MB)
    A(f"s_lshl_b32 {s_t0}, s2, 13\nv_lshlrev_b32 {vT0}, 4, v0\nv_add_u32 {vT1}, 4096, {vT0}")
    A(f"buffer_store_dwordx4 {vPoi}, {vT0}, {WS}, {s_t0} offen sc1")
    A(f"buffer_store_dwordx4 {vPoi}, {vT1}, {WS}, {s_t0} offen sc1")
    A("s_waitcnt vmcnt(0)\ns_barrier")
    LDS_TICK = 163840 - 16
    vAt = V.alloc('at', 2)
    A(f"s_lshr_b32 {s_t0}, s2, 3\ns_lshl_b32 {s_t1}, 1, {s_t0}")
    A(f"v_mov_b32 {vAt[0]}, {s_t1}\nv_mov_b32 {vAt[1]}, 0x10000")
    A(f"s_lshl_b32 {s_t1}, {s_xcc}, 3\nv_mov_b32 {vT0}, {s_t1}\nv_mov_b32 {vT1}, {LDS_TICK}")
    A(f"s_lshl_b32 {s_role}, {s_xcc}, 5\ns_add_u32 {s_role}, {s_role}, {s_t0}\ns_mov_b32 {s_mode}, 0")
    A(f"s_cmp_lg_u32 {s_wave}, 3\ns_cbranch_scc1 L_reg_done")
    A("s_mov_b64 exec, 1")
    A(f"buffer_atomic_add_x2 {vAt}, {vT0}, {DBG}, 0 offen sc0 sc1")
    A("s_waitcnt vmcnt(0)")
    A(f"v_lshrrev_b32 {vAt[1]}, 16, {vAt[1]}\nds_write_b32 {vT1}, {vAt[1]}\ns_waitcnt lgkmcnt(0)")
    A("s_mov_b64 exec, -1")
    A("L_reg_done:")
    A("L_dispatch:")
    A(f"s_cmp_ge_u32 {s_role}, 128\ns_cbranch_scc1 L_grole")

    def confirm(tag):
        A(f"s_cmp_lg_u32 {s_mode}, 0\ns_cbranch_scc1 L_conf_ok_{tag}")
        A("s_waitcnt vmcnt(0) lgkmcnt(0)\ns_barrier")
        A(f"v_and_b32 {vT0}, 15, {vLane}\nv_lshlrev_b32 {vT0}, 2, {vT0}\nv_mov_b32 {vT1}, {LDS_TICK}")
        A(f"ds_read_b32 {vT2}, {vT1}")
        A(f"L_conf_poll_{tag}:")
        A(f"buffer_load_dword {vT1}, {vT0}, {DBG}, 0 offen sc1")
        A(f"s_sub_u32 {s_bud}, {s_bud}, 1\ns_cbranch_scc1 L_end")
        A("s_waitcnt vmcnt(0) lgkmcnt(0)")
        A(f"s_mov_b32 {s_t0}, 0\ns_mov_b32 {s_t1}, 0\ns_mov_b32 {s_t2}, -1")
        for x in range(8):
            A(f"v_readlane_b32 s30, {vT1}, {2*x}\nv_readlane_b32 s31, {vT1}, {2*x+1}")
            A(f"s_and_b32 {s_t2}, {s_t2}, s30")
            A(f"s_xor_b32 s30, s31, 0x200000\ns_or_b32 {s_t1}, {s_t1}, s30")
            A(f"s_lshr_b32 s31, s31, 16\ns_add_u32 {s_t0}, {s_t0}, s31")
        A(f"s_cmp_lt_u32 {s_t0}, 256\ns_cbranch_scc0 L_conf_all_{tag}")
        A(f"s_sleep 4\ns_branch L_conf_poll_{tag}")
        A(f"L_conf_all_{tag}:")
        A(f"v_readfirstlane_b32 {s_tick}, {vT2}")
        A(f"s_mov_b32 {s_mode}, 1")
        A(f"s_not_b32 {s_t2}, {s_t2}\ns_or_b32 {s_t2}, {s_t2}, {s_t1}\ns_cmp_eq_u32 {s_t2}, 0\ns_cbranch_scc1 L_conf_ok_{tag}")
        A(f"s_lshr_b32 {s_t1}, {s_t1}, 16")
        A(f"s_lshl_b32 {s_role}, {s_xcc}, 5\ns_add_u32 {s_role}, {s_role}, {s_tick}")
        A(f"s_cmp_eq_u32 {s_t1}, 0\ns_cbranch_scc1 L_dispatch")
        A(f"s_mov_b32 {s_role}, s2\ns_mov_b32 {s_mode}, 2\ns_branch L_dispatch")
        A(f"L_conf_ok_{tag}:")

    def dma_chunk(vOff, s_src, stride, nrows, lds_base_s, lds_off):
        for i in range(nrows // 16):
            A(f"s_add_u32 m0, {lds_base_s}, {lds_off + i * 1024}")
            A(f"buffer_load_dwordx4 {vOff}, {SW}, {s_src} offen lds")
            A(f"s_add_u32 {s_src}, {s_src}, {stride}")

    vbase = V.next
    s_x, s_c, s_cu, s_h, s_j = "s32", "s33", "s34", "s35", "s36"
    s_slot, s_kv, s_step, s_known, s_lds, s_src, s_kvm = "s37", "s38", "s39", "s40", "s41", "s42", "s43"
    s_c2 = "s44"
    A(f"s_lshr_b32 {s_x}, {s_role}, 5\ns_and_b32 {s_c}, {s_role}, 31\ns_lshr_b32 {s_h}, {s_role}, 2\ns_and_b32 {s_j}, {s_role}, 3")
    vW1 = V.alloc('w1'); vW2 = V.alloc('w2'); vTr = V.alloc('tr')
    A(f"v_lshrrev_b32 {vT0}, 2, {vLane}\nv_and_b32 {vT1}, 3, {vLane}\nv_lshlrev_b32 {vT1}, 4, {vT1}")
    A(f"v_lshl_add_u32 {vW1}, {vT0}, 13, {vT1}\nv_lshl_add_u32 {vW2}, {vT0}, 11, {vT1}")
    A(f"s_lshl_b32 {s_lds}, {s_wave}, 15")
    A(f"v_lshrrev_b32 {vT0}, 1, {vG}\nv_lshlrev_b32 {vT0}, 4, {vT0}\nv_and_b32 {vT1}, 1, {vG}\nv_lshl_add_u32 {vT0}, {vT1}, 2, {vT0}")
    A(f"v_bfe_u32 {vT1}, {vLane}, 2, 1\nv_add_u32 {vT0}, {vT0}, {vT1}\nv_bfe_u32 {vT1}, {vLane}, 3, 1\nv_lshl_add_u32 {vT0}, {vT1}, 3, {vT0}")
    A(f"v_lshlrev_b32 {vT0}, 6, {vT0}\nv_and_b32 {vT1}, 3, {vLane}\nv_lshl_add_u32 {vT0}, {vT1}, 3, {vT0}\nv_add_u32 {vTr}, {s_lds}, {vT0}")
    def r_issue(m):
        A(f"s_mov_b32 s12, s{[P_WQ,P_WK,P_WV,P_WO][m]}\ns_mov_b32 s13, s{[P_WQ,P_WK,P_WV,P_WO][m]+1}\ns_mov_b32 s14, {8*MB}")
        if m < 3:
            A(f"s_lshl_b32 {s_src}, {s_wave}, 21\ns_lshl_b32 {s_t0}, {s_role}, 6\ns_add_u32 {s_src}, {s_src}, {s_t0}")
            dma_chunk(vW1, s_src, 16 * 8192, 256, s_lds, (m & 1) * 16384)
        else:
            A(f"s_lshl_b32 {s_src}, {s_x}, 21\ns_lshl_b32 {s_t0}, {s_wave}, 19\ns_add_u32 {s_src}, {s_src}, {s_t0}\ns_lshl_b32 {s_t0}, {s_c}, 6\ns_add_u32 {s_src}, {s_src}, {s_t0}")
            dma_chunk(vW2, s_src, 16 * 2048, 256, s_lds, (m & 1) * 16384)
    def r_tr(m):
        for t in range(2):
            for kb in range(4):
                for p2 in range(4):
                    a0 = ((m * 2 + t) * 4 + kb) * 8 + 2 * p2
                    off = (m & 1) * 16384 + (64 * kb + 32 * (p2 >> 1) + 2 * (p2 & 1)) * 64 + 32 * t
                    A(f"ds_read_b64_tr_b16 a[{a0}:{a0+1}], {vTr} offset:{off}")
        A("s_waitcnt lgkmcnt(0)")
    r_issue(0); r_issue(1)
    A("s_waitcnt vmcnt(16)"); r_tr(0); r_issue(2)
    A("s_waitcnt vmcnt(16)"); r_tr(1); r_issue(3)
    A("s_waitcnt vmcnt(16)"); r_tr(2)
    A("s_waitcnt vmcnt(0)"); r_tr(3)
    confirm("r")
    A("s_barrier")
    def WQKV(T, kb): b = (T * 4 + kb) * 8; return f"a[{b}:{b+7}]"
    def WOr(t, kb): b = 192 + (t * 4 + kb) * 8; return f"a[{b}:{b+7}]"

    vPL = [V.alloc(f'pl{i}') for i in range(3)]; vPS = V.alloc('ps'); vMS = V.alloc('ms'); vGM = V.alloc('gm'); vGO = V.alloc('go')
    vS0 = V.alloc('s0'); vS2 = V.alloc('s2'); vSA = [V.alloc(f'sa{i}') for i in range(4)]; vSB = [V.alloc(f'sb{i}') for i in range(4)]
    vOS = V.alloc('os'); vKX = V.alloc('kx'); vVX = V.alloc('vx'); vFl = V.alloc('fl'); vKM = V.alloc('km'); vVM = V.alloc('vm')
    vPo = [V.alloc(f'po{i}') for i in range(5)]
    vQw = V.alloc('qw'); vKw = V.alloc('kw'); vQr = V.alloc('qr'); vVw = V.alloc('vw'); vVr = V.alloc('vr'); vPw = V.alloc('pw'); vPr = V.alloc('pr')
    vIdx = V.alloc('idx'); vChk = V.alloc('chk'); vOOB = V.alloc('oob')
    F = [V.alloc(f'f{i}', 4) for i in range(4)]
    ACC = [V.alloc(f'acc{i}', 4) for i in range(6)]
    T = [V.alloc(f'T{i}', 4) for i in range(8)]
    X = V.alloc('X', 4); KX = [V.alloc(f'KX{i}', 4) for i in range(2)]; VX = [V.alloc(f'VX{i}', 4) for i in range(2)]
    S = [V.alloc(f'S{i}', 4) for i in range(3)]
    VMo = [V.alloc(f'VMo{i}', 4) for i in range(2)]
    ONES = V.alloc('ones', 4); PB = V.alloc('PB', 4); PM = V.alloc('PM', 4)
    SB = [V.alloc(f'SB{i}') for i in range(4)]
    OWN = V.alloc('own', 4); OO = V.alloc('OO', 4)
    vM = V.alloc('m'); vM2 = V.alloc('m2')
    QK_B = 0; V_B = 9216; PW_B = 13312
    A(f"v_mov_b32 {vOOB}, {OOB}")
    A(f"s_lshl_b32 {s_t1}, {s_c}, 10")
    for i in range(3):
        A(f"s_xor_b32 {s_t0}, {s_x}, {i+1}\ns_lshl_b32 {s_t0}, {s_t0}, 15\ns_add_u32 {s_t0}, {s_t0}, {s_t1}\nv_add_u32 {vPL[i]}, {s_t0}, {vL16}")
    A(f"s_lshl_b32 {s_t0}, {s_role}, 10\ns_add_u32 {s_t1}, {s_t0}, {SLOT_SZ + PART_OFF}\nv_add_u32 {vPS}, {s_t1}, {vL16}")
    A(f"s_add_u32 {s_t1}, {s_t0}, {PD * SLOT_SZ + PART_OFF}\nv_add_u32 {vPo[0]}, {s_t1}, {vL16}")
    A(f"s_lshl_b32 {s_t0}, {s_role}, 9\ns_add_u32 {s_t1}, {s_t0}, {MEM_OFF}\nv_lshlrev_b32 {vT0}, 3, {vLane}\nv_add_u32 {vMS}, {s_t1}, {vT0}")
    A(f"v_and_b32 {vT0}, 31, {vLane}\nv_lshlrev_b32 {vT0}, 4, {vT0}\nv_lshrrev_b32 {vT1}, 5, {vLane}\nv_lshl_add_u32 {vT0}, {vT1}, 16, {vT0}")
    A(f"s_add_u32 {s_t1}, {s_t0}, {PD * SLOT_SZ + MEM_OFF}\nv_add_u32 {vPo[1]}, {s_t1}, {vT0}")
    A(f"v_lshl_add_u32 {vT0}, {vG}, 3, {vJ}\nv_lshlrev_b32 {vT0}, 4, {vT0}\ns_add_u32 {s_t1}, {s_t0}, {O_OFF}\nv_add_u32 {vT0}, {s_t1}, {vT0}")
    A(f"v_cmp_gt_u32 vcc, 8, {vJ}\nv_cndmask_b32 {vOS}, {vOOB}, {vT0}, vcc")
    A(f"s_lshl_b32 {s_t0}, {s_x}, 14\ns_lshl_b32 {s_t1}, {s_wave}, 12\ns_add_u32 {s_t0}, {s_t0}, {s_t1}\ns_add_u32 {s_t0}, {s_t0}, {MEM_OFF}")
    A(f"v_add_u32 {vGM}, {s_t0}, {vL16}\nv_add_u32 {vGO}, {O_OFF - MEM_OFF}, {vGM}")
    A(f"s_mul_i32 {s_t0}, {s_role}, 1280\ns_add_u32 {s_t0}, {s_t0}, {SC_OFF}")
    A(f"v_add_u32 {vT0}, {s_t0}, {vL16}\nv_cndmask_b32 {vS0}, {vOOB}, {vT0}, vcc")
    A(f"v_add_u32 {vPo[2]}, {PD * SLOT_SZ}, {vT0}")
    A(f"v_cmp_gt_u32 vcc, 16, {vLane}\nv_add_u32 {vT1}, {PD * SLOT_SZ + 1024}, {vT0}\nv_cndmask_b32 {vPo[3]}, {vOOB}, {vT1}, vcc")
    A(f"v_lshl_add_u32 {vT0}, {vG}, 3, {vJ}\nv_lshlrev_b32 {vT0}, 4, {vT0}\ns_add_u32 {s_t1}, {s_t0}, {1024 - 256}\nv_add_u32 {vT0}, {s_t1}, {vT0}")
    A(f"v_and_b32 {vT1}, 0x28, {vLane}\nv_cmp_eq_u32 vcc, 0x20, {vT1}\nv_cndmask_b32 {vS2}, {vOOB}, {vT0}, vcc")
    A(f"v_lshrrev_b32 {vT0}, 3, {vLane}")
    A(f"v_lshrrev_b32 {vT1}, 2, {vT0}\nv_lshlrev_b32 {vT1}, 7, {vT1}\nv_and_b32 {vT0}, 3, {vT0}\nv_lshl_add_u32 {vT1}, {vT0}, 2, {vT1}")
    A(f"v_and_b32 {vT0}, 7, {vLane}\nv_lshl_add_u32 {vT1}, {vT0}, 4, {vT1}\nv_add_u32 {vT1}, 1024, {vT1}")
    for i in range(4):
        A(f"s_xor_b32 {s_t0}, {s_role}, {i}\ns_mul_i32 {s_t0}, {s_t0}, 1280\ns_add_u32 {s_t0}, {s_t0}, {SC_OFF}")
        A(f"v_add_u32 {vSA[i]}, {s_t0}, {vL16}\nv_add_u32 {vSB[i]}, {s_t0}, {vT1}")
    A(f"s_lshl_b32 {s_t0}, {s_role}, 11\ns_add_u32 {s_t1}, {s_t0}, {KXF}\nv_add_u32 {vKX}, {s_t1}, {vL16}\ns_add_u32 {s_t1}, {s_t0}, {VXF}\nv_add_u32 {vVX}, {s_t1}, {vL16}")
    A(f"s_lshl_b32 {s_t0}, {s_role}, 6\nv_and_b32 {vT0}, 1, {vLane}\nv_lshlrev_b32 {vT0}, 13, {vT0}\nv_add_u32 {vFl}, {s_t0}, {vT0}")
    A(f"s_lshl_b32 {s_t0}, {s_role}, 10\ns_add_u32 {s_t0}, {s_t0}, {KVM}")
    A(f"v_lshl_add_u32 {vT0}, {vG}, 3, {vJ}\nv_lshlrev_b32 {vT0}, 4, {vT0}\ns_sub_u32 {s_t1}, {s_t0}, 128\nv_add_u32 {vT0}, {s_t1}, {vT0}")
    A(f"v_cmp_lt_u32 vcc, 7, {vJ}\nv_cndmask_b32 {vKM}, {vOOB}, {vT0}, vcc")
    A(f"s_add_u32 {s_t1}, {s_t0}, 512\nv_lshlrev_b32 {vT0}, 2, {vLane}\nv_add_u32 {vVM}, {s_t1}, {vT0}")
    A(f"v_mov_b32 {vT0}, 0x4444\nv_mov_b32 {vT1}, 0xeeee\nv_cndmask_b32 {vIdx}, {vT0}, {vT1}, vcc")
    A(f"v_and_b32 {vT0}, 1, {vG}\nv_mul_u32_u24 {vT0}, {4*144}, {vT0}\nv_lshrrev_b32 {vT1}, 1, {vG}\nv_lshl_add_u32 {vT2}, {vT1}, 4, {vJ}")
    A(f"v_lshl_add_u32 {vT0}, {vT2}, 2, {vT0}")
    A(f"s_mul_i32 {s_t0}, {s_wave}, 2304\nv_add_u32 {vQw}, {s_t0}, {vT0}\nv_add_u32 {vKw}, {8*144}, {vQw}")
    A(f"s_mul_i32 {s_t0}, {s_wave}, 1152\ns_add_u32 {s_t0}, {s_t0}, {PW_B}\nv_add_u32 {vPw}, {s_t0}, {vT0}")
    A(f"v_and_b32 {vT0}, 1, {vG}\nv_lshlrev_b32 {vT0}, 4, {vT0}\nv_lshl_add_u32 {vT0}, {vT2}, 5, {vT0}")
    A(f"s_lshl_b32 {s_t0}, {s_wave}, 10\ns_add_u32 {s_t0}, {s_t0}, {V_B}\nv_add_u32 {vVw}, {s_t0}, {vT0}")
    A(f"v_mul_u32_u24 {vT0}, 144, {vJ}\nv_lshl_add_u32 {vQr}, {vG}, 5, {vT0}")
    A(f"v_lshrrev_b32 {vT0}, 2, {vJ}\nv_lshlrev_b32 {vT0}, 3, {vT0}\nv_and_b32 {vT1}, 3, {vJ}\nv_add_u32 {vT0}, {vT0}, {vT1}\nv_lshlrev_b32 {vT0}, 5, {vT0}")
    A(f"v_lshl_add_u32 {vT0}, {vG}, 3, {vT0}\nv_add_u32 {vVr}, {V_B}, {vT0}")
    A(f"v_lshrrev_b32 {vT0}, 1, {vJ}\nv_mul_u32_u24 {vT0}, 144, {vT0}\nv_lshl_add_u32 {vT0}, {vG}, 5, {vT0}\nv_and_b32 {vT1}, 1, {vJ}\nv_lshl_add_u32 {vT0}, {vT1}, 4, {vT0}\nv_add_u32 {vPr}, {PW_B}, {vT0}")
    for i in range(4): A(f"v_mov_b32 {ONES[i]}, 0x3f803f80")
    for i in (1, 2, 3): A(f"v_mov_b32 {PM[i]}, 0\nv_mov_b32 {VMo[0][i]}, 0\nv_mov_b32 {VMo[1][i]}, 0")
    A(f"s_mov_b32 {s_slot}, {SLOT0}\ns_mov_b32 {s_kv}, 0\ns_mov_b32 {s_step}, 0\ns_mov_b32 {s_known}, 0\ns_mov_b32 {s_kvm}, 0")
    c2 = (128 ** -0.5) * math.log2(math.e)
    import struct
    A(f"s_mov_b32 {s_c2}, 0x{struct.unpack('<I', struct.pack('<f', c2))[0]:08x}")
    if STAMP:
        for r in range(50, 62): A(f"s_mov_b32 s{r}, 0")
    A(f"s_cmp_eq_u32 {s_mode}, 2\ns_cbranch_scc1 L_r_safe")

    def delay(n):
        for _ in range(n): A("s_nop 15")
    def chk4(regs_list, tgt):
        regs = [r for q in regs_list for r in ([q[i] for i in range(q.n)])]
        A(f"v_max3_u32 {vChk}, {regs[0]}, {regs[1]}, {regs[2]}"); regs = regs[3:]
        while len(regs) >= 2:
            A(f"v_max3_u32 {vChk}, {vChk}, {regs[0]}, {regs[1]}"); regs = regs[2:]
        if regs: A(f"v_max_u32 {vChk}, {vChk}, {regs[0]}")
        A(f"v_cmp_eq_u32 vcc, -1, {vChk}\ns_cbranch_vccnz {tgt}")
    def padd(d, a, b):
        for i in range(0, d.n, 2): A(f"v_pk_add_f32 {d[i:i+2]}, {a[i:i+2]}, {b[i:i+2]}")

    def r_loop(wk, md):
        IF = "" if md == 'f' else "sc1"
        tg = f"{md}{wk}"
        tails = []
        def gather(vAddr, nm, body):
            def issue(i0):
                for i in range(i0, 4): A(f"buffer_load_dwordx4 {F[i]}, {vAddr}, {WS}, {s_slot} offen offset:{i*1024} sc1")
            issue(0)
            for i in range(4):
                A(f"L_{nm}w{i}_{tg}:\ns_waitcnt vmcnt({3-i})")
                chk4([F[i]], f"L_{nm}r{i}_{tg}")
                body(i)
                def tail(i=i):
                    A(f"L_{nm}r{i}_{tg}:\ns_sub_u32 {s_bud}, {s_bud}, 1\ns_cbranch_scc1 L_end")
                    issue(i); A(f"s_branch L_{nm}w{i}_{tg}")
                tails.append(tail)
        if wk == 0:
            srd(A, 16, P_MEM0, 16384)
            A(f"v_lshrrev_b32 {vT0}, 1, {vJ}\nv_lshlrev_b32 {vT0}, 11, {vT0}\nv_lshl_add_u32 {vT0}, {vG}, 4, {vT0}\nv_and_b32 {vT1}, 1, {vJ}\nv_lshl_add_u32 {vT0}, {vT1}, 3, {vT0}")
            A(f"s_lshl_b32 {s_t0}, {s_c}, 6")
            A(f"buffer_load_dwordx2 {OO[0:2]}, {vT0}, {SX}, {s_t0} offen\ns_waitcnt vmcnt(0)")
            A(f"s_branch L_s1st_{tg}")
        A(f"L_loop_{tg}:")
        if wk == 0:
            delay(PRE[0])
            A(f"L_p1_{tg}:")
            for i in range(3): A(f"buffer_load_dwordx4 {T[i]}, {vPL[i]}, {WS}, {s_slot} offen sc1")
            A(f"s_sub_u32 {s_bud}, {s_bud}, 1\ns_cbranch_scc1 L_end")
            A("s_waitcnt vmcnt(0)")
            chk4(T[0:3], f"L_p1_{tg}")
            padd(T[0], T[0], OWN); padd(T[1], T[1], T[2]); padd(T[0], T[0], T[1])
            A(f"v_cvt_pk_bf16_f32 {OO[0]}, {T[0][0]}, {T[0][1]}\nv_cvt_pk_bf16_f32 {OO[1]}, {T[0][2]}, {T[0][3]}")
            A(f"L_s1st_{tg}:")
            A(f"v_min_u32 {OO[0]}, -2, {OO[0]}\nv_min_u32 {OO[1]}, -2, {OO[1]}")
            A(f"buffer_store_dwordx2 {OO[0:2]}, {vMS}, {WS}, {s_slot} offen {IF}")
        elif wk == 1:
            A(f"L_fl_{tg}:")
            A(f"s_cmp_gt_i32 {s_known}, {s_step}\ns_cbranch_scc1 L_flok_{tg}")
            A(f"buffer_load_dword {vT0}, {vFl}, {WS}, 0 offen sc1")
            A(f"s_sub_u32 {s_bud}, {s_bud}, 1\ns_cbranch_scc1 L_end")
            A("s_waitcnt vmcnt(0)")
            A(f"v_readlane_b32 {s_t0}, {vT0}, 0\nv_readlane_b32 {s_t1}, {vT0}, 1\ns_min_i32 {s_known}, {s_t0}, {s_t1}")
            A(f"s_branch L_fl_{tg}")
            A(f"L_flok_{tg}:")
            for u in range(2): A(f"buffer_load_dwordx4 {KX[u]}, {vKX}, {WS}, {s_kv} offen offset:{u*1024} sc1")
            for u in range(2): A(f"buffer_load_dwordx4 {VX[u]}, {vVX}, {WS}, {s_kv} offen offset:{u*1024} sc1")
        elif wk == 2:
            A(f"buffer_store_dwordx4 {vPoi}, {vPo[0]}, {WS}, {s_slot} offen sc1")
            for i in (1, 2, 3): A(f"buffer_store_dwordx4 {vPoi}, {vPo[i]}, {WS}, {s_slot} offen {IF}")
        for a in ACC:
            for i in range(4): A(f"v_mov_b32 {a[i]}, 0")
        A("s_barrier")
        delay(PRE[1])
        def body2(i):
            for Tt in range(4): A(f"v_smfmac_f32_16x16x64_bf16 {ACC[Tt]}, {F[i]}, {WQKV(Tt, i)}, {vIdx}")
        gather(vGM, "m", body2)
        vq = [(Tt, i) for i in range(4) for Tt in (4, 5)]
        def vs(n=1):
            for _ in range(n):
                Tt, i = vq.pop(0); A(f"v_smfmac_f32_16x16x64_bf16 {ACC[Tt]}, {F[i]}, {WQKV(Tt, i)}, {vIdx}")
        vs(2)
        for (a, b, vw) in ((0, 1, vQw), (2, 3, vKw)):
            for r in range(4): A(f"v_permlane32_swap_b32 {ACC[a][r]}, {ACC[b][r]}")
            vs()
            padd(ACC[a], ACC[a], ACC[b])
            A(f"ds_write2_b32 {vw}, {ACC[a][0]}, {ACC[a][1]} offset0:0 offset1:36")
            A(f"ds_write2_b32 {vw}, {ACC[a][2]}, {ACC[a][3]} offset0:72 offset1:108")
            vs()
        vs(2)
        A("s_waitcnt lgkmcnt(0)\ns_barrier")
        def vpart():
            for r in range(4): A(f"v_permlane32_swap_b32 {ACC[4][r]}, {ACC[5][r]}")
            padd(ACC[4], ACC[4], ACC[5])
            A(f"ds_write_b128 {vVw}, {ACC[4]}")
        if wk == 1:
            for w in range(4):
                for hh in range(2): A(f"ds_read_b128 {T[2*w+hh]}, {vQr} offset:{QK_B + w*2304 + hh*16}")
            A("s_waitcnt lgkmcnt(4)")
            padd(T[0], T[0], T[2]); padd(T[1], T[1], T[3])
            A("s_waitcnt lgkmcnt(0)")
            padd(T[4], T[4], T[6]); padd(T[5], T[5], T[7]); padd(T[0], T[0], T[4]); padd(T[1], T[1], T[5])
            for i in range(4): A(f"v_cvt_pk_bf16_f32 {X[i]}, {T[i>>1][2*(i&1)]}, {T[i>>1][2*(i&1)+1]}")
            A(f"v_mfma_f32_16x16x32_bf16 {S[0]}, {KX[0]}, {X}, 0")
            A(f"v_mfma_f32_16x16x32_bf16 {S[1]}, {KX[1]}, {X}, 0")
            A(f"v_mfma_f32_16x16x32_bf16 {S[2]}, {X}, {X}, 0")
            vpart()
            A(f"buffer_store_dwordx4 {S[0]}, {vS0}, {WS}, {s_slot} offen {IF}")
            A(f"buffer_store_dwordx4 {S[1]}, {vS0}, {WS}, {s_slot} offen offset:128 {IF}")
            A(f"buffer_store_dwordx4 {S[2]}, {vS2}, {WS}, {s_slot} offen {IF}")
        else:
            vpart()
        A("s_waitcnt lgkmcnt(0)\ns_barrier")
        if wk != 1:
            A(f"s_cmp_eq_u32 {s_step}, {NSEG-1}\ns_cbranch_scc1 L_end")
        if wk == 1:
            for t in range(2):
                for w in range(4): A(f"ds_read_b64 {T[4+2*t+(w>>1)][2*(w&1):2*(w&1)+2]}, {vVr} offset:{w*1024 + t*128}")
            A("s_waitcnt lgkmcnt(0)")
            for t in range(2):
                padd(T[4+2*t], T[4+2*t], T[5+2*t])
                A(f"v_pk_add_f32 {T[4+2*t][0:2]}, {T[4+2*t][0:2]}, {T[4+2*t][2:4]}")
                A(f"v_cvt_pk_bf16_f32 {VMo[t][0]}, {T[4+2*t][0]}, {T[4+2*t][1]}")
            A(f"s_cmp_eq_u32 {s_step}, {NSEG-1}\ns_cbranch_scc1 L_last_{tg}")
            delay(PRE[2])
            A(f"L_p3_{tg}:")
            for i in (0, 1, 2, 3):
                A(f"buffer_load_dwordx4 {T[i]}, {vSA[i]}, {WS}, {s_slot} offen sc1")
                A(f"buffer_load_dword {SB[i]}, {vSB[i]}, {WS}, {s_slot} offen sc1")
            A(f"s_sub_u32 {s_bud}, {s_bud}, 1\ns_cbranch_scc1 L_end")
            A("s_waitcnt vmcnt(0)")
            chk4(T[0:4] + SB, f"L_p3_{tg}")
            padd(T[0], T[0], T[1]); padd(T[2], T[2], T[3])
            A(f"v_add_f32 {SB[0]}, {SB[0]}, {SB[1]}\nv_add_f32 {SB[2]}, {SB[2]}, {SB[3]}")
            padd(T[0], T[0], T[2]); A(f"v_add_f32 {SB[0]}, {SB[0]}, {SB[2]}")
            A(f"v_max3_f32 {vM}, {T[0][0]}, {T[0][1]}, {T[0][2]}\nv_max3_f32 {vM}, {vM}, {T[0][3]}, {SB[0]}")
            A(f"v_max_f32_dpp {vM}, {vM}, {vM} row_ror:8 row_mask:0xf bank_mask:0xf")
            A(f"v_mov_b32 {vM2}, {vM}\nv_permlane16_swap_b32 {vM}, {vM2}\nv_max_f32 {vM}, {vM}, {vM2}")
            A(f"v_mov_b32 {vM2}, {vM}\nv_permlane32_swap_b32 {vM}, {vM2}\nv_max_f32 {vM}, {vM}, {vM2}")
            A(f"v_mul_f32 {vM}, {s_c2}, {vM}")
            vals = [T[0][i] for i in range(4)] + [SB[0]]
            for v in vals: A(f"v_fma_f32 {v}, {v}, {s_c2}, -{vM}")
            for v in vals: A(f"v_exp_f32 {v}, {v}")
            A(f"v_cvt_pk_bf16_f32 {PB[0]}, {T[0][0]}, {T[0][1]}\nv_cvt_pk_bf16_f32 {PB[1]}, {T[0][2]}, {T[0][3]}")
            A(f"v_mov_b32_dpp {vM2}, {SB[0]} row_ror:8 row_mask:0xf bank_mask:0xf")
            A(f"v_mov_b32_dpp {PB[2]}, {PB[0]} row_ror:8 row_mask:0xf bank_mask:0xf")
            A(f"v_mov_b32_dpp {PB[3]}, {PB[1]} row_ror:8 row_mask:0xf bank_mask:0xf")
            A(f"v_cvt_pk_bf16_f32 {PM[0]}, {SB[0]}, {vM2}")
            A(f"v_mfma_f32_16x16x32_bf16 {S[2]}, {ONES}, {PB}, 0")
            A(f"v_mfma_f32_16x16x32_bf16 {S[2]}, {ONES}, {PM}, {S[2]}")
            for t in range(2):
                A(f"v_mfma_f32_16x16x32_bf16 {S[t]}, {VX[t]}, {PB}, 0")
                A(f"v_mfma_f32_16x16x32_bf16 {S[t]}, {VMo[t]}, {PM}, {S[t]}")
            A(f"v_rcp_f32 {vM}, {S[2][0]}")
            for t in range(2):
                for r in range(4): A(f"v_mul_f32 {S[t][r]}, {S[t][r]}, {vM}")
                for hh in range(2):
                    A(f"v_cvt_pk_bf16_f32 {OO[2*t+hh]}, {S[t][2*hh]}, {S[t][2*hh+1]}")
            for i in range(4): A(f"v_min_u32 {OO[i]}, -2, {OO[i]}")
            A(f"buffer_store_dwordx4 {OO}, {vOS}, {WS}, {s_slot} offen {IF}")
        for a in ACC[0:2]:
            for i in range(4): A(f"v_mov_b32 {a[i]}, 0")
        A("s_barrier")
        delay(PRE[3])
        def body4(i):
            for t in range(2): A(f"v_smfmac_f32_16x16x64_bf16 {ACC[t]}, {F[i]}, {WOr(t, i)}, {vIdx}")
        gather(vGO, "o", body4)
        for r in range(4): A(f"v_permlane32_swap_b32 {ACC[0][r]}, {ACC[1][r]}")
        padd(ACC[0], ACC[0], ACC[1])
        A(f"ds_write2_b32 {vPw}, {ACC[0][0]}, {ACC[0][1]} offset0:0 offset1:36")
        A(f"ds_write2_b32 {vPw}, {ACC[0][2]}, {ACC[0][3]} offset0:72 offset1:108")
        A("s_waitcnt lgkmcnt(0)\ns_barrier")
        def kvm_store():
            A(f"buffer_store_dwordx4 {X}, {vKM}, {WS}, {s_kvm} offen")
            A(f"buffer_store_dword {VMo[0][0]}, {vVM}, {WS}, {s_kvm} offen")
            A(f"buffer_store_dword {VMo[1][0]}, {vVM}, {WS}, {s_kvm} offen offset:256")
        if wk == 0:
            for w in range(4): A(f"ds_read_b128 {T[w]}, {vPr} offset:{w*1152}")
            A("s_waitcnt lgkmcnt(2)"); padd(T[0], T[0], T[1])
            A("s_waitcnt lgkmcnt(0)"); padd(T[2], T[2], T[3]); padd(OWN, T[0], T[2])
            for i in range(4): A(f"v_min_u32 {OWN[i]}, -2, {OWN[i]}")
            A(f"buffer_store_dwordx4 {OWN}, {vPS}, {WS}, {s_slot} offen sc1")
        if wk == 1: kvm_store()
        A(f"s_add_u32 {s_slot}, {s_slot}, {SLOT_SZ}\ns_add_u32 {s_kv}, {s_kv}, 0x40000\ns_add_u32 {s_kvm}, {s_kvm}, 0x20000\ns_add_u32 {s_step}, {s_step}, 1")
        A(f"s_branch L_loop_{tg}")
        if wk == 1:
            A(f"L_last_{tg}:"); kvm_store(); A("s_branch L_end")
        for t in tails: t()

    for md in ('f', 's'):
        if md == 's': A("L_r_safe:")
        for wk in (1, 2, 3):
            A(f"s_cmp_eq_u32 {s_wave}, {wk}\ns_cbranch_scc1 L_loop_{md}{wk}")
        for wk in (0, 1, 2, 3): r_loop(wk, md)

    A("L_grole:")
    V.next = vbase
    s_g, s_wstr, s_wcol, s_obase, s_ostr, s_type = "s32", "s33", "s34", "s35", "s36", "s37"
    s_blk, s_xsrc, s_osoff, s_gl, s_gsrc, s_xs, s_m0 = "s38", "s39", "s40", "s41", "s42", "s43", "s44"
    s_tb = "s45"; s_fl = "s46"
    vGW = V.alloc('gw'); vGTr = V.alloc('gtr'); vXo = V.alloc('xo'); vR0 = V.alloc('r0'); vR1 = V.alloc('r1'); vO = V.alloc('o'); vGF = V.alloc('gf'); vFv = V.alloc('fv')
    XF = [V.alloc(f'xf{i}', 4) for i in range(8)]
    GA = [[V.alloc(f'ga{s}{i}', 4) for i in range(4)] for s in range(2)]
    PK = [V.alloc(f'pk{i}', 4) for i in range(2)]
    A(f"s_sub_u32 {s_g}, {s_role}, 128")
    A(f"s_lshl_b32 {s_gl}, {s_wave}, 14\ns_add_u32 {s_gl}, {s_gl}, 65536")
    A(f"v_bfe_u32 {vT0}, {vLane}, 2, 2\nv_lshl_add_u32 {vT0}, {vG}, 3, {vT0}\nv_lshlrev_b32 {vT0}, 6, {vT0}\nv_and_b32 {vT1}, 3, {vLane}\nv_lshl_add_u32 {vT0}, {vT1}, 4, {vT0}\nv_add_u32 {vGTr}, {s_gl}, {vT0}")
    def g_voff():
        A(f"v_lshrrev_b32 {vT0}, 2, {vLane}\nv_mul_lo_u32 {vT0}, {vT0}, {s_wstr}\nv_and_b32 {vT1}, 3, {vLane}\nv_lshl_add_u32 {vGW}, {vT1}, 4, {vT0}")
        A(f"s_lshl_b32 {s_wstr}, {s_wstr}, 4")
    def g_wload(extra_first):
        dma_chunk(vGW, s_gsrc, s_wstr, 128, s_gl, 0)
        dma_chunk(vGW, s_gsrc, s_wstr, 128, s_gl, 8192)
        for ch in range(8):
            A(f"s_waitcnt vmcnt({8 if ch < 7 else 0})")
            for k4 in range(4):
                ks = ch * 4 + k4
                for t in range(2):
                    for hh in range(2):
                        a0 = (t * 32 + ks) * 4 + 2 * hh
                        A(f"ds_read_b64_tr_b16 a[{a0}:{a0+1}], {vGTr} offset:{(ch & 1) * 8192 + (32 * k4 + 4 * hh) * 64 + 8 * t}")
            A("s_waitcnt lgkmcnt(0)")
            if ch + 2 < 8: dma_chunk(vGW, s_gsrc, s_wstr, 128, s_gl, (ch & 1) * 8192)
    A(f"s_cmp_ge_u32 {s_g}, 120\ns_cbranch_scc1 L_trole")
    A(f"s_cmp_ge_u32 {s_g}, 96\ns_cbranch_scc1 L_gB")
    A(f"s_lshr_b32 {s_t0}, {s_g}, 5\ns_and_b32 {s_t1}, {s_g}, 31")
    A(f"s_mov_b32 s12, s{P_WK}\ns_mov_b32 s13, s{P_WK+1}\ns_mov_b32 {s_obase}, {KXF}\ns_mov_b32 {s_type}, 0")
    A(f"s_cmp_eq_u32 {s_t0}, 1\ns_cselect_b32 s12, s{P_WV}, s12\ns_cselect_b32 s13, s{P_WV+1}, s13\ns_cselect_b32 {s_obase}, {VXF}, {s_obase}\ns_cselect_b32 {s_type}, 1, 0")
    A(f"s_cmp_eq_u32 {s_t0}, 2\ns_cselect_b32 s12, s{P_WQ}, s12\ns_cselect_b32 s13, s{P_WQ+1}, s13\ns_cselect_b32 {s_obase}, {QXF}, {s_obase}")
    A(f"s_mov_b32 s14, {8*MB}\ns_mov_b32 {s_wstr}, 8192\ns_lshl_b32 {s_wcol}, {s_t1}, 8\ns_mov_b32 {s_ostr}, 0x40000")
    A(f"s_mov_b32 s16, s{P_AX}\ns_mov_b32 s17, s{P_AX+1}")
    A("s_branch L_gP")
    A("L_gB:")
    A(f"s_sub_u32 {s_t2}, {s_g}, 96\ns_lshr_b32 {s_t0}, {s_t2}, 3\ns_and_b32 {s_t1}, {s_t2}, 7")
    A(f"s_mov_b32 s12, s{P_WQKV}\ns_mov_b32 s13, s{P_WQKV+1}\ns_mov_b32 s14, {6*MB}\ns_mov_b32 {s_wstr}, 6144\ns_lshl_b32 {s_wcol}, {s_t2}, 8\ns_mov_b32 {s_ostr}, 0x10000")
    A(f"s_lshl_b32 {s_obase}, {s_t0}, 22\ns_add_u32 {s_obase}, {s_obase}, {QBF}")
    A(f"s_cmp_eq_u32 {s_t0}, 2\ns_cselect_b32 {s_type}, 1, 0")
    A(f"s_mov_b32 s16, s{P_BX}\ns_mov_b32 s17, s{P_BX+1}")
    A("L_gP:")
    A(f"s_mov_b32 s18, {4*MB}")
    A(f"s_lshl_b32 {s_t1}, {s_t1}, 2\ns_add_u32 {s_t1}, {s_t1}, {s_wave}\ns_lshl_b32 {s_t1}, {s_t1}, 11\ns_add_u32 {s_t1}, {s_t1}, {s_obase}\nv_add_u32 {vO}, {s_t1}, {vL16}")
    A(f"s_lshl_b32 {s_t1}, {s_g}, 2\ns_add_u32 {s_t1}, {s_t1}, {s_wave}\ns_lshl_b32 {s_t1}, {s_t1}, 6\nv_mov_b32 {vT0}, {s_t1}\nv_mov_b32 {vT1}, {OOB}")
    A(f"v_cmp_eq_u32 vcc, 0, {vLane}\nv_cndmask_b32 {vGF}, {vT1}, {vT0}, vcc")
    A(f"v_lshrrev_b32 {vT0}, 2, {vJ}\nv_lshlrev_b32 {vT0}, 3, {vT0}\nv_and_b32 {vT1}, 3, {vJ}\nv_add_u32 {vT0}, {vT0}, {vT1}\nv_lshlrev_b32 {vT0}, 11, {vT0}\nv_lshl_add_u32 {vXo}, {vG}, 4, {vT0}")
    A(f"v_mov_b32 {vR0}, {vL16}\nv_add_u32 {vR1}, 65536, {vL16}")
    A(f"s_lshl_b32 {s_xsrc}, {s_wave}, 9")
    A(f"s_lshl_b32 {s_m0}, {s_wave}, 14")
    def x_dma(n, buf):
        ks8, u = n >> 1, n & 1
        A(f"s_add_u32 m0, {s_m0}, {buf * 65536 + n * 1024}")
        A(f"s_add_u32 {s_xs}, {s_xsrc}, {ks8 * 64 + u * 8192}")
        A(f"buffer_load_dwordx4 {vXo}, {SX}, {s_xs} offen lds")
    for n in range(16): x_dma(n, 0)
    A(f"s_add_u32 {s_xsrc}, {s_xsrc}, 65536")
    g_voff()
    A(f"s_lshl_b32 {s_gsrc}, {s_wave}, 6\ns_add_u32 {s_gsrc}, {s_gsrc}, {s_wcol}")
    g_wload(0)
    confirm("g")
    A(f"s_mov_b32 {s_blk}, 0\ns_mov_b32 {s_osoff}, 0")
    A(f"s_cmp_eq_u32 {s_type}, 1\ns_cbranch_scc1 L_gN")
    def GW(t, ks): b = (t * 32 + ks) * 4; return f"a[{b}:{b+3}]"
    def g_loop(ty):
        def epi(acc):
            for f in range(2):
                lo, hi = (acc[f * 2 + 0], acc[f * 2 + 1]) if ty == 'T' else (acc[0 * 2 + f], acc[1 * 2 + f])
                A(f"v_cvt_pk_bf16_f32 {PK[f][0]}, {lo[0]}, {lo[1]}\nv_cvt_pk_bf16_f32 {PK[f][1]}, {lo[2]}, {lo[3]}")
                A(f"v_cvt_pk_bf16_f32 {PK[f][2]}, {hi[0]}, {hi[1]}\nv_cvt_pk_bf16_f32 {PK[f][3]}, {hi[2]}, {hi[3]}")
                A(f"buffer_store_dwordx4 {PK[f]}, {vO}, {WS}, {s_osoff} offen offset:{f*1024} sc1")
            A(f"s_add_u32 {s_osoff}, {s_osoff}, {s_ostr}")
        def block(par, first):
            vR = vR0 if par == 0 else vR1
            acc = GA[par]
            A(f"s_waitcnt vmcnt({0 if first else 1})\ns_barrier")
            for n in range(8): A(f"ds_read_b128 {XF[n]}, {vR} offset:{n*1024}")
            if not first: epi(GA[1 - par])
            for ks in range(32):
                rem = min(8, 64 - 2 * ks)
                A(f"s_waitcnt lgkmcnt({rem - 2})")
                for u in range(2):
                    xf = XF[(2 * ks + u) % 8]
                    for t in range(2):
                        c = "0" if ks == 0 else str(acc[u * 2 + t])
                        if ty == 'T': A(f"v_mfma_f32_16x16x32_bf16 {acc[u*2+t]}, {GW(t, ks)}, {xf}, {c}")
                        else: A(f"v_mfma_f32_16x16x32_bf16 {acc[u*2+t]}, {xf}, {GW(t, ks)}, {c}")
                    n = 2 * ks + u + 8
                    if n < 64: A(f"ds_read_b128 {xf}, {vR} offset:{n*1024}")
                if ks < 16: x_dma(ks, 1 - par)
                if ks == 16: A(f"s_add_u32 {s_xsrc}, {s_xsrc}, 65536")
                if ks == 20:
                    A(f"s_waitcnt vmcnt(16)\nv_mov_b32 {vFv}, {s_blk}")
                    A(f"buffer_store_dword {vFv}, {vGF}, {WS}, 0 offen sc1")
            A(f"s_add_u32 {s_blk}, {s_blk}, 1")
        block(0, True)
        A(f"L_gl_{ty}:")
        block(1, False)
        A(f"s_cmp_eq_u32 {s_blk}, {NSEG}\ns_cbranch_scc1 L_gd_{ty}")
        block(0, False)
        A(f"s_branch L_gl_{ty}")
        A(f"L_gd_{ty}:")
        A("s_nop 7")
        epi(GA[1])
        A(f"s_waitcnt vmcnt(0)\nv_mov_b32 {vFv}, {s_blk}")
        A(f"buffer_store_dword {vFv}, {vGF}, {WS}, 0 offen sc1")
        A("s_branch L_end")
    g_loop('T')
    A("L_gN:")
    g_loop('N')
    A("L_trole:")
    confirm("t")
    A(f"s_sub_u32 {s_tb}, {s_g}, 120\ns_mov_b32 {s_wstr}, 2048")
    g_voff()
    A("L_tl:")
    A(f"s_and_b32 {s_t0}, {s_tb}, 7\ns_lshr_b32 {s_t1}, {s_tb}, 3")
    A(f"s_lshl_b32 {s_t2}, {s_t0}, 2\ns_add_u32 {s_t2}, {s_t2}, {s_wave}")
    A(f"s_lshl_b32 {s_gsrc}, {s_t2}, 6")
    A(f"s_cmp_eq_u32 {s_t1}, 4\ns_cbranch_scc1 L_tB")
    A(f"s_mov_b32 s12, s{P_WO}\ns_mov_b32 s13, s{P_WO+1}\ns_mov_b32 s14, {8*MB}")
    A(f"s_lshl_b32 {s_t3}, {s_t1}, 21\ns_add_u32 {s_gsrc}, {s_gsrc}, {s_t3}")
    A(f"s_lshl_b32 {s_osoff}, {s_t2}, 18\ns_lshl_b32 {s_t3}, {s_t1}, 16\ns_add_u32 {s_osoff}, {s_osoff}, {s_t3}\ns_add_u32 {s_osoff}, {s_osoff}, {WOF}")
    A("s_branch L_tgo")
    A("L_tB:")
    A(f"s_mov_b32 s12, s{P_WOB}\ns_mov_b32 s13, s{P_WOB+1}\ns_mov_b32 s14, {2*MB}")
    A(f"s_lshl_b32 {s_osoff}, {s_t2}, 16\ns_add_u32 {s_osoff}, {s_osoff}, {WOBF}")
    A("L_tgo:")
    A("s_waitcnt vmcnt(0)")
    g_wload(0)
    for ks in range(32):
        for t in range(2):
            A(f"buffer_store_dwordx4 {GW(t, ks)}, {vL16}, {WS}, {s_osoff} offen offset:{((ks & 1) * 2 + t) * 1024}")
        if ks & 1: A(f"s_add_u32 {s_osoff}, {s_osoff}, 4096")
    A(f"s_add_u32 {s_tb}, {s_tb}, 8\ns_cmp_lt_u32 {s_tb}, 40\ns_cbranch_scc1 L_tl")
    A("L_end:\ns_endpgm")
    return A.finish() + kd(name, 512, 256)
```

```python
from asmlib import Asm, Regs, R
from layout import *
from gen_main import kd, srd, load_kernargs, P_OUT, P_WS, WS
import math, struct

LAUNCH = ["; @launch kernel=attn_kernel grid=(1024,1,1) block=(256,1,1) lds=0",
          "; @launch kernel=out_kernel grid=(256,1,1) block=(256,1,1) lds=147456"]
def f32(x): return f"0x{struct.unpack('<I', struct.pack('<f', x))[0]:08x}"

def gen_attn(name, opt):
    A = Asm()
    A(f".globl {name}\n.p2align 8\n.type {name},@function\n{name}:")
    A("s_cmp_ge_u32 s2, 1024\ns_cbranch_scc1 L_aend")
    A("s_load_dwordx2 s[88:89], s[0:1], 96")
    V = Regs('v', 1, 256)
    vLane = V.alloc('lane'); vL16 = V.alloc('l16'); vG = V.alloc('g'); vJ = V.alloc('j'); vT0 = V.alloc('t0'); vT1 = V.alloc('t1')
    vD = [V.alloc('d0'), V.alloc('d1')]; vNeg = V.alloc('neg'); vM = [V.alloc('m0'), V.alloc('m1')]; vM2 = V.alloc('m2')
    ONES = V.alloc('ones', 4)
    s_wave, s_task, s_t0, s_t1, s_t2, s_c2 = "s20", "s21", "s24", "s25", "s26", "s27"
    A(f"v_lshrrev_b32 {vT0}, 6, v0\nv_and_b32 {vLane}, 63, v0\nv_readfirstlane_b32 {s_wave}, {vT0}")
    A(f"v_lshlrev_b32 {vL16}, 4, {vLane}\nv_lshrrev_b32 {vG}, 4, {vLane}\nv_and_b32 {vJ}, 15, {vLane}")
    A(f"v_lshrrev_b32 {vT0}, 2, {vJ}\nv_sub_u32 {vT0}, {vT0}, {vG}\nv_lshlrev_b32 {vT0}, 3, {vT0}\nv_and_b32 {vT1}, 3, {vJ}\nv_add_u32 {vD[0]}, {vT0}, {vT1}\nv_add_u32 {vD[1]}, 4, {vD[0]}")
    A(f"v_mov_b32 {vNeg}, {f32(-1e30)}")
    for i in range(4): A(f"v_mov_b32 {ONES[i]}, 0x3f803f80")
    def MK(uq, c): b = 32 + (uq * 8 + c) * 2; return f"s[{b}:{b+1}]"
    for uq in range(2):
        for c in range(8): A(f"v_cmp_le_i32 {MK(uq, c)}, {c}, {vD[uq]}")
    A("s_waitcnt lgkmcnt(0)")
    srd(A, 4, P_WS, WS_BYTES)
    vb = V.next
    def rowmax(m):
        A(f"v_mov_b32 {vM2}, {m}\nv_permlane16_swap_b32 {m}, {vM2}\nv_max_f32 {m}, {m}, {vM2}")
        A(f"v_mov_b32 {vM2}, {m}\nv_permlane32_swap_b32 {m}, {vM2}\nv_max_f32 {m}, {m}, {vM2}")
        A(f"v_mul_f32 {m}, {s_c2}, {m}")
    def maxchain(m, vals):
        A(f"v_max3_f32 {m}, {vals[0]}, {vals[1]}, {vals[2]}"); vals = vals[3:]
        while len(vals) >= 2:
            A(f"v_max3_f32 {m}, {m}, {vals[0]}, {vals[1]}"); vals = vals[2:]
        if vals: A(f"v_max_f32 {m}, {m}, {vals[0]}")
    A("s_cmp_ge_u32 s2, 512\ns_cbranch_scc1 L_aT6")
    s_qb, s_hb = "s22", "s23"
    Q = [V.alloc(f'q{u}', 4) for u in range(2)]
    KV = [[V.alloc(f'kv{b}{u}', 4) for u in range(2)] for b in range(9)]
    S = [[[V.alloc(f's{b}{uq}{u}', 4) for u in range(2)] for uq in range(2)] for b in range(9)]
    A(f"s_lshr_b32 {s_hb}, s2, 4\ns_and_b32 {s_qb}, s2, 15\ns_lshl_b32 {s_qb}, {s_qb}, 2\ns_add_u32 {s_qb}, {s_qb}, {s_wave}")
    A(f"s_mov_b32 {s_c2}, {f32(32 ** -0.5 * math.log2(math.e))}")
    A(f"s_lshl_b32 {s_t0}, {s_hb}, 11\nv_add_u32 {vT0}, {s_t0}, {vL16}")
    A(f"s_lshl_b32 {s_t1}, {s_qb}, 16\ns_add_u32 {s_t1}, {s_t1}, {QBF}")
    for u in range(2): A(f"buffer_load_dwordx4 {Q[u]}, {vT0}, {WS}, {s_t1} offen offset:{u*1024}")
    def kvoff(b, base):
        A(f"s_add_i32 {s_t1}, {s_qb}, {b - 8}\ns_max_i32 {s_t1}, {s_t1}, 0\ns_lshl_b32 {s_t1}, {s_t1}, 16\ns_add_u32 {s_t1}, {s_t1}, {base}")
    for b in range(9):
        kvoff(b, KBF)
        for u in range(2): A(f"buffer_load_dwordx4 {KV[b][u]}, {vT0}, {WS}, {s_t1} offen offset:{u*1024}")
    for b in range(9):
        A(f"s_waitcnt vmcnt({2 * (8 - b) + 2 * max(b - 1, 0)})")
        for uq in range(2):
            for u in range(2): A(f"v_mfma_f32_16x16x32_bf16 {S[b][uq][u]}, {KV[b][u]}, {Q[uq]}, 0")
        if b >= 1:
            kvoff(b - 1, VBF)
            for u in range(2): A(f"buffer_load_dwordx4 {KV[b-1][u]}, {vT0}, {WS}, {s_t1} offen offset:{u*1024}")
    kvoff(8, VBF)
    A("s_nop 3")
    for u in range(2): A(f"buffer_load_dwordx4 {KV[8][u]}, {vT0}, {WS}, {s_t1} offen offset:{u*1024}")
    for uq in range(2):
        for u in range(2):
            for r in range(4):
                A(f"v_cndmask_b32 {S[0][uq][u][r]}, {S[0][uq][u][r]}, {vNeg}, {MK(uq, 4*u+r)}")
    for uq in range(2):
        for u in range(2):
            for r in range(4):
                A(f"v_cndmask_b32 {S[8][uq][u][r]}, {vNeg}, {S[8][uq][u][r]}, {MK(uq, 4*u+r)}")
    for b in range(8):
        A(f"s_cmp_ge_u32 {s_qb}, {8 - b}\ns_cbranch_scc1 L_bm_done")
        for uq in range(2):
            for u in range(2):
                for r in range(4): A(f"v_mov_b32 {S[b][uq][u][r]}, {vNeg}")
    A("L_bm_done:")
    for uq in range(2):
        maxchain(vM[uq], [S[b][uq][u][r] for b in range(9) for u in range(2) for r in range(4)])
        rowmax(vM[uq])
    O = [[Q[0], Q[1]], [V.alloc('o10', 4), V.alloc('o11', 4)]]
    for b in range(9):
        for uq in range(2):
            vals = [S[b][uq][u][r] for u in range(2) for r in range(4)]
            for v in vals: A(f"v_fma_f32 {v}, {v}, {s_c2}, -{vM[uq]}")
            for v in vals: A(f"v_exp_f32 {v}, {v}")
            for i in range(4): A(f"v_cvt_pk_bf16_f32 {S[b][uq][0][i]}, {vals[2*i]}, {vals[2*i+1]}")
        A(f"s_waitcnt vmcnt({2 * (8 - b)})")
        for uq in range(2):
            L = S[0][uq][1]
            A(f"v_mfma_f32_16x16x32_bf16 {L}, {ONES}, {S[b][uq][0]}, {'0' if b == 0 else L}")
            for t in range(2):
                A(f"v_mfma_f32_16x16x32_bf16 {O[uq][t]}, {KV[b][t]}, {S[b][uq][0]}, {'0' if b == 0 else O[uq][t]}")
    A(f"s_lshl_b32 {s_t0}, {s_hb}, 10\nv_add_u32 {vT0}, {s_t0}, {vL16}")
    A(f"s_lshl_b32 {s_t1}, {s_qb}, 16\ns_add_u32 {s_t1}, {s_t1}, {OBF}\ns_add_u32 {s_t2}, {s_t1}, 32768")
    for uq in range(2):
        A(f"v_rcp_f32 {vM[uq]}, {S[0][uq][1][0]}")
        P = S[1][uq][0]
        for t in range(2):
            for r in range(4): A(f"v_mul_f32 {O[uq][t][r]}, {O[uq][t][r]}, {vM[uq]}")
            for hh in range(2): A(f"v_cvt_pk_bf16_f32 {P[2*t+hh]}, {O[uq][t][2*hh]}, {O[uq][t][2*hh+1]}")
        A(f"buffer_store_dwordx4 {P}, {vT0}, {WS}, {s_t1 if uq == 0 else s_t2} offen")
    A("s_branch L_aend")
    A("L_aT6:")
    V.next = vb
    Qf = [[V.alloc(f'Q{j}{u}', 4) for u in range(2)] for j in range(4)]
    Kf = [[V.alloc(f'K{j}{u}', 4) for u in range(2)] for j in range(4)]
    Vf = [[V.alloc(f'V{j}{u}', 4) for u in range(2)] for j in range(4)]
    KM = [V.alloc(f'KM{j}', 4) for j in range(4)]
    VM = [[V.alloc(f'VM{j}{t}', 2) for t in range(2)] for j in range(4)]
    Sx = [[V.alloc(f'Sx{uq}{kt}', 4) for kt in range(3)] for uq in range(2)]
    PMr = [V.alloc(f'PM{uq}', 2) for uq in range(2)]
    Lr = [V.alloc(f'L{uq}', 4) for uq in range(2)]
    vKM = V.alloc('vkm'); vVM = V.alloc('vvm')
    A(f"s_sub_u32 {s_task}, s2, 512\ns_lshl_b32 {s_task}, {s_task}, 2\ns_add_u32 {s_task}, {s_task}, {s_wave}")
    A(f"s_mov_b32 {s_c2}, {f32(128 ** -0.5 * math.log2(math.e))}")
    A(f"s_lshl_b32 {s_t0}, {s_task}, 13")
    def ld8(dst, base):
        for half in range(2):
            A(f"s_add_u32 {s_t1}, {s_t0}, {base + half * 4096}")
            for k in range(4):
                j, u = (half * 4 + k) >> 1, k & 1
                A(f"buffer_load_dwordx4 {dst[j][u]}, {vL16}, {WS}, {s_t1} offen offset:{k*1024}")
    ld8(Qf, QXF); ld8(Kf, KXF)
    A(f"v_lshrrev_b32 {vT0}, 2, {vJ}\nv_lshlrev_b32 {vT0}, 1, {vT0}\nv_and_b32 {vT1}, 1, {vJ}\nv_add_u32 {vT0}, {vT0}, {vT1}\nv_lshl_add_u32 {vT0}, {vG}, 3, {vT0}\nv_lshlrev_b32 {vT0}, 4, {vT0}")
    A(f"v_and_b32 {vT1}, 2, {vJ}\nv_cmp_eq_u32 vcc, 0, {vT1}\nv_mov_b32 {vT1}, {OOB}\nv_cndmask_b32 {vKM}, {vT1}, {vT0}, vcc")
    A(f"v_lshlrev_b32 {vVM}, 2, {vLane}")
    A(f"s_lshl_b32 {s_t2}, {s_task}, 12\ns_add_u32 {s_t2}, {s_t2}, {KVM}")
    for j in range(4): A(f"buffer_load_dwordx4 {KM[j]}, {vKM}, {WS}, {s_t2} offen offset:{j*1024}")
    for j in range(4):
        for t in range(2):
            A(f"buffer_load_dword {VM[j][t][0]}, {vVM}, {WS}, {s_t2} offen offset:{j*1024 + 512 + t*256}")
            A(f"v_mov_b32 {VM[j][t][1]}, 0")
    ld8(Vf, VXF)
    A(f"v_mov_b32 {PMr[0][1]}, 0\nv_mov_b32 {PMr[1][1]}, 0")
    A("s_waitcnt vmcnt(16)")
    for j in range(4):
        for uq in range(2):
            for kt in range(3):
                a = Kf[j][kt] if kt < 2 else KM[j]
                A(f"v_mfma_f32_16x16x32_bf16 {Sx[uq][kt]}, {a}, {Qf[j][uq]}, {'0' if j == 0 else Sx[uq][kt]}")
    for uq in range(2):
        for u in range(2):
            for r in range(4): A(f"v_cndmask_b32 {Sx[uq][u][r]}, {vNeg}, {Sx[uq][u][r]}, {MK(uq, 4*u+r)}")
    for uq in range(2):
        vals = [Sx[uq][u][r] for u in range(2) for r in range(4)] + [Sx[uq][2][0], Sx[uq][2][1]]
        maxchain(vM[uq], vals); rowmax(vM[uq])
        for v in vals: A(f"v_fma_f32 {v}, {v}, {s_c2}, -{vM[uq]}")
        for v in vals: A(f"v_exp_f32 {v}, {v}")
        for i in range(4): A(f"v_cvt_pk_bf16_f32 {Sx[uq][0][i]}, {vals[2*i]}, {vals[2*i+1]}")
        A(f"v_cvt_pk_bf16_f32 {PMr[uq][0]}, {vals[8]}, {vals[9]}")
    Oa = [Qf, Kf]
    A("s_waitcnt vmcnt(8)")
    for uq in range(2):
        A(f"v_mfma_f32_16x16x16_bf16 {Lr[uq]}, {ONES[0:2]}, {PMr[uq]}, 0")
        for j in range(4):
            for t in range(2): A(f"v_mfma_f32_16x16x16_bf16 {Oa[uq][j][t]}, {VM[j][t]}, {PMr[uq]}, 0")
    A("s_waitcnt vmcnt(0)")
    for uq in range(2):
        A(f"v_mfma_f32_16x16x32_bf16 {Lr[uq]}, {ONES}, {Sx[uq][0]}, {Lr[uq]}")
        for j in range(4):
            for t in range(2): A(f"v_mfma_f32_16x16x32_bf16 {Oa[uq][j][t]}, {Vf[j][t]}, {Sx[uq][0]}, {Oa[uq][j][t]}")
    A(f"s_lshr_b32 {s_t0}, {s_task}, 5\ns_lshl_b32 {s_t0}, {s_t0}, 18\ns_and_b32 {s_t1}, {s_task}, 31\ns_lshl_b32 {s_t1}, {s_t1}, 12\ns_add_u32 {s_t0}, {s_t0}, {s_t1}\ns_add_u32 {s_t0}, {s_t0}, {OAF}")
    A(f"s_add_u32 {s_t1}, {s_t0}, 0x20000")
    for uq in range(2):
        A(f"v_rcp_f32 {vM[uq]}, {Lr[uq][0]}")
        for j in range(4):
            P = KM[j] if uq == 0 else Vf[j][0]
            for t in range(2):
                for r in range(4): A(f"v_mul_f32 {Oa[uq][j][t][r]}, {Oa[uq][j][t][r]}, {vM[uq]}")
                for hh in range(2): A(f"v_cvt_pk_bf16_f32 {P[2*t+hh]}, {Oa[uq][j][t][2*hh]}, {Oa[uq][j][t][2*hh+1]}")
            A(f"buffer_store_dwordx4 {P}, {vL16}, {WS}, {s_t0 if uq == 0 else s_t1} offen offset:{j*1024}")
    A("L_aend:\ns_endpgm")
    return A.finish() + kd(name, 256, 256)

def gen_out(name, opt):
    A = Asm()
    A(f".globl {name}\n.p2align 8\n.type {name},@function\n{name}:")
    A("s_cmp_ge_u32 s2, 256\ns_cbranch_scc1 L_oend")
    A("s_load_dwordx2 s[88:89], s[0:1], 96\ns_load_dwordx2 s[84:85], s[0:1], 80")
    V = Regs('v', 1, 128)
    vLane = V.alloc('lane'); vL16 = V.alloc('l16'); vG = V.alloc('g'); vJ = V.alloc('j'); vT0 = V.alloc('t0'); vT1 = V.alloc('t1')
    vRA0 = V.alloc('ra0'); vRW0 = V.alloc('rw0'); vRA = V.alloc('ra'); vRW = V.alloc('rw'); vOut = V.alloc('out')
    AF = [[V.alloc(f'af{p}{m}', 4) for m in range(4)] for p in range(2)]
    WF = [[V.alloc(f'wf{p}{t}', 4) for t in range(2)] for p in range(2)]
    ACC = [[V.alloc(f'acc{m}{t}', 4) for t in range(2)] for m in range(4)]
    PK = [V.alloc(f'pk{m}', 4) for m in range(4)]
    s_wave, s_mb, s_nb, s_t0, s_t1, s_t2 = "s20", "s21", "s22", "s24", "s25", "s26"
    s_a0, s_a1, s_w, s_iss, s_rd, s_wr, s_cnt, s_ph, s_ocol = "s28", "s29", "s30", "s31", "s32", "s33", "s34", "s35", "s36"
    s_la, s_lw = "s37", "s38"
    OUT = "s[8:11]"
    STG = 49152; RING = 3 * STG
    A(f"v_lshrrev_b32 {vT0}, 6, v0\nv_and_b32 {vLane}, 63, v0\nv_readfirstlane_b32 {s_wave}, {vT0}")
    A(f"v_lshlrev_b32 {vL16}, 4, {vLane}\nv_lshrrev_b32 {vG}, 4, {vLane}\nv_and_b32 {vJ}, 15, {vLane}")
    A(f"s_and_b32 {s_t0}, s2, 7\ns_lshr_b32 {s_t1}, s2, 3")
    A(f"s_lshr_b32 {s_mb}, {s_t0}, 1\ns_lshl_b32 {s_mb}, {s_mb}, 2\ns_and_b32 {s_t2}, {s_t1}, 3\ns_add_u32 {s_mb}, {s_mb}, {s_t2}")
    A(f"s_and_b32 {s_nb}, {s_t0}, 1\ns_lshl_b32 {s_nb}, {s_nb}, 3\ns_lshr_b32 {s_t2}, {s_t1}, 2\ns_add_u32 {s_nb}, {s_nb}, {s_t2}")
    A("s_waitcnt lgkmcnt(0)")
    srd(A, 4, P_WS, WS_BYTES); srd(A, 8, P_OUT, 8 * MB)
    def setsrc(phase):
        rs = 17 if phase == 0 else 15
        A(f"s_lshl_b32 {s_t0}, {s_mb}, 2\ns_add_u32 {s_t0}, {s_t0}, {s_wave}\ns_lshl_b32 {s_t0}, {s_t0}, {rs+1}\ns_add_u32 {s_a0}, {s_t0}, {OAF if phase == 0 else OBF}\ns_add_u32 {s_a1}, {s_a0}, {1 << rs}")
        A(f"s_lshl_b32 {s_t0}, {s_nb}, 1\ns_lshr_b32 {s_t1}, {s_wave}, 1\ns_add_u32 {s_t0}, {s_t0}, {s_t1}\ns_lshl_b32 {s_t0}, {s_t0}, {rs+1}")
        A(f"s_and_b32 {s_t1}, {s_wave}, 1\ns_lshl_b32 {s_t1}, {s_t1}, 12\ns_add_u32 {s_t0}, {s_t0}, {s_t1}\ns_add_u32 {s_w}, {s_t0}, {WOF if phase == 0 else WOBF}")
    setsrc(0)
    A(f"s_lshl_b32 {s_la}, {s_wave}, 13\ns_lshl_b32 {s_lw}, {s_wave}, 12\ns_add_u32 {s_lw}, {s_lw}, 32768")
    def issue_group(g):
        src, l, lo = [(s_a0, s_la, 0), (s_a1, s_la, 4096), (s_w, s_lw, 0)][g]
        A(f"s_add_u32 {s_t0}, {s_wr}, {l}")
        if lo: A(f"s_add_u32 {s_t0}, {s_t0}, {lo}")
        A(f"s_mov_b32 m0, {s_t0}")
        for k in range(4): A(f"buffer_load_dwordx4 {vL16}, {WS}, {src} offen offset:{k*1024} lds")
        A(f"s_add_u32 {src}, {src}, {4096 if g < 2 else 8192}")
    def issue_end(tag):
        A(f"s_add_u32 {s_wr}, {s_wr}, {STG}\ns_cmp_eq_u32 {s_wr}, {RING}\ns_cselect_b32 {s_wr}, 0, {s_wr}")
        A(f"s_add_u32 {s_iss}, {s_iss}, 1\ns_cmp_lg_u32 {s_iss}, 32\ns_cbranch_scc1 L_ns_{tag}")
        setsrc(1)
        A(f"L_ns_{tag}:")
    A(f"s_mov_b32 {s_wr}, 0\ns_mov_b32 {s_rd}, 0\ns_mov_b32 {s_iss}, 0\ns_mov_b32 {s_cnt}, 32\ns_mov_b32 {s_ph}, 0\ns_mov_b32 {s_ocol}, 0")
    for st in range(2):
        for g in range(3): issue_group(g)
        issue_end(f"p{st}")
    A(f"s_lshr_b32 {s_t0}, {s_wave}, 1\ns_lshl_b32 {s_t0}, {s_t0}, 14\nv_add_u32 {vRA0}, {s_t0}, {vL16}")
    A(f"s_and_b32 {s_t0}, {s_wave}, 1\ns_lshl_b32 {s_t0}, {s_t0}, 13\ns_add_u32 {s_t0}, {s_t0}, 32768\nv_add_u32 {vRW0}, {s_t0}, {vL16}")
    A(f"v_lshrrev_b32 {vT0}, 2, {vJ}\nv_lshlrev_b32 {vT0}, 3, {vT0}\nv_and_b32 {vT1}, 3, {vJ}\nv_add_u32 {vT0}, {vT0}, {vT1}")
    A(f"s_lshl_b32 {s_t0}, {s_mb}, 7\ns_lshr_b32 {s_t1}, {s_wave}, 1\ns_lshl_b32 {s_t1}, {s_t1}, 6\ns_add_u32 {s_t0}, {s_t0}, {s_t1}\nv_add_u32 {vT0}, {s_t0}, {vT0}\nv_lshlrev_b32 {vT0}, 12, {vT0}")
    A(f"s_lshl_b32 {s_t0}, {s_nb}, 7\ns_and_b32 {s_t1}, {s_wave}, 1\ns_lshl_b32 {s_t1}, {s_t1}, 6\ns_add_u32 {s_t0}, {s_t0}, {s_t1}\nv_lshl_add_u32 {vT0}, {vG}, 4, {vT0}\nv_add_u32 {vOut}, {s_t0}, {vT0}")
    A("L_ophase:")
    for m in range(4):
        for t in range(2):
            for r in range(4): A(f"v_mov_b32 {ACC[m][t][r]}, 0")
    A("L_oloop:")
    A(f"v_add_u32 {vRA}, {s_rd}, {vRA0}\nv_add_u32 {vRW}, {s_rd}, {vRW0}")
    A("s_waitcnt vmcnt(12)\ns_barrier")
    def reads(ks):
        p = ks & 1
        for t in range(2): A(f"ds_read_b128 {WF[p][t]}, {vRW} offset:{(ks*2+t)*1024}")
        for m in range(4): A(f"ds_read_b128 {AF[p][m]}, {vRA} offset:{m*4096 + ks*1024}")
    reads(0)
    for ks in range(4):
        p = ks & 1
        if ks < 3: reads(ks + 1)
        if ks < 3: issue_group(ks)
        A(f"s_waitcnt lgkmcnt({6 if ks < 3 else 0})")
        for m in range(4):
            for t in range(2): A(f"v_mfma_f32_16x16x32_bf16 {ACC[m][t]}, {WF[p][t]}, {AF[p][m]}, {ACC[m][t]}")
    issue_end("l")
    A(f"s_add_u32 {s_rd}, {s_rd}, {STG}\ns_cmp_eq_u32 {s_rd}, {RING}\ns_cselect_b32 {s_rd}, 0, {s_rd}")
    A(f"s_sub_u32 {s_cnt}, {s_cnt}, 1\ns_cmp_lg_u32 {s_cnt}, 0\ns_cbranch_scc1 L_oloop")
    A("s_nop 7")
    for m in range(4):
        for t in range(2):
            for hh in range(2): A(f"v_cvt_pk_bf16_f32 {PK[m][2*t+hh]}, {ACC[m][t][2*hh]}, {ACC[m][t][2*hh+1]}")
        A(f"s_add_u32 {s_t0}, {s_ocol}, {((m >> 1) * 32 + 4 * (m & 1)) * 4096}")
        A(f"buffer_store_dwordx4 {PK[m]}, {vOut}, {OUT}, {s_t0} offen")
    A(f"s_cmp_eq_u32 {s_ph}, 1\ns_cbranch_scc1 L_odone")
    A(f"s_mov_b32 {s_ph}, 1\ns_mov_b32 {s_cnt}, 8\ns_mov_b32 {s_ocol}, 2048\ns_branch L_ophase")
    A("L_odone:\ns_waitcnt vmcnt(0)")
    A("L_oend:\ns_endpgm")
    return A.finish() + kd(name, 128, 128)
```

```python
MB = 1 << 20
FLAG = 0
SLOT0 = 32768
SLOT_SZ = 0x68000
PART_OFF = 0
MEM_OFF = 0x20000
O_OFF = 0x30000
SC_OFF = 0x40000
PD = 4
KXF = 48 * MB
VXF = 64 * MB
QXF = 80 * MB
KVM = 96 * MB
QBF = 104 * MB
KBF = 108 * MB
VBF = 112 * MB
OAF = 116 * MB
OBF = 132 * MB
WOF = 136 * MB
WOBF = 144 * MB
WS_BYTES = 256 * MB
OOB = 0x80000000
DBGO = 200 * MB
```

```python
import sys
from gen_main import gen_main
def build(opt=None, only_main=False):
    opt = opt or {}
    hdr = ["; generated by gen/build.py", "; @launch kernel=main_kernel grid=(256,1,1) block=(256,1,1) lds=163840"]
    body = gen_main("main_kernel", opt)
    if not only_main:
        from gen_post import gen_attn, gen_out, LAUNCH
        hdr += LAUNCH
        body += gen_attn("attn_kernel", opt) + gen_out("out_kernel", opt)
    return "\n".join(hdr) + '\n.amdgcn_target "amdgcn-amd-amdhsa--gfx950"\n.text\n' + body
if __name__ == "__main__":
    open(sys.argv[1], "w").write(build(only_main=(len(sys.argv) > 2 and sys.argv[2] == "main")))
```

```python
from asmlib import Asm, Regs, R
from layout import *
import math

NSEG = 64
def kd(name, vgpr, accum, sgpr=102):
    return f'''.section .rodata,"a"
.p2align 6
.amdhsa_kernel {name}
  .amdhsa_next_free_vgpr {vgpr}
  .amdhsa_next_free_sgpr {sgpr}
  .amdhsa_accum_offset {accum}
  .amdhsa_group_segment_fixed_size 0
  .amdhsa_kernarg_size 104
  .amdhsa_user_sgpr_count 2
  .amdhsa_user_sgpr_kernarg_segment_ptr 1
  .amdhsa_system_sgpr_workgroup_id_x 1
.end_amdhsa_kernel
.text
'''

def srd(A, d, base, nbytes):
    A(f"s_mov_b32 s{d}, s{base}"); A(f"s_mov_b32 s{d+1}, s{base+1}")
    A(f"s_mov_b32 s{d+2}, {nbytes}"); A(f"s_mov_b32 s{d+3}, 0x20000")

P_AX, P_MEM0, P_WQ, P_WK, P_WV, P_WO, P_SEG, P_BX, P_WQKV, P_WOB, P_OUT, P_DBG, P_WS = [64 + 2 * i for i in range(13)]
WS = "s[4:7]"; DBG = "s[8:11]"; SW = "s[12:15]"; SX = "s[16:19]"

def load_kernargs(A):
    A("s_load_dwordx16 s[64:79], s[0:1], 0")
    A("s_load_dwordx8 s[80:87], s[0:1], 64")
    A("s_load_dwordx2 s[88:89], s[0:1], 96")

def gen_main(name, opt):
    A = Asm()
    PRE = opt.get('pre', (8, 1, 1, 1))
    STAMP = opt.get('stamp', False)
    A(f".globl {name}\n.p2align 8\n.type {name},@function\n{name}:")
    s_xcc, s_wave, s_role, s_mode, s_tick = "s3", "s20", "s21", "s22", "s23"
    s_t0, s_t1, s_t2, s_t3 = "s24", "s25", "s26", "s27"
    s_bud = "s28"
    A("s_cmp_ge_u32 s2, 256\ns_cbranch_scc1 L_end")
    load_kernargs(A)
    if STAMP: A("s_memrealtime s[94:95]")
    A(f"s_getreg_b32 {s_xcc}, hwreg(HW_REG_XCC_ID)\ns_and_b32 {s_xcc}, {s_xcc}, 7")
    V = Regs('v', 1, 256)
    vLane = V.alloc('lane'); vL16 = V.alloc('l16'); vG = V.alloc('g'); vJ = V.alloc('j'); vT0 = V.alloc('t0'); vT1 = V.alloc('t1'); vT2 = V.alloc('t2')
    vPoi = V.alloc('poi', 4)
    A(f"v_lshrrev_b32 {vT0}, 6, v0\nv_and_b32 {vLane}, 63, v0")
    A(f"v_readfirstlane_b32 {s_wave}, {vT0}")
    A(f"v_lshlrev_b32 {vL16}, 4, {vLane}\nv_lshrrev_b32 {vG}, 4, {vLane}\nv_and_b32 {vJ}, 15, {vLane}")
    for i in range(4): A(f"v_mov_b32 {vPoi[i]}, -1")
    A(f"s_mov_b32 {s_bud}, 400000")
    A("s_waitcnt lgkmcnt(0)")
    srd(A, 4, P_WS, WS_BYTES); srd(A, 8, P_DBG, 256)
    srd(A, 12, P_WQ, 8 * MB); srd(A, 16, P_AX, 4 * MB)
    A(f"s_lshl_b32 {s_t0}, s2, 13\nv_lshlrev_b32 {vT0}, 4, v0\nv_add_u32 {vT1}, 4096, {vT0}")
    A(f"buffer_store_dwordx4 {vPoi}, {vT0}, {WS}, {s_t0} offen sc1")
    A(f"buffer_store_dwordx4 {vPoi}, {vT1}, {WS}, {s_t0} offen sc1")
    A("s_waitcnt vmcnt(0)\ns_barrier")
    LDS_TICK = 163840 - 16
    vAt = V.alloc('at', 2)
    A(f"s_lshr_b32 {s_t0}, s2, 3\ns_lshl_b32 {s_t1}, 1, {s_t0}")
    A(f"v_mov_b32 {vAt[0]}, {s_t1}\nv_mov_b32 {vAt[1]}, 0x10000")
    A(f"s_lshl_b32 {s_t1}, {s_xcc}, 3\nv_mov_b32 {vT0}, {s_t1}\nv_mov_b32 {vT1}, {LDS_TICK}")
    A(f"s_lshl_b32 {s_role}, {s_xcc}, 5\ns_add_u32 {s_role}, {s_role}, {s_t0}\ns_mov_b32 {s_mode}, 0")
    A(f"s_cmp_lg_u32 {s_wave}, 3\ns_cbranch_scc1 L_reg_done")
    A("s_mov_b64 exec, 1")
    A(f"buffer_atomic_add_x2 {vAt}, {vT0}, {DBG}, 0 offen sc0 sc1")
    A("s_waitcnt vmcnt(0)")
    A(f"v_lshrrev_b32 {vAt[1]}, 16, {vAt[1]}\nds_write_b32 {vT1}, {vAt[1]}\ns_waitcnt lgkmcnt(0)")
    A("s_mov_b64 exec, -1")
    A("L_reg_done:")
    A("L_dispatch:")
    A(f"s_cmp_ge_u32 {s_role}, 128\ns_cbranch_scc1 L_grole")

    def confirm(tag):
        A(f"s_cmp_lg_u32 {s_mode}, 0\ns_cbranch_scc1 L_conf_ok_{tag}")
        A("s_waitcnt vmcnt(0) lgkmcnt(0)\ns_barrier")
        A(f"v_and_b32 {vT0}, 15, {vLane}\nv_lshlrev_b32 {vT0}, 2, {vT0}\nv_mov_b32 {vT1}, {LDS_TICK}")
        A(f"ds_read_b32 {vT2}, {vT1}")
        A(f"L_conf_poll_{tag}:")
        A(f"buffer_load_dword {vT1}, {vT0}, {DBG}, 0 offen sc1")
        A(f"s_sub_u32 {s_bud}, {s_bud}, 1\ns_cbranch_scc1 L_end")
        A("s_waitcnt vmcnt(0) lgkmcnt(0)")
        A(f"s_mov_b32 {s_t0}, 0\ns_mov_b32 {s_t1}, 0\ns_mov_b32 {s_t2}, -1")
        for x in range(8):
            A(f"v_readlane_b32 s30, {vT1}, {2*x}\nv_readlane_b32 s31, {vT1}, {2*x+1}")
            A(f"s_and_b32 {s_t2}, {s_t2}, s30")
            A(f"s_xor_b32 s30, s31, 0x200000\ns_or_b32 {s_t1}, {s_t1}, s30")
            A(f"s_lshr_b32 s31, s31, 16\ns_add_u32 {s_t0}, {s_t0}, s31")
        A(f"s_cmp_lt_u32 {s_t0}, 256\ns_cbranch_scc0 L_conf_all_{tag}")
        A(f"s_sleep 4\ns_branch L_conf_poll_{tag}")
        A(f"L_conf_all_{tag}:")
        A(f"v_readfirstlane_b32 {s_tick}, {vT2}")
        A(f"s_mov_b32 {s_mode}, 1")
        A(f"s_not_b32 {s_t2}, {s_t2}\ns_or_b32 {s_t2}, {s_t2}, {s_t1}\ns_cmp_eq_u32 {s_t2}, 0\ns_cbranch_scc1 L_conf_ok_{tag}")
        A(f"s_lshr_b32 {s_t1}, {s_t1}, 16")
        A(f"s_lshl_b32 {s_role}, {s_xcc}, 5\ns_add_u32 {s_role}, {s_role}, {s_tick}")
        A(f"s_cmp_eq_u32 {s_t1}, 0\ns_cbranch_scc1 L_dispatch")
        A(f"s_mov_b32 {s_role}, s2\ns_mov_b32 {s_mode}, 2\ns_branch L_dispatch")
        A(f"L_conf_ok_{tag}:")

    def dma_chunk(vOff, s_src, stride, nrows, lds_base_s, lds_off):
        for i in range(nrows // 16):
            A(f"s_add_u32 m0, {lds_base_s}, {lds_off + i * 1024}")
            A(f"buffer_load_dwordx4 {vOff}, {SW}, {s_src} offen lds")
            A(f"s_add_u32 {s_src}, {s_src}, {stride}")

    vbase = V.next
    s_x, s_c, s_cu, s_h, s_j = "s32", "s33", "s34", "s35", "s36"
    s_slot, s_kv, s_step, s_known, s_lds, s_src, s_kvm = "s37", "s38", "s39", "s40", "s41", "s42", "s43"
    s_c2 = "s44"
    A(f"s_lshr_b32 {s_x}, {s_role}, 5\ns_and_b32 {s_c}, {s_role}, 31\ns_lshr_b32 {s_h}, {s_role}, 2\ns_and_b32 {s_j}, {s_role}, 3")
    vW1 = V.alloc('w1'); vW2 = V.alloc('w2'); vTr = V.alloc('tr')
    A(f"v_lshrrev_b32 {vT0}, 2, {vLane}\nv_and_b32 {vT1}, 3, {vLane}\nv_lshlrev_b32 {vT1}, 4, {vT1}")
    A(f"v_lshl_add_u32 {vW1}, {vT0}, 13, {vT1}\nv_lshl_add_u32 {vW2}, {vT0}, 11, {vT1}")
    A(f"s_lshl_b32 {s_lds}, {s_wave}, 15")
    A(f"v_lshrrev_b32 {vT0}, 1, {vG}\nv_lshlrev_b32 {vT0}, 4, {vT0}\nv_and_b32 {vT1}, 1, {vG}\nv_lshl_add_u32 {vT0}, {vT1}, 2, {vT0}")
    A(f"v_bfe_u32 {vT1}, {vLane}, 2, 1\nv_add_u32 {vT0}, {vT0}, {vT1}\nv_bfe_u32 {vT1}, {vLane}, 3, 1\nv_lshl_add_u32 {vT0}, {vT1}, 3, {vT0}")
    A(f"v_lshlrev_b32 {vT0}, 6, {vT0}\nv_and_b32 {vT1}, 3, {vLane}\nv_lshl_add_u32 {vT0}, {vT1}, 3, {vT0}\nv_add_u32 {vTr}, {s_lds}, {vT0}")
    def r_issue(m):
        A(f"s_mov_b32 s12, s{[P_WQ,P_WK,P_WV,P_WO][m]}\ns_mov_b32 s13, s{[P_WQ,P_WK,P_WV,P_WO][m]+1}\ns_mov_b32 s14, {8*MB}")
        if m < 3:
            A(f"s_lshl_b32 {s_src}, {s_wave}, 21\ns_lshl_b32 {s_t0}, {s_role}, 6\ns_add_u32 {s_src}, {s_src}, {s_t0}")
            dma_chunk(vW1, s_src, 16 * 8192, 256, s_lds, (m & 1) * 16384)
        else:
            A(f"s_lshl_b32 {s_src}, {s_x}, 21\ns_lshl_b32 {s_t0}, {s_wave}, 19\ns_add_u32 {s_src}, {s_src}, {s_t0}\ns_lshl_b32 {s_t0}, {s_c}, 6\ns_add_u32 {s_src}, {s_src}, {s_t0}")
            dma_chunk(vW2, s_src, 16 * 2048, 256, s_lds, (m & 1) * 16384)
    def r_tr(m):
        for t in range(2):
            for kb in range(4):
                for p2 in range(4):
                    a0 = ((m * 2 + t) * 4 + kb) * 8 + 2 * p2
                    off = (m & 1) * 16384 + (64 * kb + 32 * (p2 >> 1) + 2 * (p2 & 1)) * 64 + 32 * t
                    A(f"ds_read_b64_tr_b16 a[{a0}:{a0+1}], {vTr} offset:{off}")
        A("s_waitcnt lgkmcnt(0)")
    r_issue(0); r_issue(1)
    A("s_waitcnt vmcnt(16)"); r_tr(0); r_issue(2)
    A("s_waitcnt vmcnt(16)"); r_tr(1); r_issue(3)
    A("s_waitcnt vmcnt(16)"); r_tr(2)
    A("s_waitcnt vmcnt(0)"); r_tr(3)
    confirm("r")
    A("s_barrier")
    def WQKV(T, kb): b = (T * 4 + kb) * 8; return f"a[{b}:{b+7}]"
    def WOr(t, kb): b = 192 + (t * 4 + kb) * 8; return f"a[{b}:{b+7}]"

    vPL = [V.alloc(f'pl{i}') for i in range(3)]; vPS = V.alloc('ps'); vMS = V.alloc('ms'); vGM = V.alloc('gm'); vGO = V.alloc('go')
    vS0 = V.alloc('s0'); vS2 = V.alloc('s2'); vSA = [V.alloc(f'sa{i}') for i in range(4)]; vSB = [V.alloc(f'sb{i}') for i in range(4)]
    vOS = V.alloc('os'); vKX = V.alloc('kx'); vVX = V.alloc('vx'); vFl = V.alloc('fl'); vKM = V.alloc('km'); vVM = V.alloc('vm')
    vPo = [V.alloc(f'po{i}') for i in range(5)]
    vQw = V.alloc('qw'); vKw = V.alloc('kw'); vQr = V.alloc('qr'); vVw = V.alloc('vw'); vVr = V.alloc('vr'); vPw = V.alloc('pw'); vPr = V.alloc('pr')
    vIdx = V.alloc('idx'); vChk = V.alloc('chk'); vOOB = V.alloc('oob')
    F = [V.alloc(f'f{i}', 4) for i in range(4)]
    ACC = [V.alloc(f'acc{i}', 4) for i in range(6)]
    T = [V.alloc(f'T{i}', 4) for i in range(8)]
    X = V.alloc('X', 4); KX = [V.alloc(f'KX{i}', 4) for i in range(2)]; VX = [V.alloc(f'VX{i}', 4) for i in range(2)]
    S = [V.alloc(f'S{i}', 4) for i in range(3)]
    VMo = [V.alloc(f'VMo{i}', 4) for i in range(2)]
    ONES = V.alloc('ones', 4); PB = V.alloc('PB', 4); PM = V.alloc('PM', 4)
    SB = [V.alloc(f'SB{i}') for i in range(4)]
    OWN = V.alloc('own', 4); OO = V.alloc('OO', 4)
    vM = V.alloc('m'); vM2 = V.alloc('m2')
    QK_B = 0; V_B = 9216; PW_B = 13312
    A(f"v_mov_b32 {vOOB}, {OOB}")
    A(f"s_lshl_b32 {s_t1}, {s_c}, 10")
    for i in range(3):
        A(f"s_xor_b32 {s_t0}, {s_x}, {i+1}\ns_lshl_b32 {s_t0}, {s_t0}, 15\ns_add_u32 {s_t0}, {s_t0}, {s_t1}\nv_add_u32 {vPL[i]}, {s_t0}, {vL16}")
    A(f"s_lshl_b32 {s_t0}, {s_role}, 10\ns_add_u32 {s_t1}, {s_t0}, {SLOT_SZ + PART_OFF}\nv_add_u32 {vPS}, {s_t1}, {vL16}")
    A(f"s_add_u32 {s_t1}, {s_t0}, {PD * SLOT_SZ + PART_OFF}\nv_add_u32 {vPo[0]}, {s_t1}, {vL16}")
    A(f"s_lshl_b32 {s_t0}, {s_role}, 9\ns_add_u32 {s_t1}, {s_t0}, {MEM_OFF}\nv_lshlrev_b32 {vT0}, 3, {vLane}\nv_add_u32 {vMS}, {s_t1}, {vT0}")
    A(f"v_and_b32 {vT0}, 31, {vLane}\nv_lshlrev_b32 {vT0}, 4, {vT0}\nv_lshrrev_b32 {vT1}, 5, {vLane}\nv_lshl_add_u32 {vT0}, {vT1}, 16, {vT0}")
    A(f"s_add_u32 {s_t1}, {s_t0}, {PD * SLOT_SZ + MEM_OFF}\nv_add_u32 {vPo[1]}, {s_t1}, {vT0}")
    A(f"v_lshl_add_u32 {vT0}, {vG}, 3, {vJ}\nv_lshlrev_b32 {vT0}, 4, {vT0}\ns_add_u32 {s_t1}, {s_t0}, {O_OFF}\nv_add_u32 {vT0}, {s_t1}, {vT0}")
    A(f"v_cmp_gt_u32 vcc, 8, {vJ}\nv_cndmask_b32 {vOS}, {vOOB}, {vT0}, vcc")
    A(f"s_lshl_b32 {s_t0}, {s_x}, 14\ns_lshl_b32 {s_t1}, {s_wave}, 12\ns_add_u32 {s_t0}, {s_t0}, {s_t1}\ns_add_u32 {s_t0}, {s_t0}, {MEM_OFF}")
    A(f"v_add_u32 {vGM}, {s_t0}, {vL16}\nv_add_u32 {vGO}, {O_OFF - MEM_OFF}, {vGM}")
    A(f"s_mul_i32 {s_t0}, {s_role}, 1280\ns_add_u32 {s_t0}, {s_t0}, {SC_OFF}")
    A(f"v_add_u32 {vT0}, {s_t0}, {vL16}\nv_cndmask_b32 {vS0}, {vOOB}, {vT0}, vcc")
    A(f"v_add_u32 {vPo[2]}, {PD * SLOT_SZ}, {vT0}")
    A(f"v_cmp_gt_u32 vcc, 16, {vLane}\nv_add_u32 {vT1}, {PD * SLOT_SZ + 1024}, {vT0}\nv_cndmask_b32 {vPo[3]}, {vOOB}, {vT1}, vcc")
    A(f"v_lshl_add_u32 {vT0}, {vG}, 3, {vJ}\nv_lshlrev_b32 {vT0}, 4, {vT0}\ns_add_u32 {s_t1}, {s_t0}, {1024 - 256}\nv_add_u32 {vT0}, {s_t1}, {vT0}")
    A(f"v_and_b32 {vT1}, 0x28, {vLane}\nv_cmp_eq_u32 vcc, 0x20, {vT1}\nv_cndmask_b32 {vS2}, {vOOB}, {vT0}, vcc")
    A(f"v_lshrrev_b32 {vT0}, 3, {vLane}")
    A(f"v_lshrrev_b32 {vT1}, 2, {vT0}\nv_lshlrev_b32 {vT1}, 7, {vT1}\nv_and_b32 {vT0}, 3, {vT0}\nv_lshl_add_u32 {vT1}, {vT0}, 2, {vT1}")
    A(f"v_and_b32 {vT0}, 7, {vLane}\nv_lshl_add_u32 {vT1}, {vT0}, 4, {vT1}\nv_add_u32 {vT1}, 1024, {vT1}")
    for i in range(4):
        A(f"s_xor_b32 {s_t0}, {s_role}, {i}\ns_mul_i32 {s_t0}, {s_t0}, 1280\ns_add_u32 {s_t0}, {s_t0}, {SC_OFF}")
        A(f"v_add_u32 {vSA[i]}, {s_t0}, {vL16}\nv_add_u32 {vSB[i]}, {s_t0}, {vT1}")
    A(f"s_lshl_b32 {s_t0}, {s_role}, 11\ns_add_u32 {s_t1}, {s_t0}, {KXF}\nv_add_u32 {vKX}, {s_t1}, {vL16}\ns_add_u32 {s_t1}, {s_t0}, {VXF}\nv_add_u32 {vVX}, {s_t1}, {vL16}")
    A(f"s_lshl_b32 {s_t0}, {s_role}, 6\nv_and_b32 {vT0}, 1, {vLane}\nv_lshlrev_b32 {vT0}, 13, {vT0}\nv_add_u32 {vFl}, {s_t0}, {vT0}")
    A(f"s_lshl_b32 {s_t0}, {s_role}, 10\ns_add_u32 {s_t0}, {s_t0}, {KVM}")
    A(f"v_lshl_add_u32 {vT0}, {vG}, 3, {vJ}\nv_lshlrev_b32 {vT0}, 4, {vT0}\ns_sub_u32 {s_t1}, {s_t0}, 128\nv_add_u32 {vT0}, {s_t1}, {vT0}")
    A(f"v_cmp_lt_u32 vcc, 7, {vJ}\nv_cndmask_b32 {vKM}, {vOOB}, {vT0}, vcc")
    A(f"s_add_u32 {s_t1}, {s_t0}, 512\nv_lshlrev_b32 {vT0}, 2, {vLane}\nv_add_u32 {vVM}, {s_t1}, {vT0}")
    A(f"v_mov_b32 {vT0}, 0x4444\nv_mov_b32 {vT1}, 0xeeee\nv_cndmask_b32 {vIdx}, {vT0}, {vT1}, vcc")
    A(f"v_and_b32 {vT0}, 1, {vG}\nv_mul_u32_u24 {vT0}, {4*144}, {vT0}\nv_lshrrev_b32 {vT1}, 1, {vG}\nv_lshl_add_u32 {vT2}, {vT1}, 4, {vJ}")
    A(f"v_lshl_add_u32 {vT0}, {vT2}, 2, {vT0}")
    A(f"s_mul_i32 {s_t0}, {s_wave}, 2304\nv_add_u32 {vQw}, {s_t0}, {vT0}\nv_add_u32 {vKw}, {8*144}, {vQw}")
    A(f"s_mul_i32 {s_t0}, {s_wave}, 1152\ns_add_u32 {s_t0}, {s_t0}, {PW_B}\nv_add_u32 {vPw}, {s_t0}, {vT0}")
    A(f"v_and_b32 {vT0}, 1, {vG}\nv_lshlrev_b32 {vT0}, 4, {vT0}\nv_lshl_add_u32 {vT0}, {vT2}, 5, {vT0}")
    A(f"s_lshl_b32 {s_t0}, {s_wave}, 10\ns_add_u32 {s_t0}, {s_t0}, {V_B}\nv_add_u32 {vVw}, {s_t0}, {vT0}")
    A(f"v_mul_u32_u24 {vT0}, 144, {vJ}\nv_lshl_add_u32 {vQr}, {vG}, 5, {vT0}")
    A(f"v_lshrrev_b32 {vT0}, 2, {vJ}\nv_lshlrev_b32 {vT0}, 3, {vT0}\nv_and_b32 {vT1}, 3, {vJ}\nv_add_u32 {vT0}, {vT0}, {vT1}\nv_lshlrev_b32 {vT0}, 5, {vT0}")
    A(f"v_lshl_add_u32 {vT0}, {vG}, 3, {vT0}\nv_add_u32 {vVr}, {V_B}, {vT0}")
    A(f"v_lshrrev_b32 {vT0}, 1, {vJ}\nv_mul_u32_u24 {vT0}, 144, {vT0}\nv_lshl_add_u32 {vT0}, {vG}, 5, {vT0}\nv_and_b32 {vT1}, 1, {vJ}\nv_lshl_add_u32 {vT0}, {vT1}, 4, {vT0}\nv_add_u32 {vPr}, {PW_B}, {vT0}")
    for i in range(4): A(f"v_mov_b32 {ONES[i]}, 0x3f803f80")
    for i in (1, 2, 3): A(f"v_mov_b32 {PM[i]}, 0\nv_mov_b32 {VMo[0][i]}, 0\nv_mov_b32 {VMo[1][i]}, 0")
    A(f"s_mov_b32 {s_slot}, {SLOT0}\ns_mov_b32 {s_kv}, 0\ns_mov_b32 {s_step}, 0\ns_mov_b32 {s_known}, 0\ns_mov_b32 {s_kvm}, 0")
    c2 = (128 ** -0.5) * math.log2(math.e)
    import struct
    A(f"s_mov_b32 {s_c2}, 0x{struct.unpack('<I', struct.pack('<f', c2))[0]:08x}")
    if STAMP:
        for r in range(46, 62): A(f"s_mov_b32 s{r}, 0")
        A("s_memrealtime s[90:91]")
    A(f"s_cmp_eq_u32 {s_mode}, 2\ns_cbranch_scc1 L_r_safe")

    def delay(n):
        for _ in range(n): A("s_nop 15")
    def chk4(regs_list, tgt):
        regs = [r for q in regs_list for r in ([q[i] for i in range(q.n)])]
        A(f"v_max3_u32 {vChk}, {regs[0]}, {regs[1]}, {regs[2]}"); regs = regs[3:]
        while len(regs) >= 2:
            A(f"v_max3_u32 {vChk}, {vChk}, {regs[0]}, {regs[1]}"); regs = regs[2:]
        if regs: A(f"v_max_u32 {vChk}, {vChk}, {regs[0]}")
        A(f"v_cmp_eq_u32 vcc, -1, {vChk}\ns_cbranch_vccnz {tgt}")
    def padd(d, a, b):
        for i in range(0, d.n, 2): A(f"v_pk_add_f32 {d[i:i+2]}, {a[i:i+2]}, {b[i:i+2]}")

    def r_loop(wk, md):
        IF = "" if md == 'f' else "sc1"
        tg = f"{md}{wk}"
        tails = []
        nst = [0]
        def st():
            if STAMP and md == 'f' and wk in (0, 1):
                k = nst[0]; nst[0] += 1
                A(f"s_memtime s[{64+2*k}:{65+2*k}]")
        def st_acc():
            if STAMP and md == 'f' and wk in (0, 1):
                A("s_waitcnt lgkmcnt(0)")
                for k in range(nst[0] - 1):
                    A(f"s_sub_u32 {s_t0}, s{66+2*k}, s{64+2*k}\ns_add_u32 s{46+k}, s{46+k}, {s_t0}")
        def st_dump():
            if STAMP and md == 'f' and wk in (0, 1):
                A("s_memrealtime s[92:93]\ns_waitcnt lgkmcnt(0)")
                A(f"s_mov_b32 s58, s94\ns_mov_b32 s59, s90\ns_mov_b32 s60, s92\ns_mov_b32 s61, {s_bud}")
                A(f"s_lshl_b32 {s_t0}, {s_role}, 7\ns_add_u32 {s_t0}, {s_t0}, {DBGO + wk * 64}\nv_mov_b32 {vT1}, 0\ns_mov_b64 exec, 1")
                for k in range(16):
                    A(f"v_mov_b32 {vT0}, s{46+k}\nbuffer_store_dword {vT0}, {vT1}, {WS}, {s_t0} offen offset:{4*k}\ns_nop 0")
                A("s_mov_b64 exec, -1")
        def gather(vAddr, nm, body):
            def issue(i0):
                for i in range(i0, 4): A(f"buffer_load_dwordx4 {F[i]}, {vAddr}, {WS}, {s_slot} offen offset:{i*1024} sc1")
            issue(0)
            for i in range(4):
                A(f"L_{nm}w{i}_{tg}:\ns_waitcnt vmcnt({3-i})")
                chk4([F[i]], f"L_{nm}r{i}_{tg}")
                body(i)
                def tail(i=i):
                    A(f"L_{nm}r{i}_{tg}:\ns_sub_u32 {s_bud}, {s_bud}, 1\ns_cbranch_scc1 L_end")
                    issue(i); A(f"s_branch L_{nm}w{i}_{tg}")
                tails.append(tail)
        if wk == 0:
            srd(A, 16, P_MEM0, 16384)
            A(f"v_lshrrev_b32 {vT0}, 1, {vJ}\nv_lshlrev_b32 {vT0}, 11, {vT0}\nv_lshl_add_u32 {vT0}, {vG}, 4, {vT0}\nv_and_b32 {vT1}, 1, {vJ}\nv_lshl_add_u32 {vT0}, {vT1}, 3, {vT0}")
            A(f"s_lshl_b32 {s_t0}, {s_c}, 6")
            A(f"buffer_load_dwordx2 {OO[0:2]}, {vT0}, {SX}, {s_t0} offen\ns_waitcnt vmcnt(0)")
            if STAMP and md == 'f': A("s_memtime s[64:65]\ns_memtime s[66:67]")
            A(f"s_branch L_s1st_{tg}")
        if wk == 3:
            A(f"L_pre_{tg}:")
            for k in range(PD - 1):
                A(f"v_subrev_u32 {vT0}, {(PD - k) * SLOT_SZ}, {vPo[1]}\nv_subrev_u32 {vT1}, {(PD - k) * SLOT_SZ}, {vPo[2]}")
                A(f"buffer_load_dwordx4 {T[0]}, {vT0}, {WS}, {s_slot} offen sc1")
                A(f"buffer_load_dwordx4 {T[1]}, {vT1}, {WS}, {s_slot} offen sc1")
                A(f"buffer_load_dwordx4 {T[2]}, {vT1}, {WS}, {s_slot} offen offset:1024 sc1")
            for i in (0, 1, 2, 3): A(f"v_subrev_u32 {vPo[i]}, {SLOT_SZ}, {vPo[i]}")
        A(f"L_loop_{tg}:")
        st()
        if wk == 0:
            delay(PRE[0])
            A(f"L_p1_{tg}:")
            for i in range(3): A(f"buffer_load_dwordx4 {T[i]}, {vPL[i]}, {WS}, {s_slot} offen sc1")
            A(f"s_sub_u32 {s_bud}, {s_bud}, 1\ns_cbranch_scc1 L_end")
            A("s_waitcnt vmcnt(0)")
            chk4(T[0:3], f"L_p1_{tg}")
            st()
            padd(T[0], T[0], OWN); padd(T[1], T[1], T[2]); padd(T[0], T[0], T[1])
            A(f"v_cvt_pk_bf16_f32 {OO[0]}, {T[0][0]}, {T[0][1]}\nv_cvt_pk_bf16_f32 {OO[1]}, {T[0][2]}, {T[0][3]}")
            A(f"L_s1st_{tg}:")
            A(f"v_min_u32 {OO[0]}, -2, {OO[0]}\nv_min_u32 {OO[1]}, -2, {OO[1]}")
            A(f"buffer_store_dwordx2 {OO[0:2]}, {vMS}, {WS}, {s_slot} offen {IF}")
        elif wk == 1:
            A(f"L_fl_{tg}:")
            A(f"s_cmp_gt_i32 {s_known}, {s_step}\ns_cbranch_scc1 L_flok_{tg}")
            A(f"buffer_load_dword {vT0}, {vFl}, {WS}, 0 offen sc1")
            A(f"s_sub_u32 {s_bud}, {s_bud}, 1\ns_cbranch_scc1 L_end")
            A("s_waitcnt vmcnt(0)")
            A(f"v_readlane_b32 {s_t0}, {vT0}, 0\nv_readlane_b32 {s_t1}, {vT0}, 1\ns_min_i32 {s_known}, {s_t0}, {s_t1}")
            A(f"s_branch L_fl_{tg}")
            A(f"L_flok_{tg}:")
            for u in range(2): A(f"buffer_load_dwordx4 {KX[u]}, {vKX}, {WS}, {s_kv} offen offset:{u*1024} sc1")
            for u in range(2): A(f"buffer_load_dwordx4 {VX[u]}, {vVX}, {WS}, {s_kv} offen offset:{u*1024} sc1")
        elif wk == 2:
            A(f"buffer_store_dwordx4 {vPoi}, {vPo[0]}, {WS}, {s_slot} offen sc1")
            for i in (1, 2, 3): A(f"buffer_store_dwordx4 {vPoi}, {vPo[i]}, {WS}, {s_slot} offen {IF}")
        elif wk == 3:
            for i in ((0, 1, 2, 3) if opt.get('ptpart', 1) else (1, 2, 3)): A(f"buffer_load_dwordx4 {T[i]}, {vPo[i]}, {WS}, {s_slot} offen sc1")
        for a in ACC:
            for i in range(4): A(f"v_mov_b32 {a[i]}, 0")
        A("s_barrier")
        st()
        delay(PRE[1])
        def body2(i):
            for Tt in range(4): A(f"v_smfmac_f32_16x16x64_bf16 {ACC[Tt]}, {F[i]}, {WQKV(Tt, i)}, {vIdx}")
        gather(vGM, "m", body2)
        st()
        vq = [(Tt, i) for i in range(4) for Tt in (4, 5)]
        def vs(n=1):
            for _ in range(n):
                Tt, i = vq.pop(0); A(f"v_smfmac_f32_16x16x64_bf16 {ACC[Tt]}, {F[i]}, {WQKV(Tt, i)}, {vIdx}")
        vs(2)
        for (a, b, vw) in ((0, 1, vQw), (2, 3, vKw)):
            for r in range(4): A(f"v_permlane32_swap_b32 {ACC[a][r]}, {ACC[b][r]}")
            vs()
            padd(ACC[a], ACC[a], ACC[b])
            A(f"ds_write2_b32 {vw}, {ACC[a][0]}, {ACC[a][1]} offset0:0 offset1:36")
            A(f"ds_write2_b32 {vw}, {ACC[a][2]}, {ACC[a][3]} offset0:72 offset1:108")
            vs()
        vs(2)
        A("s_waitcnt lgkmcnt(0)\ns_barrier")
        st()
        def vpart():
            for r in range(4): A(f"v_permlane32_swap_b32 {ACC[4][r]}, {ACC[5][r]}")
            padd(ACC[4], ACC[4], ACC[5])
            A(f"ds_write_b128 {vVw}, {ACC[4]}")
        if wk == 1:
            for w in range(4):
                for hh in range(2): A(f"ds_read_b128 {T[2*w+hh]}, {vQr} offset:{QK_B + w*2304 + hh*16}")
            A("s_waitcnt lgkmcnt(4)")
            padd(T[0], T[0], T[2]); padd(T[1], T[1], T[3])
            A("s_waitcnt lgkmcnt(0)")
            padd(T[4], T[4], T[6]); padd(T[5], T[5], T[7]); padd(T[0], T[0], T[4]); padd(T[1], T[1], T[5])
            for i in range(4): A(f"v_cvt_pk_bf16_f32 {X[i]}, {T[i>>1][2*(i&1)]}, {T[i>>1][2*(i&1)+1]}")
            A(f"v_mfma_f32_16x16x32_bf16 {S[0]}, {KX[0]}, {X}, 0")
            A(f"v_mfma_f32_16x16x32_bf16 {S[1]}, {KX[1]}, {X}, 0")
            A(f"v_mfma_f32_16x16x32_bf16 {S[2]}, {X}, {X}, 0")
            vpart()
            A(f"buffer_store_dwordx4 {S[0]}, {vS0}, {WS}, {s_slot} offen {IF}")
            A(f"buffer_store_dwordx4 {S[1]}, {vS0}, {WS}, {s_slot} offen offset:128 {IF}")
            A(f"buffer_store_dwordx4 {S[2]}, {vS2}, {WS}, {s_slot} offen {IF}")
            st()
        else:
            vpart()
        A("s_waitcnt lgkmcnt(0)\ns_barrier")
        st()
        if wk != 1:
            A(f"s_cmp_eq_u32 {s_step}, {NSEG-1}\ns_cbranch_scc1 L_last_{tg}")
        if wk == 1:
            for t in range(2):
                for w in range(4): A(f"ds_read_b64 {T[4+2*t+(w>>1)][2*(w&1):2*(w&1)+2]}, {vVr} offset:{w*1024 + t*128}")
            A("s_waitcnt lgkmcnt(0)")
            for t in range(2):
                padd(T[4+2*t], T[4+2*t], T[5+2*t])
                A(f"v_pk_add_f32 {T[4+2*t][0:2]}, {T[4+2*t][0:2]}, {T[4+2*t][2:4]}")
                A(f"v_cvt_pk_bf16_f32 {VMo[t][0]}, {T[4+2*t][0]}, {T[4+2*t][1]}")
            A(f"s_cmp_eq_u32 {s_step}, {NSEG-1}\ns_cbranch_scc1 L_last_{tg}")
            delay(PRE[2])
            A(f"L_p3_{tg}:")
            for i in (0, 1, 2, 3):
                A(f"buffer_load_dwordx4 {T[i]}, {vSA[i]}, {WS}, {s_slot} offen sc1")
                A(f"buffer_load_dword {SB[i]}, {vSB[i]}, {WS}, {s_slot} offen sc1")
            A(f"s_sub_u32 {s_bud}, {s_bud}, 1\ns_cbranch_scc1 L_end")
            A("s_waitcnt vmcnt(0)")
            chk4(T[0:4] + SB, f"L_p3_{tg}")
            st()
            padd(T[0], T[0], T[1]); padd(T[2], T[2], T[3])
            A(f"v_add_f32 {SB[0]}, {SB[0]}, {SB[1]}\nv_add_f32 {SB[2]}, {SB[2]}, {SB[3]}")
            padd(T[0], T[0], T[2]); A(f"v_add_f32 {SB[0]}, {SB[0]}, {SB[2]}")
            A(f"v_max3_f32 {vM}, {T[0][0]}, {T[0][1]}, {T[0][2]}\nv_max3_f32 {vM}, {vM}, {T[0][3]}, {SB[0]}")
            A(f"v_max_f32_dpp {vM}, {vM}, {vM} row_ror:8 row_mask:0xf bank_mask:0xf")
            A(f"v_mov_b32 {vM2}, {vM}\nv_permlane16_swap_b32 {vM}, {vM2}\nv_max_f32 {vM}, {vM}, {vM2}")
            A(f"v_mov_b32 {vM2}, {vM}\nv_permlane32_swap_b32 {vM}, {vM2}\nv_max_f32 {vM}, {vM}, {vM2}")
            A(f"v_mul_f32 {vM}, {s_c2}, {vM}")
            vals = [T[0][i] for i in range(4)] + [SB[0]]
            for v in vals: A(f"v_fma_f32 {v}, {v}, {s_c2}, -{vM}")
            for v in vals: A(f"v_exp_f32 {v}, {v}")
            A(f"v_cvt_pk_bf16_f32 {PB[0]}, {T[0][0]}, {T[0][1]}\nv_cvt_pk_bf16_f32 {PB[1]}, {T[0][2]}, {T[0][3]}")
            A(f"v_mov_b32_dpp {vM2}, {SB[0]} row_ror:8 row_mask:0xf bank_mask:0xf")
            A(f"v_mov_b32_dpp {PB[2]}, {PB[0]} row_ror:8 row_mask:0xf bank_mask:0xf")
            A(f"v_mov_b32_dpp {PB[3]}, {PB[1]} row_ror:8 row_mask:0xf bank_mask:0xf")
            A(f"v_cvt_pk_bf16_f32 {PM[0]}, {SB[0]}, {vM2}")
            A(f"v_mfma_f32_16x16x32_bf16 {S[2]}, {ONES}, {PB}, 0")
            A(f"v_mfma_f32_16x16x32_bf16 {S[2]}, {ONES}, {PM}, {S[2]}")
            for t in range(2):
                A(f"v_mfma_f32_16x16x32_bf16 {S[t]}, {VX[t]}, {PB}, 0")
                A(f"v_mfma_f32_16x16x32_bf16 {S[t]}, {VMo[t]}, {PM}, {S[t]}")
            A(f"v_rcp_f32 {vM}, {S[2][0]}")
            for t in range(2):
                for r in range(4): A(f"v_mul_f32 {S[t][r]}, {S[t][r]}, {vM}")
                for hh in range(2):
                    A(f"v_cvt_pk_bf16_f32 {OO[2*t+hh]}, {S[t][2*hh]}, {S[t][2*hh+1]}")
            for i in range(4): A(f"v_min_u32 {OO[i]}, -2, {OO[i]}")
            A(f"buffer_store_dwordx4 {OO}, {vOS}, {WS}, {s_slot} offen {IF}")
        for a in ACC[0:2]:
            for i in range(4): A(f"v_mov_b32 {a[i]}, 0")
        A("s_barrier")
        st()
        delay(PRE[3])
        def body4(i):
            for t in range(2): A(f"v_smfmac_f32_16x16x64_bf16 {ACC[t]}, {F[i]}, {WOr(t, i)}, {vIdx}")
        gather(vGO, "o", body4)
        st()
        for r in range(4): A(f"v_permlane32_swap_b32 {ACC[0][r]}, {ACC[1][r]}")
        padd(ACC[0], ACC[0], ACC[1])
        A(f"ds_write2_b32 {vPw}, {ACC[0][0]}, {ACC[0][1]} offset0:0 offset1:36")
        A(f"ds_write2_b32 {vPw}, {ACC[0][2]}, {ACC[0][3]} offset0:72 offset1:108")
        A("s_waitcnt lgkmcnt(0)\ns_barrier")
        st()
        def kvm_store():
            A(f"buffer_store_dwordx4 {X}, {vKM}, {WS}, {s_kvm} offen")
            A(f"buffer_store_dword {VMo[0][0]}, {vVM}, {WS}, {s_kvm} offen")
            A(f"buffer_store_dword {VMo[1][0]}, {vVM}, {WS}, {s_kvm} offen offset:256")
        if wk == 0:
            for w in range(4): A(f"ds_read_b128 {T[w]}, {vPr} offset:{w*1152}")
            A("s_waitcnt lgkmcnt(2)"); padd(T[0], T[0], T[1])
            A("s_waitcnt lgkmcnt(0)"); padd(T[2], T[2], T[3]); padd(OWN, T[0], T[2])
            for i in range(4): A(f"v_min_u32 {OWN[i]}, -2, {OWN[i]}")
            A(f"buffer_store_dwordx4 {OWN}, {vPS}, {WS}, {s_slot} offen sc1")
        if wk == 1: kvm_store()
        st(); st_acc()
        A(f"s_add_u32 {s_slot}, {s_slot}, {SLOT_SZ}\ns_add_u32 {s_kv}, {s_kv}, 0x40000\ns_add_u32 {s_kvm}, {s_kvm}, 0x20000\ns_add_u32 {s_step}, {s_step}, 1")
        A(f"s_branch L_loop_{tg}")
        A(f"L_last_{tg}:")
        if wk == 1: kvm_store()
        st_dump()
        A("s_branch L_end")
        for t in tails: t()

    for md in ('f', 's'):
        if md == 's': A("L_r_safe:")
        for wk in (1, 2, 3):
            A(f"s_cmp_eq_u32 {s_wave}, {wk}\ns_cbranch_scc1 L_{'pre' if wk == 3 else 'loop'}_{md}{wk}")
        for wk in (0, 1, 2, 3): r_loop(wk, md)

    A("L_grole:")
    V.next = vbase
    s_g, s_wstr, s_wcol, s_obase, s_ostr, s_type = "s32", "s33", "s34", "s35", "s36", "s37"
    s_blk, s_xsrc, s_osoff, s_gl, s_gsrc, s_xs, s_m0 = "s38", "s39", "s40", "s41", "s42", "s43", "s44"
    s_tb = "s45"; s_fl = "s46"
    vGW = V.alloc('gw'); vGTr = V.alloc('gtr'); vXq = [V.alloc(f'xq{q}') for q in range(4)]; vRB = [[V.alloc(f'rb{b}{q}') for q in range(4)] for b in range(2)]; vO = V.alloc('o'); vGF = V.alloc('gf'); vFv = V.alloc('fv'); vPf = V.alloc('pf'); vPfd = V.alloc('pfd')
    XF = [V.alloc(f'xf{i}', 4) for i in range(8)]
    GA = [[V.alloc(f'ga{s}{i}', 4) for i in range(4)] for s in range(2)]
    PK = [V.alloc(f'pk{i}', 4) for i in range(2)]
    A(f"s_sub_u32 {s_g}, {s_role}, 128")
    A(f"s_lshl_b32 {s_gl}, {s_wave}, 14\ns_add_u32 {s_gl}, {s_gl}, 65536")
    A(f"v_bfe_u32 {vT0}, {vLane}, 2, 2\nv_lshl_add_u32 {vT0}, {vG}, 3, {vT0}\nv_lshlrev_b32 {vT0}, 6, {vT0}\nv_and_b32 {vT1}, 3, {vLane}\nv_lshl_add_u32 {vT0}, {vT1}, 4, {vT0}\nv_add_u32 {vGTr}, {s_gl}, {vT0}")
    def g_voff():
        A(f"v_lshrrev_b32 {vT0}, 2, {vLane}\nv_mul_lo_u32 {vT0}, {vT0}, {s_wstr}\nv_and_b32 {vT1}, 3, {vLane}\nv_lshl_add_u32 {vGW}, {vT1}, 4, {vT0}")
        A(f"s_lshl_b32 {s_wstr}, {s_wstr}, 4")
    def g_wload(extra_first):
        dma_chunk(vGW, s_gsrc, s_wstr, 128, s_gl, 0)
        dma_chunk(vGW, s_gsrc, s_wstr, 128, s_gl, 8192)
        for ch in range(8):
            A(f"s_waitcnt vmcnt({8 if ch < 7 else 0})")
            for k4 in range(4):
                ks = ch * 4 + k4
                for t in range(2):
                    for hh in range(2):
                        a0 = (t * 32 + ks) * 4 + 2 * hh
                        A(f"ds_read_b64_tr_b16 a[{a0}:{a0+1}], {vGTr} offset:{(ch & 1) * 8192 + (32 * k4 + 4 * hh) * 64 + 8 * t}")
            A("s_waitcnt lgkmcnt(0)")
            if ch + 2 < 8: dma_chunk(vGW, s_gsrc, s_wstr, 128, s_gl, (ch & 1) * 8192)
    A(f"s_cmp_ge_u32 {s_g}, 120\ns_cbranch_scc1 L_trole")
    A(f"s_cmp_ge_u32 {s_g}, 96\ns_cbranch_scc1 L_gB")
    A(f"s_lshr_b32 {s_t0}, {s_g}, 5\ns_and_b32 {s_t1}, {s_g}, 31")
    A(f"s_mov_b32 s12, s{P_WK}\ns_mov_b32 s13, s{P_WK+1}\ns_mov_b32 {s_obase}, {KXF}\ns_mov_b32 {s_type}, 0")
    A(f"s_cmp_eq_u32 {s_t0}, 1\ns_cselect_b32 s12, s{P_WV}, s12\ns_cselect_b32 s13, s{P_WV+1}, s13\ns_cselect_b32 {s_obase}, {VXF}, {s_obase}\ns_cselect_b32 {s_type}, 1, 0")
    A(f"s_cmp_eq_u32 {s_t0}, 2\ns_cselect_b32 s12, s{P_WQ}, s12\ns_cselect_b32 s13, s{P_WQ+1}, s13\ns_cselect_b32 {s_obase}, {QXF}, {s_obase}")
    A(f"s_mov_b32 s14, {8*MB}\ns_mov_b32 {s_wstr}, 8192\ns_lshl_b32 {s_wcol}, {s_t1}, 8\ns_mov_b32 {s_ostr}, 0x40000")
    A(f"s_mov_b32 s16, s{P_AX}\ns_mov_b32 s17, s{P_AX+1}")
    A("s_branch L_gP")
    A("L_gB:")
    A(f"s_sub_u32 {s_t2}, {s_g}, 96\ns_lshr_b32 {s_t0}, {s_t2}, 3\ns_and_b32 {s_t1}, {s_t2}, 7")
    A(f"s_mov_b32 s12, s{P_WQKV}\ns_mov_b32 s13, s{P_WQKV+1}\ns_mov_b32 s14, {6*MB}\ns_mov_b32 {s_wstr}, 6144\ns_lshl_b32 {s_wcol}, {s_t2}, 8\ns_mov_b32 {s_ostr}, 0x10000")
    A(f"s_lshl_b32 {s_obase}, {s_t0}, 22\ns_add_u32 {s_obase}, {s_obase}, {QBF}")
    A(f"s_cmp_eq_u32 {s_t0}, 2\ns_cselect_b32 {s_type}, 1, 0")
    A(f"s_mov_b32 s16, s{P_BX}\ns_mov_b32 s17, s{P_BX+1}")
    A("L_gP:")
    A(f"s_mov_b32 s18, {4*MB}")
    A(f"s_lshl_b32 {s_t1}, {s_t1}, 2\ns_add_u32 {s_t1}, {s_t1}, {s_wave}\ns_lshl_b32 {s_t1}, {s_t1}, 11\ns_add_u32 {s_t1}, {s_t1}, {s_obase}\nv_add_u32 {vO}, {s_t1}, {vL16}")
    A(f"s_lshl_b32 {s_t1}, {s_g}, 2\ns_add_u32 {s_t1}, {s_t1}, {s_wave}\ns_lshl_b32 {s_t1}, {s_t1}, 6\nv_mov_b32 {vT0}, {s_t1}\nv_mov_b32 {vT1}, {OOB}")
    A(f"v_cmp_eq_u32 vcc, 0, {vLane}\nv_cndmask_b32 {vGF}, {vT1}, {vT0}, vcc")
    A(f"v_lshrrev_b32 {vT0}, 2, {vJ}\nv_lshlrev_b32 {vT0}, 3, {vT0}\nv_and_b32 {vT1}, 3, {vJ}\nv_add_u32 {vT0}, {vT0}, {vT1}\nv_lshlrev_b32 {vT0}, 10, {vT0}")
    A(f"v_xor_b32 {vT1}, {vG}, {vJ}")
    for q in range(4):
        A(f"v_xor_b32 {vT2}, {4*q}, {vT1}\nv_lshl_add_u32 {vRB[0][q]}, {vT2}, 4, {vT0}\nv_add_u32 {vRB[1][q]}, 65536, {vRB[0][q]}")
    A(f"s_lshl_b32 {s_t0}, {s_wave}, 6")
    for q in range(4):
        A(f"s_add_u32 {s_t1}, {s_t0}, {16*q}\nv_xor_b32 {vXq[q]}, {s_t1}, {vL16}")
    A(f"s_lshl_b32 {s_xsrc}, {s_wave}, 14")
    A(f"s_lshl_b32 {s_m0}, {s_wave}, 13")
    def x_dma(hh, r):
        A(f"s_add_u32 m0, {s_m0}, {(hh & 3) * 32768 + r * 1024}")
        A(f"s_add_u32 {s_xs}, {s_xsrc}, {(hh >> 1) * 65536 + (hh & 1) * 1024 + r * 2048}")
        A(f"buffer_load_dwordx4 {vXq[r & 3]}, {SX}, {s_xs} offen lds")
    for hh in range(2):
        for r in range(8): x_dma(hh, r)
    PFD = opt.get('pfd', 5)
    A(f"s_and_b32 {s_t0}, {s_role}, 7\ns_lshl_b32 {s_t0}, {s_t0}, 13\ns_lshl_b32 {s_t1}, {s_wave}, 11\ns_add_u32 {s_t0}, {s_t0}, {s_t1}\ns_add_u32 {s_t0}, {s_t0}, 65536\ns_sub_u32 {s_t0}, {s_t0}, {s_xsrc}")
    A(f"v_lshlrev_b32 {vT0}, 7, {vLane}\nv_add_u32 {vT0}, {s_t0}, {vT0}\nv_mov_b32 {vT1}, {OOB}\nv_cmp_gt_u32 vcc, 16, {vLane}\nv_cndmask_b32 {vPf}, {vT1}, {vT0}, vcc")
    for k in range(PFD):
        A(f"s_add_u32 {s_xs}, {s_xsrc}, {k * 65536}\nbuffer_load_dword {vPfd}, {vPf}, {SX}, {s_xs} offen")
    A(f"v_add_u32 {vPf}, {PFD * 65536}, {vPf}")
    g_voff()
    A(f"s_lshl_b32 {s_gsrc}, {s_wave}, 6\ns_add_u32 {s_gsrc}, {s_gsrc}, {s_wcol}")
    g_wload(0)
    confirm("g")
    if STAMP: A("s_memrealtime s[90:91]\ns_memtime s[96:97]")
    s_onext = "s47"
    A(f"s_mov_b32 {s_blk}, 0\ns_mov_b32 {s_osoff}, {OOB}\ns_mov_b32 {s_onext}, 0")
    A("s_waitcnt vmcnt(0)\ns_barrier")
    x_dma(2, 0); x_dma(2, 1)
    def xrd(dst, n):
        n &= 127
        hh, ks, u = n >> 5, (n >> 1) & 15, n & 1
        A(f"ds_read_b128 {dst}, {vRB[hh >> 1][ks & 3]} offset:{(hh & 1) * 32768 + (ks >> 2) * 256 + u * 4096}")
    for n in range(8): xrd(XF[n], n)
    A(f"s_cmp_eq_u32 {s_type}, 1\ns_cbranch_scc1 L_gl_N")
    def GW(t, ks): b = (t * 32 + ks) * 4; return f"a[{b}:{b+3}]"
    def g_loop(ty):
        def epi(acc, f):
            lo, hi = (acc[f * 2 + 0], acc[f * 2 + 1]) if ty == 'T' else (acc[0 * 2 + f], acc[1 * 2 + f])
            A(f"v_cvt_pk_bf16_f32 {PK[f][0]}, {lo[0]}, {lo[1]}\nv_cvt_pk_bf16_f32 {PK[f][1]}, {lo[2]}, {lo[3]}")
            A(f"v_cvt_pk_bf16_f32 {PK[f][2]}, {hi[0]}, {hi[1]}\nv_cvt_pk_bf16_f32 {PK[f][3]}, {hi[2]}, {hi[3]}")
            A(f"buffer_store_dwordx4 {PK[f]}, {vO}, {WS}, {s_osoff} offen offset:{f*1024} sc1")
            if f == 1: A(f"s_mov_b32 {s_osoff}, {s_onext}\ns_add_u32 {s_onext}, {s_onext}, {s_ostr}")
        A(f"L_gl_{ty}:")
        for hh in range(4):
            par = hh >> 1; acc = GA[par]
            for k in range(16):
                ks = (hh & 1) * 16 + k
                if k == 12: A("s_waitcnt vmcnt(10)\ns_barrier")
                A("s_waitcnt lgkmcnt(6)")
                for u in range(2):
                    n = hh * 32 + 2 * k + u
                    xf = XF[n % 8]
                    for t in range(2):
                        c = "0" if ks == 0 else str(acc[u * 2 + t])
                        if ty == 'T': A(f"v_mfma_f32_16x16x32_bf16 {acc[u*2+t]}, {GW(t, ks)}, {xf}, {c}")
                        else: A(f"v_mfma_f32_16x16x32_bf16 {acc[u*2+t]}, {xf}, {GW(t, ks)}, {c}")
                    xrd(xf, n + 8)
                    if u == 0 and (k & 1):
                        if k < 12: x_dma(hh + 2, 2 + (k >> 1))
                        else: x_dma(hh + 3, (k - 12) >> 1)
                if (hh & 1) == 0 and k in (2, 4): epi(GA[1 - par], (k >> 1) - 1)
                if (hh & 1) == 1 and k == 4:
                    A(f"s_waitcnt vmcnt(8)\nv_mov_b32 {vFv}, {s_blk}")
                    A(f"buffer_store_dword {vFv}, {vGF}, {WS}, 0 offen sc1")
                    A(f"s_add_u32 {s_xs}, {s_xsrc}, {par * 65536}\nbuffer_load_dword {vPfd}, {vPf}, {SX}, {s_xs} offen")
                    A(f"s_add_u32 {s_blk}, {s_blk}, 1")
        A(f"s_add_u32 {s_xsrc}, {s_xsrc}, 131072")
        A(f"s_cmp_lg_u32 {s_blk}, {NSEG}\ns_cbranch_scc1 L_gl_{ty}")
        A("s_nop 7")
        epi(GA[1], 0); epi(GA[1], 1)
        A(f"s_waitcnt vmcnt(0) lgkmcnt(0)\nv_mov_b32 {vFv}, {s_blk}")
        A(f"buffer_store_dword {vFv}, {vGF}, {WS}, 0 offen sc1")
        if STAMP:
            A("s_memrealtime s[92:93]\ns_memtime s[98:99]\ns_waitcnt lgkmcnt(0)\ns_sub_u32 s98, s98, s96")
            A(f"s_lshl_b32 {s_t0}, {s_role}, 7\ns_add_u32 {s_t0}, {s_t0}, {DBGO}\nv_mov_b32 {vT1}, 0\ns_mov_b64 exec, 1")
            for k, r in enumerate((94, 90, 92, 98)):
                A(f"v_mov_b32 {vT0}, s{r}\nbuffer_store_dword {vT0}, {vT1}, {WS}, {s_t0} offen offset:{48+4*k}\ns_nop 0")
        A("s_branch L_end")
    g_loop('T')
    g_loop('N')
    A("L_trole:")
    confirm("t")
    A(f"s_sub_u32 {s_tb}, {s_g}, 120\ns_mov_b32 {s_wstr}, 2048")
    g_voff()
    A("L_tl:")
    A(f"s_and_b32 {s_t0}, {s_tb}, 7\ns_lshr_b32 {s_t1}, {s_tb}, 3")
    A(f"s_lshl_b32 {s_t2}, {s_t0}, 2\ns_add_u32 {s_t2}, {s_t2}, {s_wave}")
    A(f"s_lshl_b32 {s_gsrc}, {s_t2}, 6")
    A(f"s_cmp_eq_u32 {s_t1}, 4\ns_cbranch_scc1 L_tB")
    A(f"s_mov_b32 s12, s{P_WO}\ns_mov_b32 s13, s{P_WO+1}\ns_mov_b32 s14, {8*MB}")
    A(f"s_lshl_b32 {s_t3}, {s_t1}, 21\ns_add_u32 {s_gsrc}, {s_gsrc}, {s_t3}")
    A(f"s_lshl_b32 {s_osoff}, {s_t2}, 18\ns_lshl_b32 {s_t3}, {s_t1}, 16\ns_add_u32 {s_osoff}, {s_osoff}, {s_t3}\ns_add_u32 {s_osoff}, {s_osoff}, {WOF}")
    A("s_branch L_tgo")
    A("L_tB:")
    A(f"s_mov_b32 s12, s{P_WOB}\ns_mov_b32 s13, s{P_WOB+1}\ns_mov_b32 s14, {2*MB}")
    A(f"s_lshl_b32 {s_osoff}, {s_t2}, 16\ns_add_u32 {s_osoff}, {s_osoff}, {WOBF}")
    A("L_tgo:")
    A("s_waitcnt vmcnt(0)")
    g_wload(0)
    for ks in range(32):
        for t in range(2):
            A(f"buffer_store_dwordx4 {GW(t, ks)}, {vL16}, {WS}, {s_osoff} offen offset:{((ks & 1) * 2 + t) * 1024}")
        if ks & 1: A(f"s_add_u32 {s_osoff}, {s_osoff}, 4096")
    A(f"s_add_u32 {s_tb}, {s_tb}, 8\ns_cmp_lt_u32 {s_tb}, 40\ns_cbranch_scc1 L_tl")
    A("L_end:\ns_endpgm")
    return A.finish() + kd(name, 512, 256)
```

```python
import re

REG_RE = re.compile(r'^(v|a|s)(?:(\d+)|\[(\d+):(\d+)\])$')

def parse_reg(tok):
    tok = tok.strip()
    neg = False
    if tok.startswith('-'): tok = tok[1:]
    if tok.startswith('abs(') or tok.startswith('|'):
        tok = tok.strip('|'); tok = tok.replace('abs(', '').rstrip(')')
    if tok == 'vcc': return [('s', 106), ('s', 107)]
    if tok == 'vcc_lo': return [('s', 106)]
    if tok == 'vcc_hi': return [('s', 107)]
    if tok == 'exec': return [('s', 126), ('s', 127)]
    if tok == 'm0': return [('s', 124)]
    m = REG_RE.match(tok)
    if not m: return []
    k = m.group(1)
    if m.group(2) is not None: return [(k, int(m.group(2)))]
    return [(k, i) for i in range(int(m.group(3)), int(m.group(4)) + 1)]

TRANS = ('v_exp_f32', 'v_log_f32', 'v_rcp_f32', 'v_rsq_f32', 'v_sqrt_f32', 'v_sin_f32', 'v_cos_f32', 'v_rcp_iflag_f32')

class Ins:
    def __init__(self, text):
        self.text = text
        t = text.split(';')[0].strip()
        self.label = None; self.op = None
        self.kind = 'other'; self.w = []; self.r = []; self.srcC = []; self.srcAB = []
        self.passes = 0; self.ws = 1; self.target = None
        self.dpp = False; self.store_data = []; self.wide_store = False
        if not t: self.kind = 'none'; self.ws = 0; return
        if t.endswith(':'): self.label = t[:-1]; self.kind = 'label'; self.ws = 0; return
        if t.startswith('.'): self.kind = 'none'; self.ws = 0; return
        parts = t.split(None, 1)
        op = parts[0]; self.op = op
        rest = parts[1] if len(parts) > 1 else ''
        ops = []; cur = ''; depth = 0
        for ch in rest:
            if ch in '[(': depth += 1
            if ch in '])': depth -= 1
            if ch == ',' and depth == 0: ops.append(cur.strip()); cur = ''
            else: cur += ch
        if cur.strip(): ops.append(cur.strip())
        mods = ''
        if ops:
            last = ops[-1].split(None, 1)
            if len(last) > 1: ops[-1] = last[0]; mods = last[1]
        self.mods = mods
        R = [parse_reg(o) for o in ops]
        if op == 's_nop':
            self.kind = 'nop'; self.ws = int(ops[0], 0) + 1; return
        if op.startswith('s_cbranch') or op == 's_branch':
            self.kind = 'branch'; self.target = ops[0]; return
        if op.startswith('v_mfma') or op.startswith('v_smfmac'):
            self.kind = 'mfma'
            if '32x32' in op: self.passes = 8
            elif '16x16' in op: self.passes = 4
            else: raise ValueError('unknown mfma ' + op)
            self.islots = 2 if '16x16x16' in op else self.passes
            self.w = R[0]; self.srcAB = R[1] + R[2]
            if op.startswith('v_smfmac'):
                self.srcC = R[0]; self.srcAB += R[3]
            else: self.srcC = R[3]
            self.r = self.srcAB + self.srcC
            return
        if op.startswith('v_'):
            self.kind = 'valu'
            self.dpp = ('_dpp' in op) or ('row_' in mods) or ('quad_perm' in mods)
            if op.startswith('v_permlane') and 'swap' in op:
                self.w = R[0] + R[1]; self.r = R[0] + R[1]
            elif op.startswith('v_cmpx'):
                self.w = R[0] + parse_reg('exec'); self.r = sum(R[1:], [])
            elif op.startswith('v_add_co') or op.startswith('v_sub_co') or op.startswith('v_addc_co') or op.startswith('v_subb_co'):
                self.w = R[0] + R[1]; self.r = sum(R[2:], [])
            else:
                self.w = R[0]; self.r = sum(R[1:], [])
                if op.startswith('v_fmac') or op.startswith('v_pk_fmac') or op.startswith('v_dot2c') or self.dpp or op.startswith('v_writelane'):
                    self.r = self.r + R[0]
                if op.startswith('v_cndmask') and len(ops) == 3: self.r += parse_reg('vcc')
            return
        if op.startswith('ds_'):
            self.kind = 'ds'
            if op.startswith('ds_read') or op.startswith('ds_bpermute') or op.startswith('ds_permute') or op.startswith('ds_swizzle') or '_rtn' in op:
                self.w = R[0]; self.r = sum(R[1:], [])
            else: self.r = sum(R, [])
            return
        if op.startswith('buffer_') or op.startswith('global_'):
            self.kind = 'vmem'
            if op in ('buffer_wbl2', 'buffer_inv'): return
            lds = re.search(r'\blds\b', mods) is not None
            if op.startswith('buffer_load'):
                if lds: self.r = sum(R, []) + parse_reg('m0'); self.ldsdma = True
                else: self.w = R[0]; self.r = sum(R[1:], [])
            elif op.startswith('buffer_store'):
                self.r = sum(R, []); self.store_data = R[0]; self.wide_store = op.endswith('x4') or op.endswith('x3')
            elif op.startswith('buffer_atomic'):
                self.r = sum(R, [])
                if 'sc0' in mods: self.w = R[0]
            else: raise ValueError('unhandled vmem ' + op)
            return
        if op.startswith('s_'):
            self.kind = 'salu'
            if op.startswith('s_cmp') or op in ('s_waitcnt', 's_barrier', 's_endpgm', 's_sleep', 's_setprio', 's_bitcmp1_b32', 's_bitcmp0_b32'):
                self.r = sum(R, [])
            else:
                self.w = R[0] if R else []; self.r = sum(R[1:], [])
                if 'saveexec' in op: self.w = self.w + parse_reg('exec')
            return
        raise ValueError('unknown instruction ' + text)

def inter(a, b):
    return bool(set(a) & set(b))

def required(p, c):
    n = 0
    if p.kind == 'valu':
        vw = [x for x in p.w if x[0] in 'va']; sw = [x for x in p.w if x[0] == 's']
        if c.kind == 'mfma' and inter(vw, c.r): n = max(n, 2)
        if c.kind == 'mfma' and inter(sw, parse_reg('exec')): n = max(n, 4)
        if c.kind == 'valu':
            if c.op.startswith('v_permlane') and inter(vw, c.r): n = max(n, 2)
            if c.dpp and inter(vw, c.r): n = max(n, 2)
            if (c.op.startswith('v_readlane') or c.op.startswith('v_readfirstlane')) and inter(vw, c.r): n = max(n, 1)
            if p.op in TRANS and inter(vw, c.r): n = max(n, 1)
            if inter(sw, c.r):
                n = max(n, 4 if (c.op.startswith('v_readlane') or c.op.startswith('v_writelane')) else 2)
            if inter(sw, parse_reg('exec')):
                if c.dpp: n = max(n, 5)
                if c.op.startswith('v_read') or c.op.startswith('v_writelane') or c.op.startswith('v_permlane'): n = max(n, 4)
        if c.kind == 'vmem' and inter(sw, c.r): n = max(n, 5)
        if c.kind == 'salu' and inter(sw, c.r): n = max(n, 1)
        if p.op in TRANS and c.kind in ('vmem', 'ds') and inter(vw, c.r): n = max(n, 1)
    if p.kind == 'mfma':
        full = {4: 8, 8: 12}[p.passes]; ovl = {4: 6, 8: 10}[p.passes]; war = {4: 3, 8: 7}[p.passes]
        if c.kind == 'mfma':
            if inter(p.w, c.srcAB): n = max(n, full)
            if inter(p.w, c.srcC):
                if not (p.w == c.srcC and p.op == c.op): n = max(n, ovl)
            elif inter(p.w, c.w): n = max(n, full)
        elif c.kind in ('valu', 'vmem', 'ds'):
            if inter(p.w, c.r) or inter(p.w, c.w): n = max(n, full)
            if c.kind == 'valu' and inter(p.srcC, c.w): n = max(n, war)
    if p.kind == 'vmem' and p.wide_store:
        if inter(p.store_data, c.w): n = max(n, 2 if c.kind in ('valu', 'mfma') else 1)
    if p.kind == 'salu' and inter(p.w, parse_reg('m0')):
        if getattr(c, 'ldsdma', False): n = max(n, 1)
    if p.kind == 'salu' and inter(p.w, parse_reg('exec')) and c.kind == 'valu' and c.dpp:
        n = max(n, 1)
    return n

WINDOW = 14

def states_between(seq):
    t = 0; last = None; lastp = 0
    prev = None
    for q in seq:
        if q.ws == 0: continue
        if prev is not None:
            t += prev.ws
            if q.kind == 'mfma' and last is not None: t = max(t, last + lastp)
        if q.kind == 'mfma': last = t; lastp = q.islots
        prev = q
    return t - 1

class Asm:
    def __init__(self):
        self.lines = []
    def __call__(self, text):
        for t in text.split('\n'):
            self.lines.append(t.strip() if not t.strip().startswith(';') else t)
    def finish(self):
        out = []
        for t in self.lines:
            c = Ins(t)
            if c.kind not in ('none', 'label', 'nop'):
                while True:
                    need = 0; dist = 0
                    for k in range(len(out) - 1, -1, -1):
                        p = out[k]
                        if p.kind == 'branch' and p.op == 's_branch': break
                        if p.op == 's_endpgm': break
                        if dist >= WINDOW: break
                        if p.ws:
                            r = required(p, c)
                            if r > dist:
                                have = states_between(out[k:] + [c])
                                if r > have: need = max(need, r - have)
                        dist += p.ws
                    if need == 0: break
                    if out and out[-1].kind == 'nop' and getattr(out[-1], 'auto', False) and out[-1].ws < 16:
                        n = Ins(f's_nop {out[-1].ws}'); n.auto = True; out[-1] = n
                    else:
                        n = Ins(f's_nop {need-1}' if c.kind != 'mfma' else 's_nop 0'); n.auto = True; out.append(n)
            out.append(c)
        labels = {c.label: i for i, c in enumerate(out) if c.kind == 'label'}
        for i, b in enumerate(out):
            if b.kind != 'branch': continue
            if b.target not in labels: raise ValueError('unknown label ' + b.target)
            ks = []; dist = 0
            for k in range(i, -1, -1):
                p = out[k]
                if p is not b and p.kind == 'branch' and p.op == 's_branch': break
                if dist >= WINDOW: break
                if p.ws: ks.append(k)
                dist += p.ws
            d2 = 0; j0 = labels[b.target]
            for j in range(j0, len(out)):
                c = out[j]
                if d2 >= WINDOW: break
                if c.kind not in ('none', 'label', 'nop'):
                    for k in ks:
                        r = required(out[k], c)
                        if r and r > states_between(out[k:i + 1] + out[j0:j + 1]):
                            raise ValueError(f'hazard across branch to {b.target}: "{out[k].text}" -> "{c.text}" needs {r}')
                if c.kind == 'branch' and c.op == 's_branch': break
                if c.op == 's_endpgm': break
                d2 += c.ws
        return '\n'.join(c.text for c in out) + '\n'

class Regs:
    def __init__(self, kind, start, limit):
        self.kind = kind; self.next = start; self.limit = limit; self.names = {}
    def alloc(self, name, n=1, align=None):
        if align is None: align = 1 if n == 1 else (2 if self.kind != 's' or n == 2 else 4)
        if self.kind in 'va' and n >= 4: align = max(align, 4) if align else 4
        self.next = (self.next + align - 1) // align * align
        base = self.next; self.next += n
        if self.next > self.limit: raise ValueError(f'out of {self.kind} regs at {name}')
        self.names[name] = (base, n)
        return R(self.kind, base, n)

class R:
    def __init__(self, kind, base, n): self.kind = kind; self.base = base; self.n = n
    def __str__(self):
        return f'{self.kind}{self.base}' if self.n == 1 else f'{self.kind}[{self.base}:{self.base+self.n-1}]'
    def __getitem__(self, i):
        if isinstance(i, slice):
            a = i.start or 0; b = i.stop if i.stop is not None else self.n
            assert 0 <= a < b <= self.n
            return R(self.kind, self.base + a, b - a)
        assert 0 <= i < self.n
        return R(self.kind, self.base + i, 1)
    def __format__(self, spec): return str(self)
```

```python
from asmlib import Asm, Regs, R
from layout import *
from tasks import Ctx, emit_t6, f32
import math
import gen_main as M
WS, SW, SX = M.WS, M.SW, M.SX
NSEG = 64

class VQ:
    def __init__(self): self.seq = []; self.pos = 0; self.rec = True
    def op(self, tag):
        if self.rec: self.seq.append(tag)
        self.pos += 1
    def younger(self, tag, nth=1):
        if self.rec: return 0
        n = len(self.seq); cnt = 0
        for d in range(1, 3 * n + 1):
            if self.seq[(self.pos - d) % n] == tag:
                nth -= 1
                if nth == 0: return cnt
            cnt += 1
        raise ValueError(tag)
    def second(self): self.rec = False; self.pos = 0

def emit_g(A0, V, opt, c):
    A = A0
    STAMP = opt.get('stamp', False)
    vLane, vL16, vG, vJ, vT0, vT1, vT2 = [c[k] for k in ('vLane', 'vL16', 'vG', 'vJ', 'vT0', 'vT1', 'vT2')]
    confirm, dma_chunk = c['confirm'], c['dma_chunk']
    s_wave, s_role, s_bud = "s20", "s21", "s28"
    s_t0, s_t1, s_t2, s_t3 = "s24", "s25", "s26", "s27"
    s_g, s_wstr, s_wcol, s_obase, s_ostr, s_type = "s32", "s33", "s34", "s35", "s36", "s37"
    s_blk, s_xsrc, s_osoff, s_gl, s_gsrc, s_xs, s_m0, s_onext, s_isq = "s38", "s39", "s40", "s41", "s42", "s43", "s44", "s47", "s45"
    P = M
    A("L_grole:")
    V.next = 8
    vGW = V.alloc('gw'); vGTr = V.alloc('gtr'); vXq = [V.alloc(f'xq{q}') for q in range(4)]
    vRB = [[V.alloc(f'rb{b}{q}') for q in range(4)] for b in range(2)]
    vO = V.alloc('o'); vGF = V.alloc('gf'); vFv = V.alloc('fv'); vPf = V.alloc('pf'); vPfd = V.alloc('pfd')
    vFa = V.alloc('fa'); vTF = V.alloc('tf'); vKf = V.alloc('kf'); vFd = V.alloc('fd', 4)
    C = Ctx(A, V, vLane, vL16, vG, vJ, vT0, vT1)
    tbase = V.next
    XF = [V.alloc(f'xf{i}', 4) for i in range(8)]
    GA = [[V.alloc(f'ga{s}{i}', 4) for i in range(4)] for s in range(2)]
    PK = [V.alloc(f'pk{i}', 4) for i in range(2)]
    PIN = [V.alloc(f'pin{i}', 4) for i in range(4)]
    def stamp(off):
        if STAMP:
            A("s_memrealtime s[100:101]\ns_waitcnt lgkmcnt(0)")
            A(f"s_lshl_b32 {s_t0}, {s_role}, 7\ns_add_u32 {s_t0}, {s_t0}, {DBGO}\nv_mov_b32 {vT1}, 0\ns_mov_b64 exec, 1")
            A(f"v_mov_b32 {vT0}, s100\nbuffer_store_dword {vT0}, {vT1}, {WS}, {s_t0} offen offset:{off}")
            A(f"v_mov_b32 {vT2}, s96\nbuffer_store_dword {vT2}, {vT1}, {WS}, {s_t0} offen offset:48\ns_mov_b64 exec, -1\ns_waitcnt vmcnt(0)")
    def budget(): A(f"s_sub_u32 {s_bud}, {s_bud}, 1\ns_cbranch_scc1 L_end")
    def lane0_addr(dst, s_addr):
        A(f"v_mov_b32 {vT0}, {s_addr}\nv_mov_b32 {vT1}, {OOB}\nv_cmp_eq_u32 vcc, 0, {vLane}\nv_cndmask_b32 {dst}, {vT1}, {vT0}, vcc")
    A(f"s_sub_u32 {s_g}, {s_role}, 128")
    for r in (vFa, vTF, vKf): A(f"v_mov_b32 {r}, {OOB}")
    A(f"s_cmp_ge_u32 {s_g}, 120\ns_cbranch_scc1 L_b2role")
    A(f"s_lshl_b32 {s_gl}, {s_wave}, 14\ns_add_u32 {s_gl}, {s_gl}, 65536")
    A(f"v_bfe_u32 {vT0}, {vLane}, 2, 2\nv_lshl_add_u32 {vT0}, {vG}, 3, {vT0}\nv_lshlrev_b32 {vT0}, 6, {vT0}\nv_and_b32 {vT1}, 3, {vLane}\nv_lshl_add_u32 {vT0}, {vT1}, 4, {vT0}\nv_add_u32 {vGTr}, {s_gl}, {vT0}")
    def g_voff():
        A(f"v_lshrrev_b32 {vT0}, 2, {vLane}\nv_mul_lo_u32 {vT0}, {vT0}, {s_wstr}\nv_and_b32 {vT1}, 3, {vLane}\nv_lshl_add_u32 {vGW}, {vT1}, 4, {vT0}")
        A(f"s_lshl_b32 {s_wstr}, {s_wstr}, 4")
    def g_wload():
        dma_chunk(vGW, s_gsrc, s_wstr, 128, s_gl, 0)
        dma_chunk(vGW, s_gsrc, s_wstr, 128, s_gl, 8192)
        for ch in range(8):
            A(f"s_waitcnt vmcnt({8 if ch < 7 else 0})")
            for k4 in range(4):
                ks = ch * 4 + k4
                for t in range(2):
                    for hh in range(2):
                        a0 = (t * 32 + ks) * 4 + 2 * hh
                        A(f"ds_read_b64_tr_b16 a[{a0}:{a0+1}], {vGTr} offset:{(ch & 1) * 8192 + (32 * k4 + 4 * hh) * 64 + 8 * t}")
            A("s_waitcnt lgkmcnt(0)")
            if ch + 2 < 8: dma_chunk(vGW, s_gsrc, s_wstr, 128, s_gl, (ch & 1) * 8192)
    A(f"s_mov_b32 {s_isq}, 0")
    A(f"s_cmp_ge_u32 {s_g}, 96\ns_cbranch_scc1 L_gB")
    A(f"s_lshr_b32 {s_t0}, {s_g}, 5\ns_and_b32 {s_t1}, {s_g}, 31")
    A(f"s_mov_b32 s12, s{P.P_WK}\ns_mov_b32 s13, s{P.P_WK+1}\ns_mov_b32 {s_obase}, {KXF}\ns_mov_b32 {s_type}, 0")
    A(f"s_cmp_eq_u32 {s_t0}, 1\ns_cselect_b32 s12, s{P.P_WV}, s12\ns_cselect_b32 s13, s{P.P_WV+1}, s13\ns_cselect_b32 {s_obase}, {VXF}, {s_obase}\ns_cselect_b32 {s_type}, 1, 0")
    A(f"s_cmp_eq_u32 {s_t0}, 2\ns_cselect_b32 s12, s{P.P_WQ}, s12\ns_cselect_b32 s13, s{P.P_WQ+1}, s13\ns_cselect_b32 {s_obase}, {QXF}, {s_obase}\ns_cselect_b32 {s_isq}, 1, 0")
    A(f"s_mov_b32 s14, {8*MB}\ns_mov_b32 {s_wstr}, 8192\ns_lshl_b32 {s_wcol}, {s_t1}, 8\ns_mov_b32 {s_ostr}, 0x40000")
    A(f"s_mov_b32 s16, s{P.P_AX}\ns_mov_b32 s17, s{P.P_AX+1}")
    A("s_branch L_gP")
    A("L_gB:")
    A(f"s_sub_u32 {s_t2}, {s_g}, 96\ns_lshr_b32 {s_t0}, {s_t2}, 3\ns_and_b32 {s_t1}, {s_t2}, 7")
    A(f"s_mov_b32 s12, s{P.P_WQKV}\ns_mov_b32 s13, s{P.P_WQKV+1}\ns_mov_b32 s14, {6*MB}\ns_mov_b32 {s_wstr}, 6144\ns_lshl_b32 {s_wcol}, {s_t2}, 8\ns_mov_b32 {s_ostr}, 0x10000")
    A(f"s_lshl_b32 {s_obase}, {s_t0}, 22\ns_add_u32 {s_obase}, {s_obase}, {QBF}")
    A(f"s_cmp_eq_u32 {s_t0}, 2\ns_cselect_b32 {s_type}, 1, 0")
    A(f"s_mov_b32 s16, s{P.P_BX}\ns_mov_b32 s17, s{P.P_BX+1}")
    A("L_gP:")
    A(f"s_mov_b32 s18, {4*MB}")
    A(f"s_lshl_b32 {s_t1}, {s_t1}, 2\ns_add_u32 {s_t1}, {s_t1}, {s_wave}\ns_lshl_b32 {s_t1}, {s_t1}, 11\ns_add_u32 {s_t1}, {s_t1}, {s_obase}\nv_add_u32 {vO}, {s_t1}, {vL16}")
    A(f"s_lshl_b32 {s_t1}, {s_g}, 2\ns_add_u32 {s_t1}, {s_t1}, {s_wave}\ns_lshl_b32 {s_t1}, {s_t1}, 6")
    lane0_addr(vGF, s_t1)
    A(f"v_lshrrev_b32 {vT0}, 2, {vJ}\nv_lshlrev_b32 {vT0}, 3, {vT0}\nv_and_b32 {vT1}, 3, {vJ}\nv_add_u32 {vT0}, {vT0}, {vT1}\nv_lshlrev_b32 {vT0}, 10, {vT0}")
    A(f"v_xor_b32 {vT1}, {vG}, {vJ}")
    for q in range(4):
        A(f"v_xor_b32 {vT2}, {4*q}, {vT1}\nv_lshl_add_u32 {vRB[0][q]}, {vT2}, 4, {vT0}\nv_add_u32 {vRB[1][q]}, 65536, {vRB[0][q]}")
    A(f"s_lshl_b32 {s_t0}, {s_wave}, 6")
    for q in range(4):
        A(f"s_add_u32 {s_t1}, {s_t0}, {16*q}\nv_xor_b32 {vXq[q]}, {s_t1}, {vL16}")
    A(f"s_lshl_b32 {s_xsrc}, {s_wave}, 14")
    A(f"s_lshl_b32 {s_m0}, {s_wave}, 13")
    def x_dma(A, hh, r):
        A(f"s_add_u32 m0, {s_m0}, {(hh & 3) * 32768 + r * 1024}")
        A(f"s_add_u32 {s_xs}, {s_xsrc}, {(hh >> 1) * 65536 + (hh & 1) * 1024 + r * 2048}")
        A(f"buffer_load_dwordx4 {vXq[r & 3]}, {SX}, {s_xs} offen lds")
    def xrd(A, dst, n):
        n &= 127
        hh, ks, u = n >> 5, (n >> 1) & 15, n & 1
        A(f"ds_read_b128 {dst}, {vRB[hh >> 1][ks & 3]} offset:{(hh & 1) * 32768 + (ks >> 2) * 256 + u * 4096}")
    for hh in range(2):
        for r in range(8): x_dma(A, hh, r)
    PFD = opt.get('pfd', 5)
    A(f"s_and_b32 {s_t0}, {s_role}, 7\ns_lshl_b32 {s_t0}, {s_t0}, 13\ns_lshl_b32 {s_t1}, {s_wave}, 11\ns_add_u32 {s_t0}, {s_t0}, {s_t1}\ns_add_u32 {s_t0}, {s_t0}, 65536\ns_sub_u32 {s_t0}, {s_t0}, {s_xsrc}")
    A(f"v_lshlrev_b32 {vT0}, 7, {vLane}\nv_add_u32 {vT0}, {s_t0}, {vT0}\nv_mov_b32 {vT1}, {OOB}\nv_cmp_gt_u32 vcc, 16, {vLane}\nv_cndmask_b32 {vPf}, {vT1}, {vT0}, vcc")
    for k in range(PFD):
        A(f"s_add_u32 {s_xs}, {s_xsrc}, {k * 65536}\nbuffer_load_dword {vPfd}, {vPf}, {SX}, {s_xs} offen")
    A(f"v_add_u32 {vPf}, {PFD * 65536}, {vPf}")
    g_voff()
    A(f"s_lshl_b32 {s_gsrc}, {s_wave}, 6\ns_add_u32 {s_gsrc}, {s_gsrc}, {s_wcol}")
    g_wload()
    confirm("g")
    stamp(52)
    A(f"s_mov_b32 {s_blk}, 0\ns_mov_b32 {s_osoff}, {OOB}\ns_mov_b32 {s_onext}, 0")
    s_task, s_tgt, s_rk, s_kvd = "s48", "s49", "s50", "s51"
    A(f"s_cmp_eq_u32 {s_isq}, 0\ns_cbranch_scc1 L_noq")
    C.setup()
    A(f"s_and_b32 {s_t2}, {s_g}, 31\ns_lshl_b32 {s_t1}, {s_t2}, 7\ns_add_u32 {s_t1}, {s_t1}, {FLAGR}\nv_mov_b32 {vFa}, {s_t1}")
    A(f"s_lshl_b32 {s_t0}, {s_t2}, 4\ns_lshl_b32 {s_t1}, {s_wave}, 2\ns_add_u32 {s_t0}, {s_t0}, {s_t1}\ns_add_u32 {s_t0}, {s_t0}, {FLAGT}")
    lane0_addr(vTF, s_t0)
    A(f"s_lshl_b32 {s_task}, {s_wave}, 5\ns_add_u32 {s_task}, {s_task}, {s_t2}\ns_add_u32 {s_tgt}, {s_wave}, 1\ns_mov_b32 {s_rk}, 0")
    A(f"v_bfe_u32 {vT0}, {vLane}, 2, 1\nv_lshlrev_b32 {vT0}, 13, {vT0}\nv_and_b32 {vT1}, 3, {vLane}\nv_lshl_add_u32 {vT0}, {vT1}, 6, {vT0}\ns_lshl_b32 {s_t0}, {s_t2}, 8\nv_add_u32 {vKf}, {s_t0}, {vT0}\ns_mov_b32 {s_kvd}, 0")
    A("L_noq:")
    A("s_waitcnt vmcnt(0)\ns_barrier")
    x_dma(A, 2, 0); x_dma(A, 2, 1)
    A("L_grd:")
    for n in range(8): xrd(A, XF[n], n)
    A(f"s_cmp_eq_u32 {s_type}, 1\ns_cbranch_scc1 L_gl_N")
    def GW(t, ks): b = (t * 32 + ks) * 4; return f"a[{b}:{b+3}]"

    def stream_body(A, q, ty, dma, rd, hook):
        for hh in range(4):
            par = hh >> 1; acc = GA[par]
            for k in range(16):
                ks = (hh & 1) * 16 + k
                hook(hh, k, 'pre')
                if k == 12: A(f"s_waitcnt vmcnt({q.younger(f'd{(hh + 1) & 3}')})\ns_barrier")
                A("s_waitcnt lgkmcnt(6)")
                for u in range(2):
                    n = hh * 32 + 2 * k + u
                    xf = XF[n % 8]
                    for t in range(2):
                        cc = "0" if ks == 0 else str(acc[u * 2 + t])
                        if ty == 'T': A(f"v_mfma_f32_16x16x32_bf16 {acc[u*2+t]}, {GW(t, ks)}, {xf}, {cc}")
                        else: A(f"v_mfma_f32_16x16x32_bf16 {acc[u*2+t]}, {xf}, {GW(t, ks)}, {cc}")
                    rd(A, xf, n + 8)
                    if u == 0 and (k & 1):
                        if k < 12: dma(A, hh + 2, 2 + (k >> 1)); q.op(f'd{(hh + 2) & 3}')
                        else: dma(A, hh + 3, (k - 12) >> 1); q.op(f'd{(hh + 3) & 3}')
                hook(hh, k, 'post')
    def two_pass(emit):
        q = VQ(); emit(Asm(), q); q.second(); emit(A, q)

    def pack(A, dst, lo, hi):
        A(f"v_cvt_pk_bf16_f32 {dst[0]}, {lo[0]}, {lo[1]}\nv_cvt_pk_bf16_f32 {dst[1]}, {lo[2]}, {lo[3]}")
        A(f"v_cvt_pk_bf16_f32 {dst[2]}, {hi[0]}, {hi[1]}\nv_cvt_pk_bf16_f32 {dst[3]}, {hi[2]}, {hi[3]}")

    def g_loop(ty):
        def epi(A, acc, f, adv=True):
            lo, hi = (acc[f * 2 + 0], acc[f * 2 + 1]) if ty == 'T' else (acc[0 * 2 + f], acc[1 * 2 + f])
            pack(A, PK[f], lo, hi)
            A(f"buffer_store_dwordx4 {PK[f]}, {vO}, {WS}, {s_osoff} offen offset:{f*1024} sc1")
            if f == 1 and adv: A(f"s_mov_b32 {s_osoff}, {s_onext}\ns_add_u32 {s_onext}, {s_onext}, {s_ostr}")
        def emit(A, q):
            def hook(hh, k, ph):
                if ph != 'post': return
                par = hh >> 1
                if (hh & 1) == 0 and k in (2, 4): epi(A, GA[1 - par], (k >> 1) - 1); q.op('st')
                if (hh & 1) == 1 and k == 4:
                    A(f"s_waitcnt vmcnt({q.younger('st')})\nv_mov_b32 {vFv}, {s_blk}")
                    A(f"buffer_store_dword {vFv}, {vGF}, {WS}, 0 offen sc1"); q.op('fl')
                    A(f"s_add_u32 {s_xs}, {s_xsrc}, {par * 65536}\nbuffer_load_dword {vPfd}, {vPf}, {SX}, {s_xs} offen"); q.op('pf')
                    A(f"s_add_u32 {s_blk}, {s_blk}, 1")
            stream_body(A, q, ty, x_dma, xrd, hook)
        A(f"L_gl_{ty}:")
        two_pass(emit)
        A(f"s_add_u32 {s_xsrc}, {s_xsrc}, 131072")
        if ty == 'T': A(f"s_cmp_eq_u32 {s_isq}, 1\ns_cbranch_scc1 L_qhook")
        A(f"s_cmp_lg_u32 {s_blk}, {NSEG}\ns_cbranch_scc1 L_gl_{ty}")
        A("s_nop 7")
        epi(A, GA[1], 0); epi(A, GA[1], 1)
        A(f"s_waitcnt vmcnt(0) lgkmcnt(0)\nv_mov_b32 {vFv}, {s_blk}")
        A(f"buffer_store_dword {vFv}, {vGF}, {WS}, 0 offen sc1")
        stamp(56)
        A("s_branch L_fg")
        if ty == 'T':
            A("L_qhook:")
            A(f"s_and_b32 {s_t0}, {s_blk}, 3\ns_cmp_lg_u32 {s_t0}, 0\ns_cbranch_scc1 L_gl_T")
            A(f"s_cmp_eq_u32 {s_blk}, 4\ns_cbranch_scc1 L_gl_T")
            A("s_nop 7")
            epi(A, GA[1], 0, False); epi(A, GA[1], 1, False)
            A(f"s_mov_b32 {s_osoff}, {OOB}")
            A("s_waitcnt vmcnt(0) lgkmcnt(0)\ns_barrier")
            A("L_t6r:")
            V.next = tbase
            def wait_kv():
                A(f"s_cmp_eq_u32 {s_kvd}, 1\ns_cbranch_scc1 L_wk_done\ns_branch L_wk_go")
                A("L_wk:\ns_sleep 16\nL_wk_go:")
                A(f"buffer_load_dword {vFd[0]}, {vKf}, {WS}, 0 offen sc1")
                budget()
                A(f"s_waitcnt vmcnt(0)\nv_cmp_gt_i32 vcc, {s_tgt}, {vFd[0]}\ns_cbranch_vccnz L_wk")
                A(f"v_cmp_gt_i32 vcc, {NSEG}, {vFd[0]}\ns_cbranch_vccnz L_wk_done\ns_mov_b32 {s_kvd}, 1")
                A("L_wk_done:")
            def wait_r():
                A(f"s_cmp_ge_i32 {s_rk}, {s_tgt}\ns_cbranch_scc1 L_wr_done\ns_branch L_wr_go")
                A(f"L_wr:\ns_sleep 4\ns_add_u32 {s_t0}, {s_rk}, 2\ns_cmp_ge_i32 {s_t0}, {s_tgt}\ns_cbranch_scc1 L_wr_go\ns_sleep 40")
                A("L_wr_go:")
                A(f"buffer_load_dwordx4 {vFd}, {vFa}, {WS}, 0 offen sc1")
                budget()
                A("s_waitcnt vmcnt(0)")
                A(f"v_min_i32 {vFd[0]}, {vFd[0]}, {vFd[1]}\nv_min3_i32 {vFd[0]}, {vFd[0]}, {vFd[2]}, {vFd[3]}\nv_readfirstlane_b32 {s_rk}, {vFd[0]}")
                A(f"s_cmp_ge_i32 {s_rk}, {s_tgt}\ns_cbranch_scc0 L_wr")
                A("L_wr_done:")
            emit_t6(C, s_task, "sc1", wait_r, wait_kv)
            A(f"s_add_u32 {s_t0}, {s_tgt}, 3\nv_mov_b32 {vFv}, {s_t0}\ns_waitcnt vmcnt(0)")
            A(f"buffer_store_dword {vFv}, {vTF}, {WS}, 0 offen sc1")
            A(f"s_add_u32 {s_task}, {s_task}, 128\ns_add_u32 {s_tgt}, {s_tgt}, 4")
            A(f"s_cmp_lg_u32 {s_blk}, {NSEG}\ns_cbranch_scc1 L_grd")
            A(f"s_cmp_le_u32 {s_tgt}, {NSEG}\ns_cbranch_scc1 L_t6r")
            stamp(44)
            A("s_branch L_end")
    g_loop('T')
    g_loop('N')

    A("L_fg:")
    V.next = PIN[3].base + 4
    M.load_kernargs(A); A("s_waitcnt lgkmcnt(0)")
    s_set, s_kc, s_ng, s_nblk, s_clamp, s_tin = "s48", "s49", "s50", "s51", "s46", "s45"
    s_inb = ["s52", "s53", "s54", "s55"]; s_istr2 = "s56"
    s_pin, s_pstr, s_pout, s_poutn, s_out, s_outn, s_outstr = "s57", "s58", "s59", "s60", "s61", "s62", "s63"
    vTg, vTs, vFl, vPa, vOa, vOb = vXq[0], vXq[1], vXq[2], vXq[3], vPf, vPfd
    vR0, vR1 = vRB[0][0], vRB[1][0]
    OUT = "s[16:19]"
    A(f"s_and_b32 {s_ng}, {s_g}, 7\ns_mov_b32 {s_wstr}, 2048")
    A(f"s_mov_b32 s16, s{P.P_OUT}\ns_mov_b32 s17, s{P.P_OUT+1}\ns_mov_b32 s18, {8*MB}")
    A(f"v_and_b32 {vT2}, 31, {vLane}\nv_lshlrev_b32 {vT2}, 2, {vT2}")
    A(f"s_lshr_b32 {s_t2}, {s_wave}, 1\ns_and_b32 {s_t3}, {s_wave}, 1\ns_lshl_b32 {s_t3}, {s_t3}, 13")
    A(f"s_cmp_ge_u32 {s_g}, 96\ns_cbranch_scc1 L_fgB")
    A(f"s_lshr_b32 {s_set}, {s_g}, 5\ns_bfe_u32 {s_kc}, {s_g}, 0x20003\ns_mov_b32 {s_nblk}, 30\ns_add_u32 {s_clamp}, {s_set}, 59")
    A(f"s_mov_b32 s12, s{P.P_WO}\ns_mov_b32 s13, s{P.P_WO+1}\ns_mov_b32 s14, {8*MB}")
    A(f"s_lshl_b32 {s_t0}, {s_set}, 18\ns_lshl_b32 {s_t1}, {s_t2}, 17\ns_add_u32 {s_t0}, {s_t0}, {s_t1}\ns_lshl_b32 {s_t1}, {s_kc}, 15\ns_add_u32 {s_t0}, {s_t0}, {s_t1}\ns_add_u32 {s_t0}, {s_t0}, {s_t3}\ns_add_u32 {s_inb[0]}, {s_t0}, {OAF}")
    A(f"s_mov_b32 {s_t0}, {2 * 0x40000}\ns_mov_b32 {s_t1}, 2\ns_mov_b32 {s_wcol}, 0")
    A(f"s_lshl_b32 {s_t2}, {s_kc}, 7\ns_add_u32 {s_t2}, {s_t2}, {FLAGT}")
    A("s_branch L_fgP")
    A("L_fgB:")
    A(f"s_sub_u32 {s_set}, {s_g}, 96\ns_lshr_b32 {s_set}, {s_set}, 3\ns_mov_b32 {s_kc}, 4\ns_mov_b32 {s_nblk}, 22\ns_mov_b32 {s_clamp}, {NSEG}")
    A(f"s_mov_b32 s12, s{P.P_WOB}\ns_mov_b32 s13, s{P.P_WOB+1}\ns_mov_b32 s14, {2*MB}")
    A(f"s_lshl_b32 {s_t0}, {s_set}, 16\ns_lshl_b32 {s_t1}, {s_t2}, 15\ns_add_u32 {s_t0}, {s_t0}, {s_t1}\ns_add_u32 {s_t0}, {s_t0}, {s_t3}\ns_add_u32 {s_inb[0]}, {s_t0}, {OBF}")
    A(f"s_mov_b32 {s_t0}, {3 * 0x10000}\ns_mov_b32 {s_t1}, 3\ns_mov_b32 {s_wcol}, 2048\ns_mov_b32 {s_t2}, {FLAGB}")
    A("L_fgP:")
    for i in range(1, 4): A(f"s_add_u32 {s_inb[i]}, {s_inb[i-1]}, {s_t0}")
    A(f"s_lshl_b32 {s_istr2}, {s_t0}, 1")
    A(f"s_lshl_b32 {s_pstr}, {s_t1}, 17\ns_lshl_b32 {s_outstr}, {s_t1}, 17")
    A(f"v_add_u32 {vT2}, {s_t2}, {vT2}")
    A(f"s_sub_u32 {s_t2}, {s_g}, 8\ns_and_b32 {s_t2}, {s_t2}, 63\ns_lshl_b32 {s_t2}, {s_t2}, 7\ns_add_u32 {s_t2}, {s_t2}, {FLAGC}")
    A(f"v_mov_b32 {vT0}, {s_t2}\nv_cmp_gt_u32 vcc, 32, {vLane}\nv_cndmask_b32 {vFa}, {vT0}, {vT2}, vcc")
    A(f"s_and_b32 {s_t2}, {s_kc}, 3\ns_cmp_lg_u32 {s_t2}, 0\ns_cselect_b32 {s_t2}, 1, 0\ns_cselect_b32 {s_t3}, 0, -2")
    A(f"v_mov_b32 {vT0}, {s_t2}\nv_mov_b32 {vT1}, {s_t1}\nv_cndmask_b32 {vTs}, {vT0}, {vT1}, vcc")
    A(f"s_add_u32 {s_t2}, {s_set}, {s_t1}\ns_add_u32 {s_t2}, {s_t2}, 1\nv_mov_b32 {vT0}, -2\nv_mov_b32 {vT1}, {s_t2}\nv_cndmask_b32 {vTg}, {vT0}, {vT1}, vcc")
    A(f"v_mov_b32 {vT0}, {s_t3}\nv_cndmask_b32 {vFv}, {vT0}, {vT1}, vcc")
    A(f"s_and_b32 {s_t2}, {s_g}, 63\ns_lshl_b32 {s_t2}, {s_t2}, 7\ns_add_u32 {s_t2}, {s_t2}, {FLAGC}")
    A(f"s_cmp_lt_u32 {s_kc}, 3\ns_cselect_b32 {s_t2}, {s_t2}, {OOB}\ns_cmp_eq_u32 {s_wave}, 0\ns_cselect_b32 {s_t2}, {s_t2}, {OOB}")
    A(f"s_cmp_eq_u32 {s_wave}, 0\ns_cbranch_scc1 L_fgw0p")
    A(f"v_mov_b32 {vFa}, {OOB}\nv_mov_b32 {vTs}, 0\nv_mov_b32 {vTg}, -2\nv_mov_b32 {vFv}, -2")
    A("L_fgw0p:")
    lane0_addr(vGF, s_t2)
    A(f"s_lshl_b32 {s_t2}, {s_ng}, 2\ns_add_u32 {s_t2}, {s_t2}, {s_wave}\ns_lshl_b32 {s_t3}, {s_t2}, 12\ns_add_u32 {s_t3}, {s_t3}, {PX}\nv_add_u32 {vPa}, {s_t3}, {vL16}")
    A(f"s_lshl_b32 {s_t0}, {s_set}, 17\ns_lshl_b32 {s_t1}, {s_kc}, 23\ns_add_u32 {s_poutn}, {s_t0}, {s_t1}\ns_sub_u32 {s_pin}, {s_poutn}, {8*MB}")
    A(f"s_and_b32 {s_t1}, {s_kc}, 3\ns_cmp_eq_u32 {s_t1}, 0\ns_cselect_b32 {s_pin}, {OOB}, {s_pin}")
    A(f"s_cmp_ge_u32 {s_kc}, 3\ns_cselect_b32 {s_poutn}, {OOB}, {s_poutn}\ns_cselect_b32 {s_outn}, {s_t0}, {OOB}")
    A(f"s_mov_b32 {s_pout}, {OOB}\ns_mov_b32 {s_out}, {OOB}")
    A(f"v_lshrrev_b32 {vT0}, 2, {vJ}\nv_lshlrev_b32 {vT0}, 3, {vT0}\nv_and_b32 {vT1}, 3, {vJ}\nv_add_u32 {vT0}, {vT0}, {vT1}\nv_lshlrev_b32 {vT0}, 12, {vT0}\nv_lshl_add_u32 {vT0}, {vG}, 4, {vT0}")
    A(f"s_lshl_b32 {s_t2}, {s_t2}, 6\ns_add_u32 {s_t3}, {s_t2}, {s_wcol}\nv_add_u32 {vOa}, {s_t3}, {vT0}\nv_add_u32 {vOb}, 16384, {vOa}")
    A(f"v_mov_b32 {vR0}, {vL16}\nv_add_u32 {vR1}, 65536, {vL16}")
    A(f"s_and_b32 {s_t1}, {s_kc}, 3\ns_lshl_b32 {s_gsrc}, {s_t1}, 21\ns_add_u32 {s_gsrc}, {s_gsrc}, {s_t2}")
    g_voff()
    A("s_waitcnt vmcnt(0)\ns_barrier")
    g_wload()
    def spin(lab, back, slp=32):
        A(f"{lab}:\ns_sleep {slp}")
        A(f"buffer_load_dword {vFl}, {vFa}, {WS}, 0 offen sc1")
        budget()
        A(f"s_waitcnt vmcnt(0)\nv_cmp_gt_i32 vcc, {vTg}, {vFl}\ns_cbranch_vccnz {lab}")
        if back: A(f"s_branch {back}")
    spin("L_fgw0", None)
    A(f"v_mov_b32 {vTg}, {vFv}\ns_barrier")
    def f_dma(A, hh, r):
        A(f"s_add_u32 m0, {s_m0}, {(hh & 3) * 32768 + r * 1024}")
        A(f"s_add_u32 {s_xs}, {s_inb[hh >> 1]}, {(hh & 1) * 16384 + r * 1024}")
        A(f"buffer_load_dwordx4 {vL16}, {WS}, {s_xs} offen lds")
    def f_rd(A, dst, n):
        n &= 127
        hh, ks, u = n >> 5, (n >> 1) & 15, n & 1
        A(f"ds_read_b128 {dst}, {vR0 if hh < 2 else vR1} offset:{(hh & 1) * 32768 + u * 16384 + ks * 1024}")
    for hh in range(2):
        for r in range(8): f_dma(A, hh, r)
    A(f"s_mov_b32 {s_blk}, 0")
    A("s_waitcnt vmcnt(0)\ns_barrier")
    f_dma(A, 2, 0); f_dma(A, 2, 1)
    for n in range(8): f_rd(A, XF[n], n)
    def f_epi(A, acc, u):
        for t in range(2):
            a = acc[u * 2 + t]
            for i in (0, 2): A(f"v_pk_add_f32 {a[i:i+2]}, {a[i:i+2]}, {PIN[u*2+t][i:i+2]}")
            A(f"buffer_store_dwordx4 {a}, {vPa}, {WS}, {s_pout} offen offset:{(u*2+t)*1024} sc1")
        pack(A, PK[u], acc[u * 2], acc[u * 2 + 1])
        A(f"buffer_store_dwordx4 {PK[u]}, {vOa if u == 0 else vOb}, {OUT}, {s_out} offen")
        if u == 1:
            A(f"s_mov_b32 {s_pout}, {s_poutn}\ns_add_u32 {s_poutn}, {s_poutn}, {s_pstr}\ns_mov_b32 {s_out}, {s_outn}\ns_add_u32 {s_outn}, {s_outn}, {s_outstr}")
    def emit(A, q):
        def hook(hh, k, ph):
            par = hh >> 1
            if ph == 'pre':
                if (hh & 1) == 1 and k == 12:
                    A(f"s_waitcnt vmcnt({min(q.younger('fld'), q.younger('st'))})")
                    A(f"v_cmp_gt_i32 vcc, {vTg}, {vFl}\ns_cbranch_vccnz L_fgs{hh}\nL_fgb{hh}:")
                return
            if (hh & 1) == 0 and k in (6, 8):
                if k == 6: A(f"s_waitcnt vmcnt({q.younger('pin')})")
                f_epi(A, GA[1 - par], (k - 6) >> 1)
                for _ in range(3): q.op('st')
            if (hh & 1) == 1 and k == 2:
                A(f"v_add_u32 {vTg}, {vTg}, {vTs}\nv_min_i32 {vTg}, {s_clamp}, {vTg}")
                A(f"buffer_load_dword {vFl}, {vFa}, {WS}, 0 offen sc1"); q.op('fld')
            if (hh & 1) == 1 and k == 12:
                A(f"v_mov_b32 {vFv}, {s_blk}")
                A(f"buffer_store_dword {vFv}, {vGF}, {WS}, 0 offen sc1"); q.op('fl')
                A(f"s_add_u32 {s_blk}, {s_blk}, 1")
            if (hh & 1) == 1 and k in (12, 14):
                for i in ((0, 1) if k == 12 else (2, 3)):
                    A(f"buffer_load_dwordx4 {PIN[i]}, {vPa}, {WS}, {s_pin} offen offset:{i*1024}"); q.op('pin')
                if k == 14: A(f"s_add_u32 {s_pin}, {s_pin}, {s_pstr}")
        stream_body(A, q, 'T', f_dma, f_rd, hook)
    A("L_fgl:")
    two_pass(emit)
    for r in s_inb: A(f"s_add_u32 {r}, {r}, {s_istr2}")
    A(f"s_add_u32 {s_t0}, {s_blk}, 2\ns_cmp_eq_u32 {s_t0}, {s_nblk}\ns_cselect_b32 {s_tin}, {s_inb[2]}, {s_tin}\ns_cselect_b32 {s_inb[2]}, {OOB}, {s_inb[2]}\ns_cselect_b32 {s_inb[3]}, {OOB}, {s_inb[3]}")
    A(f"s_cmp_lg_u32 {s_blk}, {s_nblk}\ns_cbranch_scc1 L_fgl")
    A("s_waitcnt vmcnt(0) lgkmcnt(0)\ns_nop 7")
    f_epi(A, GA[1], 0); f_epi(A, GA[1], 1)
    A(f"s_waitcnt vmcnt(0)\ns_barrier\nv_mov_b32 {vFv}, {s_blk}")
    A(f"buffer_store_dword {vFv}, {vGF}, {WS}, 0 offen sc1")
    A(f"s_cmp_eq_u32 {s_kc}, 4\ns_cbranch_scc1 L_fgdone")
    s_tb, s_px = s_pin, s_pout
    PG = [V.alloc(f'pg{i}', 4) for i in range(12)]
    A(f"v_add_u32 {vPa}, {PXT - PX + (1 << 32) if PXT < PX else PXT - PX}, {vPa}")
    A(f"s_lshl_b32 {s_px}, {s_set}, 20\ns_mov_b32 {s_tb}, 0\ns_mov_b32 {s_inb[0]}, {s_tin}")
    A(f"s_add_u32 {s_t0}, {s_set}, 61\nv_mov_b32 {vT0}, {s_t0}\nv_mov_b32 {vT1}, -2\nv_cmp_gt_u32 vcc, 32, v0\nv_cndmask_b32 {vTg}, {vT1}, {vT0}, vcc")
    A(f"v_mov_b32 {vT0}, 2\nv_mov_b32 {vT1}, 0\nv_cndmask_b32 {vTs}, {vT1}, {vT0}, vcc")
    A("L_ftl:")
    spin("L_ftw", None, 3)
    A("s_barrier")
    for hh in range(2):
        for r in range(8): f_dma(A, hh, r)
    acc = GA[0]
    A("s_waitcnt vmcnt(8)\ns_barrier")
    for n in range(8): f_rd(A, XF[n], n)
    for ks in range(32):
        if ks == 12: A("s_waitcnt vmcnt(0)\ns_barrier")
        A(f"s_waitcnt lgkmcnt({min(8, 64 - 2 * ks) - 2})")
        for u in range(2):
            n = 2 * ks + u
            for t in range(2): A(f"v_mfma_f32_16x16x32_bf16 {acc[u*2+t]}, {GW(t, ks)}, {XF[n % 8]}, {'0' if ks == 0 else acc[u*2+t]}")
            if n + 8 < 64: f_rd(A, XF[n % 8], n + 8)
    A(f"s_cmp_eq_u32 {s_kc}, 3\ns_cbranch_scc1 L_ftg")
    A(f"s_lshl_b32 {s_t0}, {s_kc}, 17\ns_add_u32 {s_t0}, {s_t0}, {s_px}\ns_nop 4")
    for i in range(4): A(f"buffer_store_dwordx4 {acc[i]}, {vPa}, {WS}, {s_t0} offen offset:{i*1024} sc1")
    A("s_branch L_ftn")
    A("L_ftg:")
    for kk in range(3):
        A(f"s_add_u32 {s_t0}, {s_px}, {kk << 17}")
        for i in range(4): A(f"buffer_load_dwordx4 {PG[kk*4+i]}, {vPa}, {WS}, {s_t0} offen offset:{i*1024} sc1")
    budget()
    A("s_waitcnt vmcnt(0)")
    for i in range(4):
        for hh in (0, 2):
            A(f"v_pk_add_f32 {PIN[i][hh:hh+2]}, {PG[i][hh:hh+2]}, {PG[4+i][hh:hh+2]}\nv_pk_add_f32 {PIN[i][hh:hh+2]}, {PIN[i][hh:hh+2]}, {PG[8+i][hh:hh+2]}")
    regs = [PIN[i][k] for i in range(4) for k in range(4)]
    A(f"v_max3_u32 {vT0}, {regs[0]}, {regs[1]}, {regs[2]}"); regs = regs[3:]
    while len(regs) >= 2: A(f"v_max3_u32 {vT0}, {vT0}, {regs[0]}, {regs[1]}"); regs = regs[2:]
    if regs: A(f"v_max_u32 {vT0}, {vT0}, {regs[0]}")
    A(f"v_cmp_eq_u32 vcc, -1, {vT0}\ns_cbranch_vccnz L_ftg")
    for u in range(2):
        for t in range(2):
            a_ = acc[u * 2 + t]
            for i in (0, 2): A(f"v_pk_add_f32 {a_[i:i+2]}, {a_[i:i+2]}, {PIN[u*2+t][i:i+2]}")
        pack(A, PK[u], acc[u * 2], acc[u * 2 + 1])
        A(f"buffer_store_dwordx4 {PK[u]}, {vOa if u == 0 else vOb}, {OUT}, {s_out} offen")
    A(f"s_add_u32 {s_out}, {s_out}, {s_outstr}")
    A("L_ftn:")
    A(f"s_add_u32 {s_px}, {s_px}, {1 << 19}\ns_add_u32 {s_inb[0]}, {s_inb[0]}, {2 * 0x40000}\nv_add_u32 {vTg}, {vTg}, {vTs}")
    A(f"s_add_u32 {s_tb}, {s_tb}, 1\ns_cmp_lt_u32 {s_tb}, 2\ns_cbranch_scc1 L_ftl")
    A("L_fgdone:")
    stamp(44)
    A("s_branch L_end")
    spin("L_fgs1", "L_fgb1"); spin("L_fgs3", "L_fgb3")

    A("L_b2role:")
    confirm("t")
    C.setup()
    V.next = tbase
    s_hb, s_qb, s_p, s_bk, s_off = "s48", "s49", "s50", "s51", "s52"
    s_c2 = C.s_c2; vM, vNeg, ONES, MK = C.vM, C.vNeg, C.ONES, C.MK
    def KVr(slot): return [R('a', slot * 16 + i * 4, 4) for i in range(4)]
    OLD, NEW, NXT = 7, 8, 9
    Q = [V.alloc(f'q{u}', 4) for u in range(2)]; QN = [V.alloc(f'qn{u}', 4) for u in range(2)]
    S = [[[V.alloc(f's{b}{uq}{u}', 4) for u in range(2)] for uq in range(2)] for b in range(9)]
    O = [[V.alloc(f'o{uq}{t}', 4) for t in range(2)] for uq in range(2)]
    L = [V.alloc(f'l{uq}', 4) for uq in range(2)]
    vIn, vOut = vGW, vGTr
    A(f"s_sub_u32 {s_hb}, {s_g}, 120\ns_lshl_b32 {s_hb}, {s_hb}, 2\ns_add_u32 {s_hb}, {s_hb}, {s_wave}")
    A(f"s_mov_b32 {s_c2}, {f32(32 ** -0.5 * math.log2(math.e))}")
    A(f"s_lshl_b32 {s_t0}, {s_hb}, 11\ns_add_u32 {s_t0}, {s_t0}, {QBF}\nv_add_u32 {vIn}, {s_t0}, {vL16}")
    A(f"s_lshl_b32 {s_t0}, {s_hb}, 10\ns_add_u32 {s_t0}, {s_t0}, {OBF}\nv_add_u32 {vOut}, {s_t0}, {vL16}")
    A(f"v_min_u32 {vT0}, 2, {vLane}\nv_lshlrev_b32 {vT0}, 11, {vT0}\ns_add_u32 {s_t0}, {s_hb}, 384\ns_lshl_b32 {s_t0}, {s_t0}, 6\nv_add_u32 {vFa}, {s_t0}, {vT0}")
    A(f"s_lshl_b32 {s_t0}, {s_hb}, 2\ns_add_u32 {s_t0}, {s_t0}, {FLAGB}")
    lane0_addr(vTF, s_t0)
    for i in range(160): A(f"v_accvgpr_write_b32 a{i}, 0")
    A(f"s_mov_b32 {s_qb}, -1\ns_mov_b32 {s_p}, 6\ns_mov_b32 {s_bk}, 0\ns_mov_b32 {s_off}, 0")
    def fetch(tag):
        A(f"s_add_u32 {s_t2}, {s_qb}, 2\ns_min_i32 {s_t2}, {s_t2}, {NSEG}")
        A(f"s_cmp_ge_i32 {s_bk}, {s_t2}\ns_cbranch_scc1 L_bf_ok{tag}\ns_branch L_bf_go{tag}")
        A(f"L_bf{tag}:\ns_sleep 16\nL_bf_go{tag}:")
        A(f"buffer_load_dword {vFd[0]}, {vFa}, {WS}, 0 offen sc1")
        budget()
        A("s_waitcnt vmcnt(0)")
        A(f"v_readlane_b32 {s_t0}, {vFd[0]}, 0\nv_readlane_b32 {s_t1}, {vFd[0]}, 1\nv_readlane_b32 {s_bk}, {vFd[0]}, 2\ns_min_i32 {s_bk}, {s_bk}, {s_t0}\ns_min_i32 {s_bk}, {s_bk}, {s_t1}")
        A(f"s_cmp_ge_i32 {s_bk}, {s_t2}\ns_cbranch_scc0 L_bf{tag}")
        A(f"L_bf_ok{tag}:")
        A(f"s_sub_u32 {s_t2}, {s_t2}, 1\ns_lshl_b32 {s_t2}, {s_t2}, 16\ns_add_u32 {s_t0}, {s_t2}, {4*MB}\ns_add_u32 {s_t1}, {s_t2}, {8*MB}")
        for u in range(2): A(f"buffer_load_dwordx4 {QN[u]}, {vIn}, {WS}, {s_t2} offen offset:{u*1024}")
        for u in range(2): A(f"buffer_load_dwordx4 {KVr(NXT)[u]}, {vIn}, {WS}, {s_t0} offen offset:{u*1024}")
        for u in range(2): A(f"buffer_load_dwordx4 {KVr(NXT)[2+u]}, {vIn}, {WS}, {s_t1} offen offset:{u*1024}")
    fetch("p")
    A("s_waitcnt vmcnt(0)")
    A("L_b2l:")
    A("s_waitcnt vmcnt(3)")
    A(f"s_add_u32 {s_qb}, {s_qb}, 1")
    for p in range(7): A(f"s_cmp_eq_u32 {s_p}, {p}\ns_cbranch_scc1 L_rot{p}")
    for p in range(7):
        A(f"L_rot{p}:")
        for i in range(16): A(f"v_accvgpr_mov_b32 a{OLD*16+i}, a{p*16+i}")
        for i in range(16): A(f"v_accvgpr_mov_b32 a{p*16+i}, a{NEW*16+i}")
        A("s_branch L_rotd")
    A("L_rotd:")
    for i in range(16): A(f"v_accvgpr_mov_b32 a{NEW*16+i}, a{NXT*16+i}")
    for u in range(2):
        for i in range(4): A(f"v_mov_b32 {Q[u][i]}, {QN[u][i]}")
    A(f"s_add_u32 {s_p}, {s_p}, 1\ns_cmp_eq_u32 {s_p}, 7\ns_cselect_b32 {s_p}, 0, {s_p}")
    fetch("l")
    order = [OLD, NEW] + list(range(7))
    def merge(valu, mf, first=2):
        out = []; step = max(1, (len(valu) - first) // max(1, len(mf))); mi = 0
        for i, v in enumerate(valu):
            if mi < len(mf) and i >= first and (i - first) % step == 0: out.append(mf[mi]); mi += 1
            out.append(v)
        out += mf[mi:]
        for o in out: A(o)
    def smf(b): return [f"v_mfma_f32_16x16x32_bf16 {S[b][uq][u]}, {KVr(b)[u]}, {Q[uq]}, 0" for uq in range(2) for u in range(2)]
    def post(bi, b):
        o = []
        for uq in range(2):
            vals = [S[b][uq][u][r] for u in range(2) for r in range(4)]
            for ci, v in enumerate(vals):
                if b == OLD: o.append(f"v_cndmask_b32 {v}, {v}, {vNeg}, {MK(uq, ci)}")
                if b == NEW: o.append(f"v_cndmask_b32 {v}, {vNeg}, {v}, {MK(uq, ci)}")
            if bi == 0:
                o.append(f"v_max_f32 {vM[uq]}, {vals[0]}, {vals[1]}"); vals = vals[2:]
            for i in range(0, len(vals), 2): o.append(f"v_max3_f32 {vM[uq]}, {vM[uq]}, {vals[i]}, {vals[i+1]}")
        return o
    def invalid(b):
        if b == NEW: return
        A(f"s_cmp_gt_u32 {s_qb}, {b}\ns_cbranch_scc1 L_bv{b}\ns_nop 7")
        for uq in range(2):
            for u in range(2):
                for r in range(4): A(f"v_mov_b32 {S[b][uq][u][r]}, {vNeg}")
        A(f"L_bv{b}:")
    for o in smf(order[0]) + smf(order[1]): A(o)
    for bi, b in enumerate(order):
        invalid(b)
        merge(post(bi, b), smf(order[bi + 2]) if bi + 2 < 9 else [], first=0)
    for uq in range(2): C.rowmax(vM[uq])
    A(f"v_mov_b32 {vFv}, {s_qb}\ns_waitcnt vmcnt(6)")
    A(f"buffer_store_dword {vFv}, {vTF}, {WS}, 0 offen sc1")
    vC2 = V.alloc('c2', 2); vMp = [V.alloc(f'mp{uq}', 2) for uq in range(2)]
    A(f"v_mov_b32 {vC2[0]}, {s_c2}\nv_mov_b32 {vMp[0][0]}, {vM[0]}\nv_mov_b32 {vMp[1][0]}, {vM[1]}")
    pend = []
    for bi, b in enumerate(order):
        for uq in range(2):
            vals = [S[b][uq][u][r] for u in range(2) for r in range(4)]
            o = []
            for u in range(2):
                for i in (0, 2):
                    pr = S[b][uq][u][i:i+2]
                    o.append(f"v_pk_fma_f32 {pr}, {pr}, {vC2}, {vMp[uq]} op_sel_hi:[1,0,0] neg_lo:[0,0,1] neg_hi:[0,0,1]")
            for v in vals: o.append(f"v_exp_f32 {v}, {v}")
            for i in range(4): o.append(f"v_cvt_pk_bf16_f32 {S[b][uq][0][i]}, {vals[2*i]}, {vals[2*i+1]}")
            merge(o, pend)
            pend = [f"v_mfma_f32_16x16x32_bf16 {L[uq]}, {ONES}, {S[b][uq][0]}, {'0' if bi == 0 else L[uq]}"]
            pend += [f"v_mfma_f32_16x16x32_bf16 {O[uq][t]}, {KVr(b)[2+t]}, {S[b][uq][0]}, {'0' if bi == 0 else O[uq][t]}" for t in range(2)]
    for o in pend: A(o)
    A(f"s_add_u32 {s_t2}, {s_off}, 32768")
    for uq in range(2):
        A(f"v_rcp_f32 {vM[uq]}, {L[uq][0]}")
        Pk = S[1][uq][1]
        for t in range(2):
            for r in range(4): A(f"v_mul_f32 {O[uq][t][r]}, {O[uq][t][r]}, {vM[uq]}")
            for hh in range(2): A(f"v_cvt_pk_bf16_f32 {Pk[2*t+hh]}, {O[uq][t][2*hh]}, {O[uq][t][2*hh+1]}")
        A(f"buffer_store_dwordx4 {Pk}, {vOut}, {WS}, {s_off if uq == 0 else s_t2} offen sc1")
    if STAMP:
        A(f"s_cmp_lg_u32 {s_qb}, 31\ns_cbranch_scc1 L_b2ns"); stamp(56); A("L_b2ns:")
        A(f"s_cmp_lg_u32 {s_qb}, 0\ns_cbranch_scc1 L_b2ns2"); stamp(52); A("L_b2ns2:")
    A(f"s_add_u32 {s_off}, {s_off}, 65536\ns_cmp_lt_u32 {s_qb}, {NSEG-1}\ns_cbranch_scc1 L_b2l")
    A(f"s_waitcnt vmcnt(0)\nv_mov_b32 {vFv}, {NSEG}")
    A(f"buffer_store_dword {vFv}, {vTF}, {WS}, 0 offen sc1")
    stamp(44)
```

```python
from asmlib import Asm, Regs, R
from layout import *
import math

NSEG = 64
def kd(name, vgpr, accum, sgpr=102):
    return f'''.section .rodata,"a"
.p2align 6
.amdhsa_kernel {name}
  .amdhsa_next_free_vgpr {vgpr}
  .amdhsa_next_free_sgpr {sgpr}
  .amdhsa_accum_offset {accum}
  .amdhsa_group_segment_fixed_size 0
  .amdhsa_kernarg_size 104
  .amdhsa_user_sgpr_count 2
  .amdhsa_user_sgpr_kernarg_segment_ptr 1
  .amdhsa_system_sgpr_workgroup_id_x 1
.end_amdhsa_kernel
.text
'''

def srd(A, d, base, nbytes):
    A(f"s_mov_b32 s{d}, s{base}"); A(f"s_mov_b32 s{d+1}, s{base+1}")
    A(f"s_mov_b32 s{d+2}, {nbytes}"); A(f"s_mov_b32 s{d+3}, 0x20000")

P_AX, P_MEM0, P_WQ, P_WK, P_WV, P_WO, P_SEG, P_BX, P_WQKV, P_WOB, P_OUT, P_DBG, P_WS = [64 + 2 * i for i in range(13)]
WS = "s[4:7]"; DBG = "s[8:11]"; SW = "s[12:15]"; SX = "s[16:19]"

def load_kernargs(A):
    A("s_load_dwordx16 s[64:79], s[0:1], 0")
    A("s_load_dwordx8 s[80:87], s[0:1], 64")
    A("s_load_dwordx2 s[88:89], s[0:1], 96")

def gen_main(name, opt):
    A = Asm()
    PRE = opt.get('pre', (36, 8, 0, 8))
    STAMP = opt.get('stamp', False)
    A(f".globl {name}\n.p2align 8\n.type {name},@function\n{name}:")
    s_xcc, s_wave, s_role, s_mode, s_tick = "s3", "s20", "s21", "s22", "s23"
    s_t0, s_t1, s_t2, s_t3 = "s24", "s25", "s26", "s27"
    s_bud = "s28"
    A("s_cmp_ge_u32 s2, 256\ns_cbranch_scc1 L_end")
    load_kernargs(A)
    if STAMP: A("s_memrealtime s[96:97]")
    A(f"s_getreg_b32 {s_xcc}, hwreg(HW_REG_XCC_ID)\ns_and_b32 {s_xcc}, {s_xcc}, 7")
    V = Regs('v', 1, 256)
    vLane = V.alloc('lane'); vL16 = V.alloc('l16'); vG = V.alloc('g'); vJ = V.alloc('j'); vT0 = V.alloc('t0'); vT1 = V.alloc('t1'); vT2 = V.alloc('t2')
    vPoi = V.alloc('poi', 4)
    A(f"v_lshrrev_b32 {vT0}, 6, v0\nv_and_b32 {vLane}, 63, v0")
    A(f"v_readfirstlane_b32 {s_wave}, {vT0}")
    A(f"v_lshlrev_b32 {vL16}, 4, {vLane}\nv_lshrrev_b32 {vG}, 4, {vLane}\nv_and_b32 {vJ}, 15, {vLane}")
    for i in range(4): A(f"v_mov_b32 {vPoi[i]}, -1")
    A(f"s_mov_b32 {s_bud}, 400000")
    A("s_waitcnt lgkmcnt(0)")
    srd(A, 4, P_WS, WS_BYTES); srd(A, 8, P_DBG, 256)
    srd(A, 12, P_WQ, 8 * MB); srd(A, 16, P_AX, 4 * MB)
    A(f"s_mul_i32 {s_t0}, s2, {POISON_BYTES // 256}\nv_lshlrev_b32 {vT0}, 4, v0")
    for k in range(POISON_BYTES // 256 // 4096):
        A(f"buffer_store_dwordx4 {vPoi}, {vT0}, {WS}, {s_t0} offen sc1\ns_add_u32 {s_t0}, {s_t0}, 4096")
    A("s_waitcnt vmcnt(0)\ns_barrier")
    LDS_TICK = 163840 - 16
    vAt = V.alloc('at', 2)
    A(f"s_lshr_b32 {s_t0}, s2, 3\ns_lshl_b32 {s_t1}, 1, {s_t0}")
    A(f"v_mov_b32 {vAt[0]}, {s_t1}\nv_mov_b32 {vAt[1]}, 0x10000")
    A(f"s_lshl_b32 {s_t1}, {s_xcc}, 3\nv_mov_b32 {vT0}, {s_t1}\nv_mov_b32 {vT1}, {LDS_TICK}")
    A(f"s_lshl_b32 {s_role}, {s_xcc}, 5\ns_add_u32 {s_role}, {s_role}, {s_t0}\ns_mov_b32 {s_mode}, 0")
    A(f"s_cmp_lg_u32 {s_wave}, 3\ns_cbranch_scc1 L_reg_done")
    A("s_mov_b64 exec, 1")
    A(f"buffer_atomic_add_x2 {vAt}, {vT0}, {DBG}, 0 offen sc0 sc1")
    A("s_waitcnt vmcnt(0)")
    A(f"v_lshrrev_b32 {vAt[1]}, 16, {vAt[1]}\nds_write_b32 {vT1}, {vAt[1]}\ns_waitcnt lgkmcnt(0)")
    A("s_mov_b64 exec, -1")
    A("L_reg_done:")
    A("L_dispatch:")
    A(f"s_cmp_ge_u32 {s_role}, 128\ns_cbranch_scc1 L_grole")

    def confirm(tag):
        A(f"s_cmp_lg_u32 {s_mode}, 0\ns_cbranch_scc1 L_conf_ok_{tag}")
        A("s_waitcnt vmcnt(0) lgkmcnt(0)\ns_barrier")
        A(f"v_and_b32 {vT0}, 15, {vLane}\nv_lshlrev_b32 {vT0}, 2, {vT0}\nv_mov_b32 {vT1}, {LDS_TICK}")
        A(f"ds_read_b32 {vT2}, {vT1}")
        A(f"L_conf_poll_{tag}:")
        A(f"buffer_load_dword {vT1}, {vT0}, {DBG}, 0 offen sc1")
        A(f"s_sub_u32 {s_bud}, {s_bud}, 1\ns_cbranch_scc1 L_end")
        A("s_waitcnt vmcnt(0) lgkmcnt(0)")
        A(f"s_mov_b32 {s_t0}, 0\ns_mov_b32 {s_t1}, 0\ns_mov_b32 {s_t2}, -1")
        for x in range(8):
            A(f"v_readlane_b32 s30, {vT1}, {2*x}\nv_readlane_b32 s31, {vT1}, {2*x+1}")
            A(f"s_and_b32 {s_t2}, {s_t2}, s30")
            A(f"s_xor_b32 s30, s31, 0x200000\ns_or_b32 {s_t1}, {s_t1}, s30")
            A(f"s_lshr_b32 s31, s31, 16\ns_add_u32 {s_t0}, {s_t0}, s31")
        A(f"s_cmp_lt_u32 {s_t0}, 256\ns_cbranch_scc0 L_conf_all_{tag}")
        A(f"s_sleep 4\ns_branch L_conf_poll_{tag}")
        A(f"L_conf_all_{tag}:")
        A(f"v_readfirstlane_b32 {s_tick}, {vT2}")
        A(f"s_mov_b32 {s_mode}, 1")
        A(f"s_not_b32 {s_t2}, {s_t2}\ns_or_b32 {s_t2}, {s_t2}, {s_t1}\ns_cmp_eq_u32 {s_t2}, 0\ns_cbranch_scc1 L_conf_ok_{tag}")
        A(f"s_lshr_b32 {s_t1}, {s_t1}, 16")
        A(f"s_lshl_b32 {s_role}, {s_xcc}, 5\ns_add_u32 {s_role}, {s_role}, {s_tick}")
        A(f"s_cmp_eq_u32 {s_t1}, 0\ns_cbranch_scc1 L_dispatch")
        A(f"s_mov_b32 {s_role}, s2\ns_mov_b32 {s_mode}, 2\ns_branch L_dispatch")
        A(f"L_conf_ok_{tag}:")

    def dma_chunk(vOff, s_src, stride, nrows, lds_base_s, lds_off):
        for i in range(nrows // 16):
            A(f"s_add_u32 m0, {lds_base_s}, {lds_off + i * 1024}")
            A(f"buffer_load_dwordx4 {vOff}, {SW}, {s_src} offen lds")
            A(f"s_add_u32 {s_src}, {s_src}, {stride}")

    vbase = V.next
    s_x, s_c, s_cu, s_h, s_j = "s32", "s33", "s34", "s35", "s36"
    s_slot, s_kv, s_step, s_known, s_lds, s_src, s_kvm = "s37", "s38", "s39", "s40", "s41", "s42", "s43"
    s_c2 = "s44"
    A(f"s_lshr_b32 {s_x}, {s_role}, 5\ns_and_b32 {s_c}, {s_role}, 31\ns_lshr_b32 {s_h}, {s_role}, 2\ns_and_b32 {s_j}, {s_role}, 3")
    vW1 = V.alloc('w1'); vW2 = V.alloc('w2'); vTr = V.alloc('tr')
    A(f"v_lshrrev_b32 {vT0}, 2, {vLane}\nv_and_b32 {vT1}, 3, {vLane}\nv_lshlrev_b32 {vT1}, 4, {vT1}")
    A(f"v_lshl_add_u32 {vW1}, {vT0}, 13, {vT1}\nv_lshl_add_u32 {vW2}, {vT0}, 11, {vT1}")
    A(f"s_lshl_b32 {s_lds}, {s_wave}, 15")
    A(f"v_lshrrev_b32 {vT0}, 1, {vG}\nv_lshlrev_b32 {vT0}, 4, {vT0}\nv_and_b32 {vT1}, 1, {vG}\nv_lshl_add_u32 {vT0}, {vT1}, 2, {vT0}")
    A(f"v_bfe_u32 {vT1}, {vLane}, 2, 1\nv_add_u32 {vT0}, {vT0}, {vT1}\nv_bfe_u32 {vT1}, {vLane}, 3, 1\nv_lshl_add_u32 {vT0}, {vT1}, 3, {vT0}")
    A(f"v_lshlrev_b32 {vT0}, 6, {vT0}\nv_and_b32 {vT1}, 3, {vLane}\nv_lshl_add_u32 {vT0}, {vT1}, 3, {vT0}\nv_add_u32 {vTr}, {s_lds}, {vT0}")
    def r_issue(m):
        A(f"s_mov_b32 s12, s{[P_WQ,P_WK,P_WV,P_WO][m]}\ns_mov_b32 s13, s{[P_WQ,P_WK,P_WV,P_WO][m]+1}\ns_mov_b32 s14, {8*MB}")
        if m < 3:
            A(f"s_lshl_b32 {s_src}, {s_wave}, 21\ns_lshl_b32 {s_t0}, {s_role}, 6\ns_add_u32 {s_src}, {s_src}, {s_t0}")
            dma_chunk(vW1, s_src, 16 * 8192, 256, s_lds, (m & 1) * 16384)
        else:
            A(f"s_lshl_b32 {s_src}, {s_x}, 21\ns_lshl_b32 {s_t0}, {s_wave}, 19\ns_add_u32 {s_src}, {s_src}, {s_t0}\ns_lshl_b32 {s_t0}, {s_c}, 6\ns_add_u32 {s_src}, {s_src}, {s_t0}")
            dma_chunk(vW2, s_src, 16 * 2048, 256, s_lds, (m & 1) * 16384)
    def r_tr(m):
        for t in range(2):
            for kb in range(4):
                for p2 in range(4):
                    a0 = ((m * 2 + t) * 4 + kb) * 8 + 2 * p2
                    off = (m & 1) * 16384 + (64 * kb + 32 * (p2 >> 1) + 2 * (p2 & 1)) * 64 + 32 * t
                    A(f"ds_read_b64_tr_b16 a[{a0}:{a0+1}], {vTr} offset:{off}")
        A("s_waitcnt lgkmcnt(0)")
    r_issue(0); r_issue(1)
    A("s_waitcnt vmcnt(16)"); r_tr(0); r_issue(2)
    A("s_waitcnt vmcnt(16)"); r_tr(1); r_issue(3)
    A("s_waitcnt vmcnt(16)"); r_tr(2)
    A("s_waitcnt vmcnt(0)"); r_tr(3)
    confirm("r")
    A("s_barrier")
    def WQKV(T, kb): b = (T * 4 + kb) * 8; return f"a[{b}:{b+7}]"
    def WOr(t, kb): b = 192 + (t * 4 + kb) * 8; return f"a[{b}:{b+7}]"

    vPL = [V.alloc(f'pl{i}') for i in range(3)]; vPS = V.alloc('ps'); vMS = V.alloc('ms'); vGM = V.alloc('gm'); vGO = V.alloc('go')
    vS0 = V.alloc('s0'); vS2 = V.alloc('s2'); vSA = [V.alloc(f'sa{i}') for i in range(4)]; vSB = [V.alloc(f'sb{i}') for i in range(4)]
    vOS = V.alloc('os'); vKX = V.alloc('kx'); vVX = V.alloc('vx'); vFl = V.alloc('fl'); vKM = V.alloc('km'); vVM = V.alloc('vm')
    vPo = [V.alloc(f'po{i}') for i in range(5)]; vRF = V.alloc('rf'); vRFv = V.alloc('rfv')
    vQw = V.alloc('qw'); vKw = V.alloc('kw'); vQr = V.alloc('qr'); vVw = V.alloc('vw'); vVr = V.alloc('vr'); vPw = V.alloc('pw'); vPr = V.alloc('pr')
    vIdx = V.alloc('idx'); vChk = V.alloc('chk'); vOOB = V.alloc('oob')
    F = [V.alloc(f'f{i}', 4) for i in range(4)]
    ACC = [V.alloc(f'acc{i}', 4) for i in range(6)]
    T = [V.alloc(f'T{i}', 4) for i in range(13)]
    SB2 = [V.alloc(f'SB2{i}') for i in range(4)]
    X = V.alloc('X', 4); KX = [V.alloc(f'KX{i}', 4) for i in range(2)]; VX = [V.alloc(f'VX{i}', 4) for i in range(2)]
    S = [V.alloc(f'S{i}', 4) for i in range(3)]
    VMo = [V.alloc(f'VMo{i}', 4) for i in range(2)]
    ONES = V.alloc('ones', 4); PB = V.alloc('PB', 4); PM = V.alloc('PM', 4)
    SB = [V.alloc(f'SB{i}') for i in range(4)]
    OWN = V.alloc('own', 4); OO = V.alloc('OO', 4)
    vM = V.alloc('m'); vM2 = V.alloc('m2'); vRL = V.alloc('rl', 2)
    QK_B = 0; V_B = 9216; PW_B = 13312; KV_B = 18432
    s_have = "s45"; s_pslot = "s62"; KVMF = 'sc1'
    A(f"s_mov_b32 {s_have}, 0")
    A(f"v_mov_b32 {vOOB}, {OOB}")
    for i in range(3):
        A(f"s_xor_b32 {s_t0}, {s_role}, {(i+1)*32}\ns_lshl_b32 {s_t0}, {s_t0}, 10\ns_add_u32 {s_t0}, {s_t0}, {PART0}\nv_add_u32 {vPL[i]}, {s_t0}, {vL16}")
    A(f"s_lshl_b32 {s_t0}, {s_role}, 10\ns_add_u32 {s_t1}, {s_t0}, {PART0 + 0x20000}\nv_add_u32 {vPS}, {s_t1}, {vL16}")
    A(f"s_lshl_b32 {s_t0}, {s_role}, 9\ns_add_u32 {s_t1}, {s_t0}, {MEM_OFF}\nv_lshlrev_b32 {vT0}, 3, {vLane}\nv_add_u32 {vMS}, {s_t1}, {vT0}")
    A(f"v_and_b32 {vT0}, 31, {vLane}\nv_lshlrev_b32 {vT0}, 4, {vT0}\nv_lshrrev_b32 {vT1}, 5, {vLane}\nv_lshl_add_u32 {vT0}, {vT1}, 16, {vT0}")
    A(f"s_add_u32 {s_t1}, {s_t0}, {MEM_OFF}\nv_add_u32 {vPo[1]}, {s_t1}, {vT0}")
    A(f"v_lshl_add_u32 {vT0}, {vG}, 3, {vJ}\nv_lshlrev_b32 {vT0}, 4, {vT0}\ns_add_u32 {s_t1}, {s_t0}, {O_OFF}\nv_add_u32 {vT0}, {s_t1}, {vT0}")
    A(f"v_cmp_gt_u32 vcc, 8, {vJ}\nv_cndmask_b32 {vOS}, {vOOB}, {vT0}, vcc")
    A(f"s_lshl_b32 {s_t0}, {s_x}, 14\ns_lshl_b32 {s_t1}, {s_wave}, 12\ns_add_u32 {s_t0}, {s_t0}, {s_t1}\ns_add_u32 {s_t0}, {s_t0}, {MEM_OFF}")
    A(f"v_add_u32 {vGM}, {s_t0}, {vL16}\nv_add_u32 {vGO}, {O_OFF - MEM_OFF}, {vGM}")
    A(f"s_mul_i32 {s_t0}, {s_role}, 1280\ns_add_u32 {s_t0}, {s_t0}, {SC_OFF}")
    A(f"v_add_u32 {vT0}, {s_t0}, {vL16}\nv_cndmask_b32 {vS0}, {vOOB}, {vT0}, vcc")
    A(f"v_mov_b32 {vPo[2]}, {vT0}")
    A(f"v_cmp_gt_u32 vcc, 16, {vLane}\nv_add_u32 {vT1}, 1024, {vT0}\nv_cndmask_b32 {vPo[3]}, {vOOB}, {vT1}, vcc")
    A(f"v_lshl_add_u32 {vT0}, {vG}, 3, {vJ}\nv_lshlrev_b32 {vT0}, 4, {vT0}\ns_add_u32 {s_t1}, {s_t0}, {1024 - 256}\nv_add_u32 {vT0}, {s_t1}, {vT0}")
    A(f"v_and_b32 {vT1}, 0x28, {vLane}\nv_cmp_eq_u32 vcc, 0x20, {vT1}\nv_cndmask_b32 {vS2}, {vOOB}, {vT0}, vcc")
    A(f"v_lshrrev_b32 {vT0}, 3, {vLane}")
    A(f"v_lshrrev_b32 {vT1}, 2, {vT0}\nv_lshlrev_b32 {vT1}, 7, {vT1}\nv_and_b32 {vT0}, 3, {vT0}\nv_lshl_add_u32 {vT1}, {vT0}, 2, {vT1}")
    A(f"v_and_b32 {vT0}, 7, {vLane}\nv_lshl_add_u32 {vT1}, {vT0}, 4, {vT1}\nv_add_u32 {vT1}, 1024, {vT1}")
    for i in range(4):
        A(f"s_xor_b32 {s_t0}, {s_role}, {i}\ns_mul_i32 {s_t0}, {s_t0}, 1280\ns_add_u32 {s_t0}, {s_t0}, {SC_OFF}")
        A(f"v_add_u32 {vSA[i]}, {s_t0}, {vL16}\nv_add_u32 {vSB[i]}, {s_t0}, {vT1}")
    A(f"s_lshl_b32 {s_t0}, {s_role}, 11\ns_add_u32 {s_t1}, {s_t0}, {KXF}\nv_add_u32 {vKX}, {s_t1}, {vL16}\ns_add_u32 {s_t1}, {s_t0}, {VXF}\nv_add_u32 {vVX}, {s_t1}, {vL16}")
    A(f"s_lshl_b32 {s_t0}, {s_role}, 6\nv_and_b32 {vT0}, 1, {vLane}\nv_lshlrev_b32 {vT0}, 13, {vT0}\nv_add_u32 {vFl}, {s_t0}, {vT0}")
    A(f"s_lshl_b32 {s_t0}, {s_role}, 10\ns_add_u32 {s_t0}, {s_t0}, {KVM}")
    A(f"v_lshl_add_u32 {vT0}, {vG}, 3, {vJ}\nv_lshlrev_b32 {vT0}, 4, {vT0}\ns_sub_u32 {s_t1}, {s_t0}, 128\nv_add_u32 {vT0}, {s_t1}, {vT0}")
    A(f"v_cmp_lt_u32 vcc, 7, {vJ}\nv_cndmask_b32 {vKM}, {vOOB}, {vT0}, vcc")
    A(f"s_add_u32 {s_t1}, {s_t0}, 512\nv_lshlrev_b32 {vT0}, 2, {vLane}\nv_add_u32 {vVM}, {s_t1}, {vT0}")
    A(f"s_lshl_b32 {s_t0}, {s_h}, 7\ns_lshl_b32 {s_t1}, {s_j}, 2\ns_add_u32 {s_t0}, {s_t0}, {s_t1}\ns_add_u32 {s_t0}, {s_t0}, {FLAGR}\nv_mov_b32 {vT0}, {s_t0}\nv_cmp_eq_u32 s[30:31], 0, {vLane}\nv_cndmask_b32 {vRF}, {vOOB}, {vT0}, s[30:31]")
    A(f"v_mov_b32 {vT0}, 0x4444\nv_mov_b32 {vT1}, 0xeeee\nv_cndmask_b32 {vIdx}, {vT0}, {vT1}, vcc")
    A(f"v_and_b32 {vT0}, 1, {vG}\nv_mul_u32_u24 {vT0}, {4*144}, {vT0}\nv_lshrrev_b32 {vT1}, 1, {vG}\nv_lshl_add_u32 {vT2}, {vT1}, 4, {vJ}")
    A(f"v_lshl_add_u32 {vT0}, {vT2}, 2, {vT0}")
    A(f"s_mul_i32 {s_t0}, {s_wave}, 2304\nv_add_u32 {vQw}, {s_t0}, {vT0}\nv_add_u32 {vKw}, {8*144}, {vQw}")
    A(f"s_mul_i32 {s_t0}, {s_wave}, 1152\ns_add_u32 {s_t0}, {s_t0}, {PW_B}\nv_add_u32 {vPw}, {s_t0}, {vT0}")
    A(f"v_and_b32 {vT0}, 1, {vG}\nv_lshlrev_b32 {vT0}, 4, {vT0}\nv_lshl_add_u32 {vT0}, {vT2}, 5, {vT0}")
    A(f"s_lshl_b32 {s_t0}, {s_wave}, 10\ns_add_u32 {s_t0}, {s_t0}, {V_B}\nv_add_u32 {vVw}, {s_t0}, {vT0}")
    A(f"v_mul_u32_u24 {vT0}, 144, {vJ}\nv_lshl_add_u32 {vQr}, {vG}, 5, {vT0}")
    A(f"v_lshrrev_b32 {vT0}, 2, {vJ}\nv_lshlrev_b32 {vT0}, 3, {vT0}\nv_and_b32 {vT1}, 3, {vJ}\nv_add_u32 {vT0}, {vT0}, {vT1}\nv_lshlrev_b32 {vT0}, 5, {vT0}")
    A(f"v_lshl_add_u32 {vT0}, {vG}, 3, {vT0}\nv_add_u32 {vVr}, {V_B}, {vT0}")
    A(f"v_lshrrev_b32 {vT0}, 1, {vJ}\nv_mul_u32_u24 {vT0}, 144, {vT0}\nv_lshl_add_u32 {vT0}, {vG}, 5, {vT0}\nv_and_b32 {vT1}, 1, {vJ}\nv_lshl_add_u32 {vT0}, {vT1}, 4, {vT0}\nv_add_u32 {vPr}, {PW_B}, {vT0}")
    for i in range(4): A(f"v_mov_b32 {ONES[i]}, 0x3f803f80")
    for i in (1, 2, 3): A(f"v_mov_b32 {PM[i]}, 0\nv_mov_b32 {VMo[0][i]}, 0\nv_mov_b32 {VMo[1][i]}, 0")
    A(f"s_mov_b32 {s_slot}, {RING0}\ns_mov_b32 {s_pslot}, {RING0 + PD * SLOT_SZ}\ns_mov_b32 {s_kv}, 0\ns_mov_b32 {s_step}, 0\ns_mov_b32 {s_known}, 0\ns_mov_b32 {s_kvm}, 0")
    c2 = (128 ** -0.5) * math.log2(math.e)
    import struct
    A(f"s_mov_b32 {s_c2}, 0x{struct.unpack('<I', struct.pack('<f', c2))[0]:08x}")
    if STAMP:
        for r in range(46, 62): A(f"s_mov_b32 s{r}, 0")
        A("s_memrealtime s[98:99]")
    A(f"s_cmp_eq_u32 {s_mode}, 2\ns_cbranch_scc1 L_r_safe")

    def delay(n):
        while n >= 4: A("s_nop 15"); n -= 4
        if n: A(f"s_nop {4*n-1}")
    def umax(regs):
        A(f"v_max3_u32 {vChk}, {regs[0]}, {regs[1]}, {regs[2]}"); regs = regs[3:]
        while len(regs) >= 2:
            A(f"v_max3_u32 {vChk}, {vChk}, {regs[0]}, {regs[1]}"); regs = regs[2:]
        if regs: A(f"v_max_u32 {vChk}, {vChk}, {regs[0]}")
    def padd(d, a, b):
        for i in range(0, d.n, 2): A(f"v_pk_add_f32 {d[i:i+2]}, {a[i:i+2]}, {b[i:i+2]}")
    def zero(accs):
        for a in accs:
            for i in range(4): A(f"v_mov_b32 {a[i]}, 0")
    def budget(): A(f"s_sub_u32 {s_bud}, {s_bud}, 1\ns_cbranch_scc1 L_end")

    def r_loop(wk, md):
        IF = "" if md == 'f' else "sc1"
        tg = f"{md}{wk}"
        tails = []
        nst = [0]
        def st():
            if STAMP and md == 'f' and wk in (0, 1):
                k = nst[0]; nst[0] += 1
                A(f"s_memtime s[{64+2*k}:{65+2*k}]")
        def st_acc():
            if STAMP and md == 'f' and wk in (0, 1):
                A("s_waitcnt lgkmcnt(0)")
                for k in range(nst[0] - 1):
                    A(f"s_sub_u32 {s_t0}, s{66+2*k}, s{64+2*k}\ns_add_u32 s{46+k}, s{46+k}, {s_t0}")
                if opt.get('raw'):
                    A(f"s_lshl_b32 {s_t0}, {s_step}, 7\ns_add_u32 {s_t0}, {s_t0}, {s_role}\ns_lshl_b32 {s_t0}, {s_t0}, 7\ns_add_u32 {s_t0}, {s_t0}, {DBGO + MB + wk * 64}")
                    for k in range(nst[0]): A(f"v_writelane_b32 {vChk}, s{64+2*k}, {k}")
                    A(f"v_lshlrev_b32 {vT1}, 2, {vLane}\ns_mov_b64 exec, 0xffff")
                    A(f"buffer_store_dword {vChk}, {vT1}, {WS}, {s_t0} offen\ns_mov_b64 exec, -1")
        def st_dump():
            if STAMP and md == 'f' and wk in (0, 1):
                A("s_memrealtime s[100:101]\ns_waitcnt lgkmcnt(0)")
                A(f"s_mov_b32 s58, s96\ns_mov_b32 s59, s98\ns_mov_b32 s60, s100\ns_mov_b32 s61, {s_bud}")
                A(f"s_lshl_b32 {s_t0}, {s_role}, 7\ns_add_u32 {s_t0}, {s_t0}, {DBGO + wk * 64}\nv_mov_b32 {vT1}, 0\ns_mov_b64 exec, 1")
                for k in range(16):
                    A(f"v_mov_b32 {vT0}, s{46+k}\nbuffer_store_dword {vT0}, {vT1}, {WS}, {s_t0} offen offset:{4*k}\ns_nop 0")
                A("s_mov_b64 exec, -1")
        def gather(vAddr, nm, body, accs):
            def issue(i0):
                for i in range(i0, 4): A(f"buffer_load_dwordx4 {F[i]}, {vAddr}, {WS}, {s_slot} offen offset:{i*1024} sc1")
            issue(0)
            A(f"L_{nm}s_{tg}:")
            for i in range(4):
                A(f"s_waitcnt vmcnt({3-i})")
                body(i, 0)
                umax([F[i][k] for k in range(4)])
                A(f"v_cmp_eq_u32 vcc, -1, {vChk}")
                body(i, 1)
                A(f"s_cbranch_vccnz L_{nm}r{i}_{tg}")
                def tail(i=i):
                    A(f"L_{nm}r{i}_{tg}:")
                    issue(i); budget(); A("s_nop 7"); zero(accs); A(f"s_nop 1\ns_branch L_{nm}s_{tg}")
                tails.append(tail)
        def kv_issue(ahead):
            A(f"s_add_u32 {s_t0}, {s_kv}, {ahead * 0x40000}")
            for u in range(2): A(f"buffer_load_dwordx4 {KX[u]}, {vKX}, {WS}, {s_t0} offen offset:{u*1024} sc1")
            for u in range(2): A(f"buffer_load_dwordx4 {VX[u]}, {vVX}, {WS}, {s_t0} offen offset:{u*1024} sc1")
        def kvm_store(so):
            A(f"buffer_store_dwordx4 {X}, {vKM}, {WS}, {so} offen {KVMF}")
            A(f"buffer_store_dword {VMo[0][0]}, {vVM}, {WS}, {so} offen {KVMF}")
            A(f"buffer_store_dword {VMo[1][0]}, {vVM}, {WS}, {so} offen offset:256 {KVMF}")
        if wk == 0:
            srd(A, 16, P_MEM0, 16384)
            A(f"v_lshrrev_b32 {vT0}, 1, {vJ}\nv_lshlrev_b32 {vT0}, 11, {vT0}\nv_lshl_add_u32 {vT0}, {vG}, 4, {vT0}\nv_and_b32 {vT1}, 1, {vJ}\nv_lshl_add_u32 {vT0}, {vT1}, 3, {vT0}")
            A(f"s_lshl_b32 {s_t0}, {s_c}, 6")
            A(f"buffer_load_dwordx2 {OO[0:2]}, {vT0}, {SX}, {s_t0} offen")
            zero(ACC)
            A("s_waitcnt vmcnt(0)")
            A(f"v_min_u32 {OO[0]}, -2, {OO[0]}\nv_min_u32 {OO[1]}, -2, {OO[1]}")
            A(f"buffer_store_dwordx2 {OO[0:2]}, {vMS}, {WS}, {s_slot} offen {IF}")
            if STAMP and md == 'f': A("s_memtime s[64:65]\ns_memtime s[66:67]")
            A(f"s_branch L_s1d_{tg}")
        if wk == 3:
            A(f"L_pre_{tg}:")
            for k in range(RN):
                A(f"s_mov_b32 {s_t0}, {RING0 + k * SLOT_SZ}")
                for i in (1, 2, 3): A(f"buffer_load_dwordx4 {T[i]}, {vPo[i]}, {WS}, {s_t0} offen sc1")
            A("s_waitcnt vmcnt(0)")
        if wk == 1:
            A(f"L_pre_{tg}:\nv_mov_b32 {vT2}, 0\ns_branch L_fl_{tg}")
        A(f"L_loop_{tg}:")
        st()
        if wk == 0:
            zero(ACC)
            delay(PRE[0])
            SUM = T[12]
            A(f"L_p1_{tg}:")
            for i in range(3): A(f"buffer_load_dwordx4 {T[i]}, {vPL[i]}, {WS}, {s_kvm} offen sc1")
            A("s_waitcnt vmcnt(2)"); padd(SUM, T[0], OWN)
            A("s_waitcnt vmcnt(0)"); padd(T[1], T[1], T[2]); padd(SUM, SUM, T[1])
            umax([SUM[i] for i in range(4)])
            A(f"v_cmpx_ne_u32 vcc, -1, {vChk}")
            A(f"v_cvt_pk_bf16_f32 {OO[0]}, {SUM[0]}, {SUM[1]}\nv_cvt_pk_bf16_f32 {OO[1]}, {SUM[2]}, {SUM[3]}")
            A(f"buffer_store_dwordx2 {OO[0:2]}, {vMS}, {WS}, {s_slot} offen {IF}")
            A(f"s_mov_b64 exec, -1\ns_cmp_eq_u64 vcc, -1\ns_cbranch_scc0 L_p1r_{tg}")
            def tail():
                A(f"L_p1r_{tg}:"); budget(); A(f"s_branch L_p1_{tg}")
            tails.append(tail)
            st()
            A(f"L_s1d_{tg}:")
        elif wk == 1:
            delay(opt.get('slowd', 8))
            A(f"s_sub_u32 {s_t2}, {s_kvm}, 0x20000\ns_sub_u32 {s_t3}, {s_step}, 1\nv_mov_b32 {vRFv}, {s_t3}")
            kvm_store(s_t2)
            A(f"buffer_store_dword {vRFv}, {vRF}, {WS}, 0 offen sc1")
            A(f"v_readlane_b32 {s_t0}, {vT2}, 0\nv_readlane_b32 {s_t1}, {vT2}, 1\ns_min_i32 {s_known}, {s_t0}, {s_t1}")
            A(f"s_cmp_gt_i32 {s_known}, {s_step}\ns_cbranch_scc1 L_flok_{tg}")
            A(f"L_fl_{tg}:")
            A(f"buffer_load_dword {vT2}, {vFl}, {WS}, 0 offen sc1")
            budget()
            A("s_waitcnt vmcnt(0)")
            A(f"v_readlane_b32 {s_t0}, {vT2}, 0\nv_readlane_b32 {s_t1}, {vT2}, 1\ns_min_i32 {s_known}, {s_t0}, {s_t1}")
            A(f"s_cmp_gt_i32 {s_known}, {s_step}\ns_cbranch_scc0 L_fl_{tg}")
            A(f"L_flok_{tg}:")
            kv_issue(0)
            A(f"s_cmp_ge_i32 {s_known}, {NSEG}\ns_cbranch_scc1 L_nofl_{tg}")
            A(f"buffer_load_dword {vT2}, {vFl}, {WS}, 0 offen sc1")
            A(f"L_nofl_{tg}:")
            zero(ACC)
        else:
            delay(8 * wk); zero(ACC)
        A("s_barrier")
        st()
        delay(PRE[1])
        def body2(i, ph):
            for Tt in ((0,), (1, 2, 3))[ph]: A(f"v_smfmac_f32_16x16x64_bf16 {ACC[Tt]}, {F[i]}, {WQKV(Tt, i)}, {vIdx}")
        gather(vGM, "m", body2, ACC[0:4])
        st()
        vq = [(Tt, i) for i in range(4) for Tt in (4, 5)]
        def vs(n=1):
            for _ in range(n):
                Tt, i = vq.pop(0); A(f"v_smfmac_f32_16x16x64_bf16 {ACC[Tt]}, {F[i]}, {WQKV(Tt, i)}, {vIdx}")
        for (a, b, vw) in ((0, 1, vQw), (2, 3, vKw)):
            for hh in range(2):
                for r in (2 * hh, 2 * hh + 1): A(f"v_permlane32_swap_b32 {ACC[a][r]}, {ACC[b][r]}")
                A(f"v_pk_add_f32 {ACC[a][2*hh:2*hh+2]}, {ACC[a][2*hh:2*hh+2]}, {ACC[b][2*hh:2*hh+2]}")
                A(f"ds_write2_b32 {vw}, {ACC[a][2*hh]}, {ACC[a][2*hh+1]} offset0:{72*hh} offset1:{72*hh+36}")
        vs(3)
        A("s_waitcnt lgkmcnt(0)\ns_barrier")
        st()
        def vpart():
            for r in range(4): A(f"v_permlane32_swap_b32 {ACC[4][r]}, {ACC[5][r]}")
            padd(ACC[4], ACC[4], ACC[5])
            A(f"ds_write_b128 {vVw}, {ACC[4]}")
        if wk == 1:
            for w in range(4):
                for hh in range(2): A(f"ds_read_b128 {T[2*w+hh]}, {vQr} offset:{QK_B + w*2304 + hh*16}")
            vs(2)
            A("s_waitcnt lgkmcnt(4)")
            padd(T[0], T[0], T[2]); padd(T[1], T[1], T[3])
            vs(1)
            A("s_waitcnt lgkmcnt(2)")
            padd(T[0], T[0], T[4]); padd(T[1], T[1], T[5])
            A("s_waitcnt lgkmcnt(0)")
            for i in range(4):
                tt = T[i >> 1][2*(i&1):2*(i&1)+2]
                A(f"v_pk_add_f32 {tt}, {tt}, {T[6 + (i >> 1)][2*(i&1):2*(i&1)+2]}")
                A(f"v_cvt_pk_bf16_f32 {X[i]}, {tt[0]}, {tt[1]}")
            A(f"v_mfma_f32_16x16x32_bf16 {S[0]}, {KX[0]}, {X}, 0")
            A(f"v_mfma_f32_16x16x32_bf16 {S[1]}, {KX[1]}, {X}, 0")
            A(f"v_mfma_f32_16x16x32_bf16 {S[2]}, {X}, {X}, 0")
            A(f"buffer_store_dwordx4 {S[0]}, {vS0}, {WS}, {s_slot} offen {IF}")
            vs(1)
            A(f"buffer_store_dwordx4 {S[1]}, {vS0}, {WS}, {s_slot} offen offset:128 {IF}")
            vs(1)
            A(f"buffer_store_dwordx4 {S[2]}, {vS2}, {WS}, {s_slot} offen {IF}")
            st()
            vpart()
            zero(ACC[0:2])
        else:
            if wk == 2:
                for i in (1, 2, 3): A(f"buffer_store_dwordx4 {vPoi}, {vPo[i]}, {WS}, {s_pslot} offen {IF}")
            vs(5)
            zero(ACC[0:2])
            vpart()
        A("s_waitcnt lgkmcnt(0)\ns_barrier")
        st()
        if wk != 1:
            A(f"s_cmp_eq_u32 {s_step}, {NSEG-1}\ns_cbranch_scc1 L_last_{tg}")
        if wk == 1:
            delay(PRE[2])
            def p3_issue(i0):
                for i in range(i0, 4):
                    A(f"buffer_load_dwordx4 {T[i]}, {vSA[i]}, {WS}, {s_slot} offen sc1")
                    A(f"buffer_load_dword {SB[i]}, {vSB[i]}, {WS}, {s_slot} offen sc1")
            p3_issue(0)
            for t in range(2):
                for w in range(4): A(f"ds_read_b64 {T[4+2*t+(w>>1)][2*(w&1):2*(w&1)+2]}, {vVr} offset:{w*1024 + t*128}")
            A("s_waitcnt lgkmcnt(0)")
            for t in range(2):
                padd(T[4+2*t], T[4+2*t], T[5+2*t])
                A(f"v_pk_add_f32 {T[4+2*t][0:2]}, {T[4+2*t][0:2]}, {T[4+2*t][2:4]}")
                A(f"v_cvt_pk_bf16_f32 {VMo[t][0]}, {T[4+2*t][0]}, {T[4+2*t][1]}")
            A(f"s_cmp_eq_u32 {s_step}, {NSEG-1}\ns_cbranch_scc1 L_last_{tg}")
            A(f"L_p3_{tg}:")
            U = T[4]; ub = T[5][0]
            A("s_waitcnt vmcnt(4)")
            padd(U, T[0], T[1]); A(f"v_add_f32 {ub}, {SB[0]}, {SB[1]}")
            A("s_waitcnt vmcnt(0)")
            padd(T[2], T[2], T[3]); A(f"v_add_f32 {SB[2]}, {SB[2]}, {SB[3]}")
            padd(U, U, T[2]); A(f"v_add_f32 {ub}, {ub}, {SB[2]}")
            vals = [U[i] for i in range(4)] + [ub]
            umax(vals)
            A(f"v_cmp_eq_u32 vcc, -1, {vChk}")
            A(f"v_max3_f32 {vM}, {U[0]}, {U[1]}, {U[2]}\nv_max3_f32 {vM}, {vM}, {U[3]}, {ub}")
            A(f"v_max_f32_dpp {vM}, {vM}, {vM} row_ror:8 row_mask:0xf bank_mask:0xf")
            A(f"v_mov_b32 {vM2}, {vM}")
            A(f"s_cbranch_vccnz L_p3r_{tg}")
            def tail():
                A(f"L_p3r_{tg}:"); p3_issue(0); budget(); A(f"s_branch L_p3_{tg}")
            tails.append(tail)
            st()
            A(f"v_permlane16_swap_b32 {vM}, {vM2}\nv_max_f32 {vM}, {vM}, {vM2}")
            A(f"v_mov_b32 {vM2}, {vM}\nv_permlane32_swap_b32 {vM}, {vM2}\nv_max_f32 {vM}, {vM}, {vM2}")
            A(f"v_mul_f32 {vM}, {s_c2}, {vM}")
            for v in vals: A(f"v_fma_f32 {v}, {v}, {s_c2}, -{vM}")
            for v in vals[0:2]: A(f"v_exp_f32 {v}, {v}")
            for v in vals[2:4]: A(f"v_exp_f32 {v}, {v}")
            A(f"v_cvt_pk_bf16_f32 {PB[0]}, {U[0]}, {U[1]}\nv_cvt_pk_bf16_f32 {PB[1]}, {U[2]}, {U[3]}")
            A(f"v_exp_f32 {ub}, {ub}")
            A(f"v_mov_b32_dpp {PB[2]}, {PB[0]} row_ror:8 row_mask:0xf bank_mask:0xf")
            A(f"v_mov_b32_dpp {PB[3]}, {PB[1]} row_ror:8 row_mask:0xf bank_mask:0xf")
            A(f"v_mov_b32_dpp {vM2}, {ub} row_ror:8 row_mask:0xf bank_mask:0xf")
            A(f"v_cvt_pk_bf16_f32 {PM[0]}, {ub}, {vM2}")
            A(f"v_mfma_f32_16x16x32_bf16 {S[2]}, {ONES}, {PB}, 0")
            A(f"v_mfma_f32_16x16x32_bf16 {S[2]}, {ONES}, {PM}, {S[2]}")
            for t in range(2):
                A(f"v_mfma_f32_16x16x32_bf16 {S[t]}, {VX[t]}, {PB}, 0")
                A(f"v_mfma_f32_16x16x32_bf16 {S[t]}, {VMo[t]}, {PM}, {S[t]}")
                if t == 0: A(f"v_rcp_f32 {vRL[0]}, {S[2][0]}")
            for t in range(2):
                for hh in range(2):
                    sp = S[t][2*hh:2*hh+2]
                    A(f"v_pk_mul_f32 {sp}, {sp}, {vRL} op_sel_hi:[1,0]")
                    A(f"v_cvt_pk_bf16_f32 {OO[2*t+hh]}, {sp[0]}, {sp[1]}")
            A(f"buffer_store_dwordx4 {OO}, {vOS}, {WS}, {s_slot} offen {IF}")
        A("s_barrier")
        st()
        delay(PRE[3])
        def body4(i, ph):
            A(f"v_smfmac_f32_16x16x64_bf16 {ACC[ph]}, {F[i]}, {WOr(ph, i)}, {vIdx}")
        gather(vGO, "o", body4, ACC[0:2])
        st()
        for hh in range(2):
            for r in (2 * hh, 2 * hh + 1): A(f"v_permlane32_swap_b32 {ACC[0][r]}, {ACC[1][r]}")
            A(f"v_pk_add_f32 {ACC[0][2*hh:2*hh+2]}, {ACC[0][2*hh:2*hh+2]}, {ACC[1][2*hh:2*hh+2]}")
            A(f"ds_write2_b32 {vPw}, {ACC[0][2*hh]}, {ACC[0][2*hh+1]} offset0:{72*hh} offset1:{72*hh+36}")
        A("s_waitcnt lgkmcnt(0)\ns_barrier")
        st()
        if wk == 0:
            for w in range(4): A(f"ds_read_b128 {T[w]}, {vPr} offset:{w*1152}")
            A("s_waitcnt lgkmcnt(2)"); padd(T[0], T[0], T[1])
            A("s_waitcnt lgkmcnt(1)"); padd(T[0], T[0], T[2])
            A("s_waitcnt lgkmcnt(0)"); padd(OWN, T[0], T[3])
            A(f"buffer_store_dwordx4 {OWN}, {vPS}, {WS}, {s_kvm} offen sc1")
        st(); st_acc()
        for r in (s_slot, s_pslot):
            A(f"s_add_u32 {r}, {r}, {SLOT_SZ}\ns_cmp_eq_u32 {r}, {RING0 + RN * SLOT_SZ}\ns_cselect_b32 {r}, {RING0}, {r}")
        A(f"s_add_u32 {s_kv}, {s_kv}, 0x40000\ns_add_u32 {s_kvm}, {s_kvm}, 0x20000\ns_add_u32 {s_step}, {s_step}, 1")
        A(f"s_branch L_loop_{tg}")
        A(f"L_last_{tg}:")
        if wk == 1:
            kvm_store(s_kvm)
            A(f"v_mov_b32 {vRFv}, {NSEG}\ns_waitcnt vmcnt(0)")
            A(f"buffer_store_dword {vRFv}, {vRF}, {WS}, 0 offen sc1")
        st_dump()
        A("s_branch L_end")
        for t in tails: t()

    for md in ('f', 's'):
        if md == 's': A("L_r_safe:")
        for wk in (1, 2, 3):
            A(f"s_cmp_eq_u32 {s_wave}, {wk}\ns_cbranch_scc1 L_{'pre' if wk in (1, 3) else 'loop'}_{md}{wk}")
        for wk in (0, 1, 2, 3): r_loop(wk, md)

    from gen_g import emit_g
    emit_g(A, V, opt, dict(vLane=vLane, vL16=vL16, vG=vG, vJ=vJ, vT0=vT0, vT1=vT1, vT2=vT2, confirm=confirm, dma_chunk=dma_chunk))
    A("L_end:\ns_endpgm")
    return A.finish() + kd(name, 512, 256)
```

```python
MB = 1 << 20
FLAG = 0
RING0 = 65536
RN = 4
MEM_OFF = 0
O_OFF = 0x10000
SC_OFF = 0x20000
SLOT_SZ = 0x48000
PD = 2
PART0 = 2 * MB
PXT = 10 * MB
POISON_BYTES = 12 * MB
KXF = 64 * MB
VXF = 80 * MB
QXF = 96 * MB
KVM = 112 * MB
QBF = 120 * MB
KBF = 124 * MB
VBF = 128 * MB
OAF = 132 * MB
OBF = 150 * MB
WOF = 156 * MB
WOBF = 160 * MB
WS_BYTES = 256 * MB
OOB = 0x80000000
DBGO = 200 * MB
assert RING0 + RN * SLOT_SZ <= PART0
FLAGT = FLAG + 32768
FLAGR = FLAG + 40960
CNTB = FLAG + 36864
DONEB = FLAG + 49152
DONEH = FLAG + 53248
FLAGB = FLAG + 33280
FLAGC = FLAG + 57344
PX = 164 * MB
```

```python
from asmlib import Asm, Regs, R
from layout import *
import math, struct
WS = "s[4:7]"
def f32(x): return f"0x{struct.unpack('<I', struct.pack('<f', x))[0]:08x}"

class Ctx:
    def __init__(self, A, V, vLane, vL16, vG, vJ, vT0, vT1):
        self.A = A; self.V = V
        self.vLane, self.vL16, self.vG, self.vJ, self.vT0, self.vT1 = vLane, vL16, vG, vJ, vT0, vT1
        self.vD = [V.alloc('d0'), V.alloc('d1')]; self.vNeg = V.alloc('neg'); self.vM = [V.alloc('m0'), V.alloc('m1')]; self.vM2 = V.alloc('m2')
        self.ONES = V.alloc('ones', 4)
        self.s_t0, self.s_t1, self.s_t2, self.s_c2 = "s24", "s25", "s26", "s27"
    def MK(self, uq, c): b = 64 + (uq * 8 + c) * 2; return f"s[{b}:{b+1}]"
    def setup(self):
        A = self.A; vT0, vT1, vJ, vG, vD = self.vT0, self.vT1, self.vJ, self.vG, self.vD
        A(f"v_lshrrev_b32 {vT0}, 2, {vJ}\nv_sub_u32 {vT0}, {vT0}, {vG}\nv_lshlrev_b32 {vT0}, 3, {vT0}\nv_and_b32 {vT1}, 3, {vJ}\nv_add_u32 {vD[0]}, {vT0}, {vT1}\nv_add_u32 {vD[1]}, 4, {vD[0]}")
        A(f"v_mov_b32 {self.vNeg}, {f32(-1e30)}")
        for i in range(4): A(f"v_mov_b32 {self.ONES[i]}, 0x3f803f80")
        for uq in range(2):
            for c in range(8): A(f"v_cmp_le_i32 {self.MK(uq, c)}, {c}, {vD[uq]}")
    def rowmax(self, m):
        A = self.A; vM2 = self.vM2
        A(f"v_mov_b32 {vM2}, {m}\nv_permlane16_swap_b32 {m}, {vM2}\nv_max_f32 {m}, {m}, {vM2}")
        A(f"v_mov_b32 {vM2}, {m}\nv_permlane32_swap_b32 {m}, {vM2}\nv_max_f32 {m}, {m}, {vM2}")
        A(f"v_mul_f32 {m}, {self.s_c2}, {m}")
    def maxchain(self, m, vals):
        A = self.A
        A(f"v_max3_f32 {m}, {vals[0]}, {vals[1]}, {vals[2]}"); vals = vals[3:]
        while len(vals) >= 2:
            A(f"v_max3_f32 {m}, {m}, {vals[0]}, {vals[1]}"); vals = vals[2:]
        if vals: A(f"v_max_f32 {m}, {m}, {vals[0]}")

def emit_b2(C, s_qb, s_hb, tag, stf):
    A = C.A; V = C.V; mark = V.next
    s_t0, s_t1, s_t2, s_c2 = C.s_t0, C.s_t1, C.s_t2, C.s_c2
    vT0, vL16, vM, vNeg, ONES, MK = C.vT0, C.vL16, C.vM, C.vNeg, C.ONES, C.MK
    Q = [V.alloc(f'q{u}', 4) for u in range(2)]
    Kf = [[R('a', (b * 2 + u) * 4, 4) for u in range(2)] for b in range(9)]
    Vf = [[R('a', 72 + (b * 2 + u) * 4, 4) for u in range(2)] for b in range(9)]
    S = [[[V.alloc(f's{b}{uq}{u}', 4) for u in range(2)] for uq in range(2)] for b in range(9)]
    O = [[V.alloc(f'o{uq}{t}', 4) for t in range(2)] for uq in range(2)]
    L = [V.alloc(f'l{uq}', 4) for uq in range(2)]
    A(f"s_mov_b32 {s_c2}, {f32(32 ** -0.5 * math.log2(math.e))}")
    A(f"s_lshl_b32 {s_t0}, {s_hb}, 11\nv_add_u32 {vT0}, {s_t0}, {vL16}")
    A(f"s_lshl_b32 {s_t1}, {s_qb}, 16\ns_add_u32 {s_t1}, {s_t1}, {QBF}")
    for u in range(2): A(f"buffer_load_dwordx4 {Q[u]}, {vT0}, {WS}, {s_t1} offen offset:{u*1024}")
    for base, dst in ((KBF, Kf), (VBF, Vf)):
        for b in range(9):
            A(f"s_add_i32 {s_t1}, {s_qb}, {b - 8}\ns_max_i32 {s_t1}, {s_t1}, 0\ns_lshl_b32 {s_t1}, {s_t1}, 16\ns_add_u32 {s_t1}, {s_t1}, {base}")
            for u in range(2): A(f"buffer_load_dwordx4 {dst[b][u]}, {vT0}, {WS}, {s_t1} offen offset:{u*1024}")
    for b in range(9):
        A(f"s_waitcnt vmcnt({18 + 2 * (8 - b)})")
        for uq in range(2):
            for u in range(2): A(f"v_mfma_f32_16x16x32_bf16 {S[b][uq][u]}, {Kf[b][u]}, {Q[uq]}, 0")
    for uq in range(2):
        for u in range(2):
            for r in range(4): A(f"v_cndmask_b32 {S[0][uq][u][r]}, {S[0][uq][u][r]}, {vNeg}, {MK(uq, 4*u+r)}")
    for uq in range(2):
        for u in range(2):
            for r in range(4): A(f"v_cndmask_b32 {S[8][uq][u][r]}, {vNeg}, {S[8][uq][u][r]}, {MK(uq, 4*u+r)}")
    for b in range(8):
        A(f"s_cmp_ge_u32 {s_qb}, {8 - b}\ns_cbranch_scc1 L_bm_done_{tag}")
        for uq in range(2):
            for u in range(2):
                for r in range(4): A(f"v_mov_b32 {S[b][uq][u][r]}, {vNeg}")
    A(f"L_bm_done_{tag}:")
    for uq in range(2):
        C.maxchain(vM[uq], [S[b][uq][u][r] for b in range(9) for u in range(2) for r in range(4)])
        C.rowmax(vM[uq])
    A("s_waitcnt vmcnt(0)")
    for b in range(9):
        for uq in range(2):
            vals = [S[b][uq][u][r] for u in range(2) for r in range(4)]
            for v in vals: A(f"v_fma_f32 {v}, {v}, {s_c2}, -{vM[uq]}")
            for v in vals: A(f"v_exp_f32 {v}, {v}")
            for i in range(4): A(f"v_cvt_pk_bf16_f32 {S[b][uq][0][i]}, {vals[2*i]}, {vals[2*i+1]}")
            A(f"v_mfma_f32_16x16x32_bf16 {L[uq]}, {ONES}, {S[b][uq][0]}, {'0' if b == 0 else L[uq]}")
            for t in range(2):
                A(f"v_mfma_f32_16x16x32_bf16 {O[uq][t]}, {Vf[b][t]}, {S[b][uq][0]}, {'0' if b == 0 else O[uq][t]}")
    A(f"s_lshl_b32 {s_t0}, {s_hb}, 10\nv_add_u32 {vT0}, {s_t0}, {vL16}")
    A(f"s_lshl_b32 {s_t1}, {s_qb}, 16\ns_add_u32 {s_t1}, {s_t1}, {OBF}\ns_add_u32 {s_t2}, {s_t1}, 32768")
    for uq in range(2):
        A(f"v_rcp_f32 {vM[uq]}, {L[uq][0]}")
        P = S[1][uq][1]
        for t in range(2):
            for r in range(4): A(f"v_mul_f32 {O[uq][t][r]}, {O[uq][t][r]}, {vM[uq]}")
            for hh in range(2): A(f"v_cvt_pk_bf16_f32 {P[2*t+hh]}, {O[uq][t][2*hh]}, {O[uq][t][2*hh+1]}")
        A(f"buffer_store_dwordx4 {P}, {vT0}, {WS}, {s_t1 if uq == 0 else s_t2} offen {stf}")
    V.next = mark

def emit_t6(C, s_task, stf, wait_kvm=None, wait_kv=None):
    A = C.A; V = C.V; mark = V.next
    s_t0, s_t1, s_t2, s_c2 = C.s_t0, C.s_t1, C.s_t2, C.s_c2
    vT0, vT1, vL16, vM, vNeg, ONES, MK, vJ, vG, vLane = C.vT0, C.vT1, C.vL16, C.vM, C.vNeg, C.ONES, C.MK, C.vJ, C.vG, C.vLane
    Qf = [[V.alloc(f'Q{j}{u}', 4) for u in range(2)] for j in range(4)]
    Kf = [[V.alloc(f'K{j}{u}', 4) for u in range(2)] for j in range(4)]
    Vf = [[V.alloc(f'V{j}{u}', 4) for u in range(2)] for j in range(4)]
    KM = [V.alloc(f'KM{j}', 4) for j in range(4)]
    VM = [[V.alloc(f'VM{j}{t}', 2) for t in range(2)] for j in range(4)]
    Sx = [[V.alloc(f'Sx{uq}{kt}', 4) for kt in range(3)] for uq in range(2)]
    PMr = [V.alloc(f'PM{uq}', 2) for uq in range(2)]
    Lr = [V.alloc(f'L{uq}', 4) for uq in range(2)]
    vKM = V.alloc('vkm'); vVM = V.alloc('vvm')
    A(f"s_mov_b32 {s_c2}, {f32(128 ** -0.5 * math.log2(math.e))}")
    if wait_kv: wait_kv()
    A(f"s_lshl_b32 {s_t0}, {s_task}, 13")
    def ld8(dst, base):
        for half in range(2):
            A(f"s_add_u32 {s_t1}, {s_t0}, {base + half * 4096}")
            for k in range(4):
                j, u = (half * 4 + k) >> 1, k & 1
                A(f"buffer_load_dwordx4 {dst[j][u]}, {vL16}, {WS}, {s_t1} offen offset:{k*1024}")
    ld8(Qf, QXF); ld8(Kf, KXF); ld8(Vf, VXF)
    A(f"v_lshrrev_b32 {vT0}, 2, {vJ}\nv_lshlrev_b32 {vT0}, 1, {vT0}\nv_and_b32 {vT1}, 1, {vJ}\nv_add_u32 {vT0}, {vT0}, {vT1}\nv_lshl_add_u32 {vT0}, {vG}, 3, {vT0}\nv_lshlrev_b32 {vT0}, 4, {vT0}")
    A(f"v_and_b32 {vT1}, 2, {vJ}\nv_cmp_eq_u32 vcc, 0, {vT1}\nv_mov_b32 {vT1}, {OOB}\nv_cndmask_b32 {vKM}, {vT1}, {vT0}, vcc")
    A(f"v_lshlrev_b32 {vVM}, 2, {vLane}")
    for j in range(4):
        for t in range(2): A(f"v_mov_b32 {VM[j][t][1]}, 0")
    A(f"v_mov_b32 {PMr[0][1]}, 0\nv_mov_b32 {PMr[1][1]}, 0")
    if wait_kvm: wait_kvm()
    A(f"s_lshl_b32 {s_t2}, {s_task}, 12\ns_add_u32 {s_t2}, {s_t2}, {KVM}")
    for j in range(4): A(f"buffer_load_dwordx4 {KM[j]}, {vKM}, {WS}, {s_t2} offen offset:{j*1024}")
    for j in range(4):
        for t in range(2): A(f"buffer_load_dword {VM[j][t][0]}, {vVM}, {WS}, {s_t2} offen offset:{j*1024 + 512 + t*256}")
    A("s_waitcnt vmcnt(20)")
    for j in range(4):
        for uq in range(2):
            for kt in range(2): A(f"v_mfma_f32_16x16x32_bf16 {Sx[uq][kt]}, {Kf[j][kt]}, {Qf[j][uq]}, {'0' if j == 0 else Sx[uq][kt]}")
    for uq in range(2):
        for u in range(2):
            for r in range(4): A(f"v_cndmask_b32 {Sx[uq][u][r]}, {vNeg}, {Sx[uq][u][r]}, {MK(uq, 4*u+r)}")
    A("s_waitcnt vmcnt(8)")
    for j in range(4):
        for uq in range(2): A(f"v_mfma_f32_16x16x32_bf16 {Sx[uq][2]}, {KM[j]}, {Qf[j][uq]}, {'0' if j == 0 else Sx[uq][2]}")
    for uq in range(2):
        vals = [Sx[uq][u][r] for u in range(2) for r in range(4)] + [Sx[uq][2][0], Sx[uq][2][1]]
        C.maxchain(vM[uq], vals); C.rowmax(vM[uq])
        for v in vals: A(f"v_fma_f32 {v}, {v}, {s_c2}, -{vM[uq]}")
        for v in vals: A(f"v_exp_f32 {v}, {v}")
        for i in range(4): A(f"v_cvt_pk_bf16_f32 {Sx[uq][0][i]}, {vals[2*i]}, {vals[2*i+1]}")
        A(f"v_cvt_pk_bf16_f32 {PMr[uq][0]}, {vals[8]}, {vals[9]}")
    Oa = [Qf, Kf]
    A("s_waitcnt vmcnt(0)")
    for uq in range(2):
        A(f"v_mfma_f32_16x16x16_bf16 {Lr[uq]}, {ONES[0:2]}, {PMr[uq]}, 0")
        for j in range(4):
            for t in range(2): A(f"v_mfma_f32_16x16x16_bf16 {Oa[uq][j][t]}, {VM[j][t]}, {PMr[uq]}, 0")
    for uq in range(2):
        A(f"v_mfma_f32_16x16x32_bf16 {Lr[uq]}, {ONES}, {Sx[uq][0]}, {Lr[uq]}")
        for j in range(4):
            for t in range(2): A(f"v_mfma_f32_16x16x32_bf16 {Oa[uq][j][t]}, {Vf[j][t]}, {Sx[uq][0]}, {Oa[uq][j][t]}")
    A(f"s_lshr_b32 {s_t0}, {s_task}, 5\ns_lshl_b32 {s_t0}, {s_t0}, 18\ns_and_b32 {s_t1}, {s_task}, 31\ns_lshl_b32 {s_t1}, {s_t1}, 12\ns_add_u32 {s_t0}, {s_t0}, {s_t1}\ns_add_u32 {s_t0}, {s_t0}, {OAF}")
    A(f"s_add_u32 {s_t1}, {s_t0}, 0x20000")
    for uq in range(2):
        A(f"v_rcp_f32 {vM[uq]}, {Lr[uq][0]}")
        for j in range(4):
            P = KM[j] if uq == 0 else Vf[j][0]
            for t in range(2):
                for r in range(4): A(f"v_mul_f32 {Oa[uq][j][t][r]}, {Oa[uq][j][t][r]}, {vM[uq]}")
                for hh in range(2): A(f"v_cvt_pk_bf16_f32 {P[2*t+hh]}, {Oa[uq][j][t][2*hh]}, {Oa[uq][j][t][2*hh+1]}")
            A(f"buffer_store_dwordx4 {P}, {vL16}, {WS}, {s_t0 if uq == 0 else s_t1} offen offset:{j*1024} {stf}")
    V.next = mark

def emit_tile(A, V, c, tag):
    mark = V.next
    vL16, vG, vJ, vT0, vT1 = c['vL16'], c['vG'], c['vJ'], c['vT0'], c['vT1']
    s_wave, s_mb, s_nb, OUT = c['s_wave'], c['s_mb'], c['s_nb'], c['OUT']
    s_t0, s_t1, s_a0, s_a1, s_w, s_iss, s_rd, s_wr, s_cnt, s_la, s_lw = c['sg']
    vRA0 = V.alloc('ra0'); vRW0 = V.alloc('rw0'); vRA = V.alloc('ra'); vRW = V.alloc('rw'); vOut = V.alloc('out')
    AF = [[V.alloc(f'af{p}{m}', 4) for m in range(4)] for p in range(2)]
    WF = [[V.alloc(f'wf{p}{t}', 4) for t in range(2)] for p in range(2)]
    ACC = [[V.alloc(f'acc{m}{t}', 4) for t in range(2)] for m in range(4)]
    PK = [V.alloc(f'pk{m}', 4) for m in range(4)]
    STG = 49152; RING = 3 * STG
    A(f"s_add_u32 {s_t1}, {c['s_rs']}, 1")
    A(f"s_lshl_b32 {s_t0}, {s_mb}, 2\ns_add_u32 {s_t0}, {s_t0}, {s_wave}\ns_lshl_b32 {s_t0}, {s_t0}, {s_t1}\ns_add_u32 {s_a0}, {s_t0}, {c['s_abase']}")
    A(f"s_lshl_b32 {s_t0}, 1, {c['s_rs']}\ns_add_u32 {s_a1}, {s_a0}, {s_t0}")
    A(f"s_lshl_b32 {s_t0}, {s_nb}, 1\ns_lshr_b32 {s_w}, {s_wave}, 1\ns_add_u32 {s_t0}, {s_t0}, {s_w}\ns_lshl_b32 {s_t0}, {s_t0}, {s_t1}")
    A(f"s_and_b32 {s_t1}, {s_wave}, 1\ns_lshl_b32 {s_t1}, {s_t1}, 12\ns_add_u32 {s_t0}, {s_t0}, {s_t1}\ns_add_u32 {s_w}, {s_t0}, {c['s_wbase']}")
    A(f"s_lshl_b32 {s_la}, {s_wave}, 13\ns_lshl_b32 {s_lw}, {s_wave}, 12\ns_add_u32 {s_lw}, {s_lw}, 32768")
    def issue_group(g):
        src, l, lo = [(s_a0, s_la, 0), (s_a1, s_la, 4096), (s_w, s_lw, 0)][g]
        A(f"s_add_u32 {s_t0}, {s_wr}, {l}")
        if lo: A(f"s_add_u32 {s_t0}, {s_t0}, {lo}")
        A(f"s_mov_b32 m0, {s_t0}")
        for k in range(4): A(f"buffer_load_dwordx4 {vL16}, {WS}, {src} offen offset:{k*1024} lds")
        A(f"s_add_u32 {src}, {src}, {4096 if g < 2 else 8192}")
    def issue_end():
        A(f"s_add_u32 {s_wr}, {s_wr}, {STG}\ns_cmp_eq_u32 {s_wr}, {RING}\ns_cselect_b32 {s_wr}, 0, {s_wr}")
        A(f"s_add_u32 {s_iss}, {s_iss}, 1\ns_cmp_ge_u32 {s_iss}, {c['s_nst']}")
        for r in (s_a0, s_a1, s_w): A(f"s_cselect_b32 {r}, {OOB}, {r}")
    A(f"s_mov_b32 {s_wr}, 0\ns_mov_b32 {s_rd}, 0\ns_mov_b32 {s_iss}, 0\ns_mov_b32 {s_cnt}, {c['s_nst']}")
    A("s_barrier")
    for st in range(2):
        for g in range(3): issue_group(g)
        issue_end()
    A(f"s_lshr_b32 {s_t0}, {s_wave}, 1\ns_lshl_b32 {s_t0}, {s_t0}, 14\nv_add_u32 {vRA0}, {s_t0}, {vL16}")
    A(f"s_and_b32 {s_t0}, {s_wave}, 1\ns_lshl_b32 {s_t0}, {s_t0}, 13\ns_add_u32 {s_t0}, {s_t0}, 32768\nv_add_u32 {vRW0}, {s_t0}, {vL16}")
    A(f"v_lshrrev_b32 {vT0}, 2, {vJ}\nv_lshlrev_b32 {vT0}, 3, {vT0}\nv_and_b32 {vT1}, 3, {vJ}\nv_add_u32 {vT0}, {vT0}, {vT1}")
    A(f"s_lshl_b32 {s_t0}, {s_mb}, 7\ns_lshr_b32 {s_t1}, {s_wave}, 1\ns_lshl_b32 {s_t1}, {s_t1}, 6\ns_add_u32 {s_t0}, {s_t0}, {s_t1}\nv_add_u32 {vT0}, {s_t0}, {vT0}\nv_lshlrev_b32 {vT0}, 12, {vT0}")
    A(f"s_lshl_b32 {s_t0}, {s_nb}, 7\ns_and_b32 {s_t1}, {s_wave}, 1\ns_lshl_b32 {s_t1}, {s_t1}, 6\ns_add_u32 {s_t0}, {s_t0}, {s_t1}\nv_lshl_add_u32 {vT0}, {vG}, 4, {vT0}\nv_add_u32 {vOut}, {s_t0}, {vT0}")
    for m in range(4):
        for t in range(2):
            for r in range(4): A(f"v_mov_b32 {ACC[m][t][r]}, 0")
    A(f"L_oloop_{tag}:")
    A(f"v_add_u32 {vRA}, {s_rd}, {vRA0}\nv_add_u32 {vRW}, {s_rd}, {vRW0}")
    A("s_waitcnt vmcnt(12)\ns_barrier")
    def reads(ks):
        p = ks & 1
        for t in range(2): A(f"ds_read_b128 {WF[p][t]}, {vRW} offset:{(ks*2+t)*1024}")
        for m in range(4): A(f"ds_read_b128 {AF[p][m]}, {vRA} offset:{m*4096 + ks*1024}")
    reads(0)
    for ks in range(4):
        p = ks & 1
        if ks < 3: reads(ks + 1)
        if ks < 3: issue_group(ks)
        A(f"s_waitcnt lgkmcnt({6 if ks < 3 else 0})")
        for m in range(4):
            for t in range(2): A(f"v_mfma_f32_16x16x32_bf16 {ACC[m][t]}, {WF[p][t]}, {AF[p][m]}, {ACC[m][t]}")
    issue_end()
    A(f"s_add_u32 {s_rd}, {s_rd}, {STG}\ns_cmp_eq_u32 {s_rd}, {RING}\ns_cselect_b32 {s_rd}, 0, {s_rd}")
    A(f"s_sub_u32 {s_cnt}, {s_cnt}, 1\ns_cmp_lg_u32 {s_cnt}, 0\ns_cbranch_scc1 L_oloop_{tag}")
    A("s_nop 7")
    for m in range(4):
        for t in range(2):
            for hh in range(2): A(f"v_cvt_pk_bf16_f32 {PK[m][2*t+hh]}, {ACC[m][t][2*hh]}, {ACC[m][t][2*hh+1]}")
        A(f"s_add_u32 {s_t0}, {c['s_ocol']}, {((m >> 1) * 32 + 4 * (m & 1)) * 4096}")
        A(f"buffer_store_dwordx4 {PK[m]}, {vOut}, {OUT}, {s_t0} offen")
    A("s_waitcnt vmcnt(0)")
    V.next = mark
```

```python
import sys
from gen_main import gen_main
KN = "concat_heads__memory_aug_recurrent_mem_tr__sliding_block__prompt_kernel"
def build(opt=None, only_main=False):
    opt = opt or {}
    hdr = ["; generated by gen/build.py", "; @launch grid=(256,1,1) block=(256,1,1) lds=163840"]
    body = gen_main(KN, opt)
    return "\n".join(hdr) + '\n.amdgcn_target "amdgcn-amd-amdhsa--gfx950"\n.text\n' + body
if __name__ == "__main__":
    open(sys.argv[1], "w").write(build())
```

```python
from asmlib import Asm, Regs, R
from layout import *
from tasks import Ctx, emit_t6, f32
import math
import gen_main as M
WS, SW, SX = M.WS, M.SW, M.SX
NSEG = 64

class VQ:
    def __init__(self): self.seq = []; self.pos = 0; self.rec = True
    def op(self, tag, optional=False):
        if self.rec: self.seq.append((tag, optional))
        self.pos += 1
    def younger(self, tag, nth=1):
        if self.rec: return 0
        n = len(self.seq); cnt = 0
        for d in range(1, 3 * n + 1):
            t, o = self.seq[(self.pos - d) % n]
            if t == tag:
                nth -= 1
                if nth == 0: return cnt
            if not o: cnt += 1
        raise ValueError(tag)
    def second(self): self.rec = False; self.pos = 0

def emit_g(A0, V, opt, c):
    A = A0
    STAMP = opt.get('stamp', False)
    vLane, vL16, vG, vJ, vT0, vT1, vT2 = [c[k] for k in ('vLane', 'vL16', 'vG', 'vJ', 'vT0', 'vT1', 'vT2')]
    confirm, dma_chunk = c['confirm'], c['dma_chunk']
    s_wave, s_role, s_bud = "s20", "s21", "s28"
    s_t0, s_t1, s_t2, s_t3 = "s24", "s25", "s26", "s27"
    s_g, s_wstr, s_wcol, s_obase, s_ostr, s_type = "s32", "s33", "s34", "s35", "s36", "s37"
    s_blk, s_xsrc, s_osoff, s_gl, s_gsrc, s_xs, s_m0, s_onext, s_isq = "s38", "s39", "s40", "s41", "s42", "s43", "s44", "s47", "s45"
    P = M
    A("L_grole:")
    V.next = 8
    vGW = V.alloc('gw'); vGTr = V.alloc('gtr'); vXq = [V.alloc(f'xq{q}') for q in range(4)]
    vRB = [[V.alloc(f'rb{b}{q}') for q in range(4)] for b in range(2)]
    vO = V.alloc('o'); vGF = V.alloc('gf'); vFv = V.alloc('fv'); vPf = V.alloc('pf'); vPfd = V.alloc('pfd')
    vFa = V.alloc('fa'); vTF = V.alloc('tf'); vKf = V.alloc('kf'); vPz = V.alloc('pz'); vWp = V.alloc('wp'); POI = V.alloc('poi', 4); vFd = V.alloc('fd', 4)
    C = Ctx(A, V, vLane, vL16, vG, vJ, vT0, vT1)
    tbase = V.next
    XF = [V.alloc(f'xf{i}', 4) for i in range(8)]
    GA = [[V.alloc(f'ga{s}{i}', 4) for i in range(4)] for s in range(2)]
    PK = [V.alloc(f'pk{i}', 4) for i in range(2)]
    PIN = [V.alloc(f'pin{i}', 4) for i in range(4)]
    def stamp(off):
        if STAMP:
            A("s_memrealtime s[100:101]\ns_waitcnt lgkmcnt(0)")
            A(f"s_lshl_b32 {s_t0}, {s_role}, 7\ns_add_u32 {s_t0}, {s_t0}, {DBGO}\nv_mov_b32 {vT1}, 0\ns_mov_b64 exec, 1")
            A(f"v_mov_b32 {vT0}, s100\nbuffer_store_dword {vT0}, {vT1}, {WS}, {s_t0} offen offset:{off}")
            A(f"v_mov_b32 {vT2}, s96\nbuffer_store_dword {vT2}, {vT1}, {WS}, {s_t0} offen offset:48\ns_mov_b64 exec, -1\ns_waitcnt vmcnt(0)")
    def budget(): A(f"s_sub_u32 {s_bud}, {s_bud}, 1\ns_cbranch_scc1 L_end")
    def lane0_addr(dst, s_addr):
        A(f"v_mov_b32 {vT0}, {s_addr}\nv_mov_b32 {vT1}, {OOB}\nv_cmp_eq_u32 vcc, 0, {vLane}\nv_cndmask_b32 {dst}, {vT1}, {vT0}, vcc")
    A(f"s_sub_u32 {s_g}, {s_role}, 128")
    for r in (vFa, vTF, vKf): A(f"v_mov_b32 {r}, {OOB}")
    A(f"s_lshl_b32 {s_m0}, {s_wave}, 13")
    A(f"s_cmp_ge_u32 {s_g}, 120\ns_cbranch_scc1 L_b2role")
    def g_voff():
        A(f"v_lshrrev_b32 {vT0}, 2, {vLane}\nv_mul_lo_u32 {vT0}, {vT0}, {s_wstr}\nv_and_b32 {vT1}, 3, {vLane}\nv_lshl_add_u32 {vGW}, {vT1}, 4, {vT0}")
        A(f"s_lshl_b32 {s_wstr}, {s_wstr}, 4")
    def g_stage(base, depth):
        A(f"s_mul_i32 {s_gl}, {s_wave}, {depth * 8192}\ns_add_u32 {s_gl}, {s_gl}, {base}")
        A(f"v_bfe_u32 {vT0}, {vLane}, 2, 2\nv_lshl_add_u32 {vT0}, {vG}, 3, {vT0}\nv_lshlrev_b32 {vT0}, 6, {vT0}\nv_and_b32 {vT1}, 3, {vLane}\nv_lshl_add_u32 {vT0}, {vT1}, 4, {vT0}\nv_add_u32 {vGTr}, {s_gl}, {vT0}")
    def g_wload(depth, fuse=None):
        for ch in range(depth): dma_chunk(vGW, s_gsrc, s_wstr, 128, s_gl, ch * 8192)
        for ch in range(8):
            A(f"s_waitcnt vmcnt({8 * min(depth - 1, 7 - ch)})")
            if fuse and ch == 0: A("s_barrier")
            for k4 in range(4):
                ks = ch * 4 + k4
                for t in range(2):
                    for hh in range(2):
                        a0 = (t * 32 + ks) * 4 + 2 * hh
                        A(f"ds_read_b64_tr_b16 a[{a0}:{a0+1}], {vGTr} offset:{(ch % depth) * 8192 + (32 * k4 + 4 * hh) * 64 + 8 * t}")
            A("s_waitcnt lgkmcnt(0)")
            if ch + depth < 8: dma_chunk(vGW, s_gsrc, s_wstr, 128, s_gl, (ch % depth) * 8192)
            if fuse: fuse(ch)
    A(f"s_mov_b32 {s_isq}, 0")
    A(f"s_cmp_ge_u32 {s_g}, 96\ns_cbranch_scc1 L_gB")
    A(f"s_lshr_b32 {s_t0}, {s_g}, 5\ns_and_b32 {s_t1}, {s_g}, 31")
    A(f"s_mov_b32 s12, s{P.P_WK}\ns_mov_b32 s13, s{P.P_WK+1}\ns_mov_b32 {s_obase}, {KXF}\ns_mov_b32 {s_type}, 0")
    A(f"s_cmp_eq_u32 {s_t0}, 1\ns_cselect_b32 s12, s{P.P_WV}, s12\ns_cselect_b32 s13, s{P.P_WV+1}, s13\ns_cselect_b32 {s_obase}, {VXF}, {s_obase}\ns_cselect_b32 {s_type}, 1, 0")
    A(f"s_cmp_eq_u32 {s_t0}, 2\ns_cselect_b32 s12, s{P.P_WQ}, s12\ns_cselect_b32 s13, s{P.P_WQ+1}, s13\ns_cselect_b32 {s_obase}, {QXF}, {s_obase}\ns_cselect_b32 {s_isq}, 1, 0")
    A(f"s_mov_b32 s14, {8*MB}\ns_mov_b32 {s_wstr}, 8192\ns_lshl_b32 {s_wcol}, {s_t1}, 8\ns_mov_b32 {s_ostr}, 0x40000")
    A(f"s_mov_b32 s16, s{P.P_AX}\ns_mov_b32 s17, s{P.P_AX+1}")
    A("s_branch L_gP")
    A("L_gB:")
    A(f"s_sub_u32 {s_t2}, {s_g}, 96\ns_lshr_b32 {s_t0}, {s_t2}, 3\ns_and_b32 {s_t1}, {s_t2}, 7")
    A(f"s_mov_b32 s12, s{P.P_WQKV}\ns_mov_b32 s13, s{P.P_WQKV+1}\ns_mov_b32 s14, {6*MB}\ns_mov_b32 {s_wstr}, 6144\ns_lshl_b32 {s_wcol}, {s_t2}, 8\ns_mov_b32 {s_ostr}, 0x10000")
    A(f"s_lshl_b32 {s_obase}, {s_t0}, 22\ns_add_u32 {s_obase}, {s_obase}, {QBF}")
    A(f"s_cmp_eq_u32 {s_t0}, 2\ns_cselect_b32 {s_type}, 1, 0")
    A(f"s_mov_b32 s16, s{P.P_BX}\ns_mov_b32 s17, s{P.P_BX+1}")
    A("L_gP:")
    A(f"s_mov_b32 s18, {4*MB}")
    A(f"s_lshl_b32 {s_t1}, {s_t1}, 2\ns_add_u32 {s_t1}, {s_t1}, {s_wave}\ns_lshl_b32 {s_t1}, {s_t1}, 11\ns_add_u32 {s_t1}, {s_t1}, {s_obase}\nv_add_u32 {vO}, {s_t1}, {vL16}")
    A(f"s_lshl_b32 {s_t1}, {s_g}, 2\ns_add_u32 {s_t1}, {s_t1}, {s_wave}\ns_lshl_b32 {s_t1}, {s_t1}, 6")
    lane0_addr(vGF, s_t1)
    A(f"s_lshl_b32 {s_t1}, {s_t1}, 4\ns_add_u32 {s_t1}, {s_t1}, {PART0 + 0x80000}\ns_cmp_lt_u32 {s_g}, 32\ns_cselect_b32 {s_t1}, {s_t1}, {OOB // 2}\nv_add_u32 {vPz}, {s_t1}, {vL16}")
    for i in range(4): A(f"v_mov_b32 {POI[i]}, -1")
    A(f"v_lshrrev_b32 {vT0}, 2, {vJ}\nv_lshlrev_b32 {vT0}, 3, {vT0}\nv_and_b32 {vT1}, 3, {vJ}\nv_add_u32 {vT0}, {vT0}, {vT1}\nv_lshlrev_b32 {vT0}, 10, {vT0}")
    A(f"v_xor_b32 {vT1}, {vG}, {vJ}")
    for q in range(4):
        A(f"v_xor_b32 {vT2}, {4*q}, {vT1}\nv_lshl_add_u32 {vRB[0][q]}, {vT2}, 4, {vT0}\nv_add_u32 {vRB[1][q]}, 65536, {vRB[0][q]}")
    A(f"s_lshl_b32 {s_t0}, {s_wave}, 6")
    for q in range(4):
        A(f"s_add_u32 {s_t1}, {s_t0}, {16*q}\nv_xor_b32 {vXq[q]}, {s_t1}, {vL16}")
    A(f"s_lshl_b32 {s_xsrc}, {s_wave}, 14")
    A(f"s_lshl_b32 {s_m0}, {s_wave}, 13")
    def x_dma(A, hh, r):
        A(f"s_add_u32 m0, {s_m0}, {(hh & 3) * 32768 + r * 1024}")
        A(f"s_add_u32 {s_xs}, {s_xsrc}, {(hh >> 1) * 65536 + (hh & 1) * 1024 + r * 2048}")
        if opt.get('exp') == 'nodma' and hh >= 2: A(f"buffer_load_dword {vPfd}, {vTF}, {SX}, {s_xs} offen")
        else: A(f"buffer_load_dwordx4 {vXq[r & 3]}, {SX}, {s_xs} offen lds")
    def xrd(A, dst, n):
        n &= 127
        hh, ks, u = n >> 5, (n >> 1) & 15, n & 1
        A(f"ds_read_b128 {dst}, {vRB[hh >> 1][ks & 3]} offset:{(hh & 1) * 32768 + (ks >> 2) * 256 + u * 4096}")
    for hh in range(2):
        for r in range(8): x_dma(A, hh, r)
    PFD = opt.get('pfd', 5)
    A(f"s_and_b32 {s_t0}, {s_role}, 7\ns_lshl_b32 {s_t0}, {s_t0}, 13\ns_lshl_b32 {s_t1}, {s_wave}, 11\ns_add_u32 {s_t0}, {s_t0}, {s_t1}\ns_add_u32 {s_t0}, {s_t0}, 65536\ns_sub_u32 {s_t0}, {s_t0}, {s_xsrc}")
    A(f"v_lshlrev_b32 {vT0}, 7, {vLane}\nv_add_u32 {vT0}, {s_t0}, {vT0}\nv_mov_b32 {vT1}, {OOB}\nv_cmp_gt_u32 vcc, 16, {vLane}\nv_cndmask_b32 {vPf}, {vT1}, {vT0}, vcc")
    for k in range(PFD):
        A(f"s_add_u32 {s_xs}, {s_xsrc}, {k * 65536}\nbuffer_load_dword {vPfd}, {vPf}, {SX}, {s_xs} offen")
    A(f"v_add_u32 {vPf}, {PFD * 65536}, {vPf}")
    g_voff()
    A(f"s_lshl_b32 {s_gsrc}, {s_wave}, 6\ns_add_u32 {s_gsrc}, {s_gsrc}, {s_wcol}")
    def GW(t, ks): b = (t * 32 + ks) * 4; return f"a[{b}:{b+3}]"
    def pack(A, dst, lo, hi):
        A(f"v_cvt_pk_bf16_f32 {dst[0]}, {lo[0]}, {lo[1]}\nv_cvt_pk_bf16_f32 {dst[1]}, {lo[2]}, {lo[3]}")
        A(f"v_cvt_pk_bf16_f32 {dst[2]}, {hi[0]}, {hi[1]}\nv_cvt_pk_bf16_f32 {dst[3]}, {hi[2]}, {hi[3]}")
    def fuse0(ch):
        for n in range(8): xrd(A, XF[n], ch * 8 + n)
        A(f"s_waitcnt lgkmcnt(0)\ns_cmp_eq_u32 {s_type}, 1\ns_cbranch_scc1 L_f0n{ch}")
        for ty in 'TN':
            if ty == 'N': A(f"L_f0n{ch}:")
            for n in range(8):
                ks, u = ch * 4 + (n >> 1), n & 1
                for t in range(2):
                    cc = "0" if ks == 0 else str(GA[1][u * 2 + t])
                    ab = (GW(t, ks), XF[n]) if ty == 'T' else (XF[n], GW(t, ks))
                    A(f"v_mfma_f32_16x16x32_bf16 {GA[1][u*2+t]}, {ab[0]}, {ab[1]}, {cc}")
            if ty == 'T': A(f"s_branch L_f0d{ch}")
        A(f"L_f0d{ch}:")
    if opt.get('wopf', 1):
        A(f"s_cmp_eq_u32 {s_isq}, 0\ns_cbranch_scc1 L_gnw")
        A(f"s_mov_b32 s52, s{P.P_WO}\ns_mov_b32 s53, s{P.P_WO+1}\ns_mov_b32 s54, {8*MB}\ns_mov_b32 s55, 0x20000")
        A(f"s_and_b32 {s_t0}, {s_g}, 31\ns_lshl_b32 {s_t0}, {s_t0}, 2\ns_add_u32 {s_t0}, {s_t0}, {s_wave}\ns_lshl_b32 {s_t0}, {s_t0}, 16\nv_lshlrev_b32 {vT0}, 7, {vLane}")
        for k in range(8):
            A(f"buffer_load_dword {XF[k][0]}, {vT0}, s[52:55], {s_t0} offen\nbuffer_load_dword {XF[k][1]}, {vT0}, s[52:55], {s_t0} offen offset:64\ns_add_u32 {s_t0}, {s_t0}, 8192")
        A("L_gnw:")
    g_stage(65536, 3)
    g_wload(3, fuse0)
    confirm("g")
    A(f"s_nop 7\ns_cmp_eq_u32 {s_type}, 1\ns_cbranch_scc1 L_f0en")
    for f in range(2): pack(A, PK[f], GA[1][f * 2], GA[1][f * 2 + 1])
    A("s_branch L_f0ed\nL_f0en:")
    for f in range(2): pack(A, PK[f], GA[1][f], GA[1][2 + f])
    A("L_f0ed:")
    for f in range(2): A(f"buffer_store_dwordx4 {PK[f]}, {vO}, {WS}, 0 offen offset:{f*1024} sc1")
    A(f"buffer_store_dwordx4 {POI}, {vPz}, {WS}, 0 offen sc1")
    A(f"v_mov_b32 {vFv}, 1\ns_waitcnt vmcnt(0)")
    A(f"buffer_store_dword {vFv}, {vGF}, {WS}, 0 offen sc1")
    stamp(52)
    A(f"s_mov_b32 {s_blk}, 0\ns_mov_b32 {s_osoff}, {OOB}\ns_mov_b32 {s_onext}, 0")
    WPN = opt.get('wpn', 6)
    s_wp = "s46"
    A(f"s_mov_b32 s12, s{P.P_WO}\ns_mov_b32 s13, s{P.P_WO+1}\ns_mov_b32 s14, {8*MB}")
    A(f"s_bfe_u32 {s_t0}, {s_g}, 0x20003\ns_lshl_b32 {s_t0}, {s_t0}, 21\ns_and_b32 {s_t1}, {s_g}, 7\ns_lshl_b32 {s_t1}, {s_t1}, 2\ns_add_u32 {s_t1}, {s_t1}, {s_wave}\ns_lshl_b32 {s_t1}, {s_t1}, 6\ns_add_u32 {s_t0}, {s_t0}, {s_t1}")
    A(f"s_cmp_lt_u32 {s_g}, 64\ns_cselect_b32 {s_t0}, {s_t0}, {OOB // 2}\nv_lshlrev_b32 {vWp}, 11, {vLane}\nv_add_u32 {vWp}, {s_t0}, {vWp}")
    s_task, s_tgt, s_rk, s_kvd = "s48", "s49", "s50", "s51"
    A(f"s_cmp_eq_u32 {s_isq}, 0\ns_cbranch_scc1 L_noq")
    C.setup()
    A(f"s_and_b32 {s_t2}, {s_g}, 31\ns_lshl_b32 {s_t1}, {s_t2}, 7\ns_add_u32 {s_t1}, {s_t1}, {FLAGR}\nv_mov_b32 {vFa}, {s_t1}")
    A(f"s_lshl_b32 {s_t0}, {s_t2}, 4\ns_lshl_b32 {s_t1}, {s_wave}, 2\ns_add_u32 {s_t0}, {s_t0}, {s_t1}\ns_add_u32 {s_t0}, {s_t0}, {FLAGT}")
    lane0_addr(vTF, s_t0)
    A(f"s_lshl_b32 {s_task}, {s_wave}, 5\ns_add_u32 {s_task}, {s_task}, {s_t2}\ns_add_u32 {s_tgt}, {s_wave}, 1\ns_mov_b32 {s_rk}, 0")
    A(f"v_bfe_u32 {vT0}, {vLane}, 2, 1\nv_lshlrev_b32 {vT0}, 13, {vT0}\nv_and_b32 {vT1}, 3, {vLane}\nv_lshl_add_u32 {vT0}, {vT1}, 6, {vT0}\ns_lshl_b32 {s_t0}, {s_t2}, 8\nv_add_u32 {vKf}, {s_t0}, {vT0}\ns_mov_b32 {s_kvd}, 0")
    A("L_noq:")
    A("s_barrier")
    x_dma(A, 2, 0); x_dma(A, 2, 1)
    A("L_grd:")
    for n in range(8): xrd(A, XF[n], n)
    A(f"s_cmp_eq_u32 {s_type}, 1\ns_cbranch_scc1 L_gl_N")

    def stream_body(A, q, ty, dma, rd, hook):
        for hh in range(4):
            par = hh >> 1; acc = GA[par]
            for k in range(16):
                ks = (hh & 1) * 16 + k
                hook(hh, k, 'pre')
                if k == 12: A(f"s_waitcnt vmcnt({q.younger(f'd{(hh + 1) & 3}')})\ns_barrier")
                A("s_waitcnt lgkmcnt(6)" if opt.get('exp') != 'nord' else "s_waitcnt lgkmcnt(3)")
                for u in range(2):
                    n = hh * 32 + 2 * k + u
                    xf = XF[n % 8]
                    for t in range(2):
                        cc = "0" if ks == 0 else str(acc[u * 2 + t])
                        if ty == 'T': A(f"v_mfma_f32_16x16x32_bf16 {acc[u*2+t]}, {GW(t, ks)}, {xf}, {cc}")
                        else: A(f"v_mfma_f32_16x16x32_bf16 {acc[u*2+t]}, {xf}, {GW(t, ks)}, {cc}")
                    if opt.get('exp') == 'nord' and u == 1: A("s_nop 0")
                    else: rd(A, xf, n + 8)
                    if u == 0 and (k & 1):
                        if k < 12: dma(A, hh + 2, 2 + (k >> 1)); q.op(f'd{(hh + 2) & 3}')
                        else: dma(A, hh + 3, (k - 12) >> 1); q.op(f'd{(hh + 3) & 3}')
                hook(hh, k, 'post')
    def two_pass(emit):
        q = VQ(); emit(Asm(), q); q.second(); emit(A, q)

    def g_loop(ty):
        def epi(A, acc, f, adv=True):
            lo, hi = (acc[f * 2 + 0], acc[f * 2 + 1]) if ty == 'T' else (acc[0 * 2 + f], acc[1 * 2 + f])
            pack(A, PK[f], lo, hi)
            if f == 1 and ty == 'T': A(f"buffer_store_dwordx4 {POI}, {vPz}, {WS}, {s_osoff} offen sc1")
            A(f"buffer_store_dwordx4 {PK[f]}, {vO}, {WS}, {s_osoff} offen offset:{f*1024} sc1")
            if f == 1 and adv: A(f"s_mov_b32 {s_osoff}, {s_onext}\ns_add_u32 {s_onext}, {s_onext}, {s_ostr}")
        def emit(A, q):
            def hook(hh, k, ph):
                if ph != 'post': return
                par = hh >> 1
                if (hh & 1) == 0 and k in (2, 4):
                    epi(A, GA[1 - par], (k >> 1) - 1); q.op('st')
                    if k == 4 and ty == 'T': q.op('st')
                if (hh & 1) == 1 and k == 4:
                    A(f"s_waitcnt vmcnt({q.younger('st')})\ns_max_u32 {s_t0}, {s_blk}, 1\nv_mov_b32 {vFv}, {s_t0}")
                    A(f"buffer_store_dword {vFv}, {vGF}, {WS}, 0 offen sc1"); q.op('fl')
                    A(f"s_add_u32 {s_xs}, {s_xsrc}, {par * 65536}\nbuffer_load_dword {vPfd}, {vPf}, {SX}, {s_xs} offen"); q.op('pf')
                    A(f"s_sub_u32 {s_wp}, {s_blk}, {NSEG - WPN}\ns_lshl_b32 {s_t0}, {s_wp}, 17\ns_cmp_lt_u32 {s_wp}, {WPN}\ns_cselect_b32 {s_wp}, {s_t0}, {OOB}")
                    A(f"buffer_load_dword {vPfd}, {vWp}, {SW}, {s_wp} offen"); q.op('pf')
                    A(f"s_add_u32 {s_blk}, {s_blk}, 1")
            stream_body(A, q, ty, x_dma, xrd, hook)
        A(f"L_gl_{ty}:")
        two_pass(emit)
        A(f"s_add_u32 {s_xsrc}, {s_xsrc}, 131072")
        if ty == 'T': A(f"s_cmp_eq_u32 {s_isq}, 1\ns_cbranch_scc1 L_qhook")
        A(f"s_cmp_lg_u32 {s_blk}, {NSEG}\ns_cbranch_scc1 L_gl_{ty}")
        A("s_nop 7")
        epi(A, GA[1], 0); epi(A, GA[1], 1)
        A(f"s_waitcnt vmcnt(0) lgkmcnt(0)\nv_mov_b32 {vFv}, {s_blk}")
        A(f"buffer_store_dword {vFv}, {vGF}, {WS}, 0 offen sc1")
        stamp(56)
        A(f"s_cmp_ge_u32 {s_g}, 96\ns_cbranch_scc1 L_b2go\ns_branch L_fg")
        if ty == 'T':
            A("L_qhook:")
            A(f"s_and_b32 {s_t0}, {s_blk}, 3\ns_cmp_lg_u32 {s_t0}, 0\ns_cbranch_scc1 L_gl_T")
            A(f"buffer_load_dwordx4 {vFd}, {vFa}, {WS}, 0 offen sc1")
            A("s_nop 7")
            epi(A, GA[1], 0, False); epi(A, GA[1], 1, False)
            A(f"s_mov_b32 {s_osoff}, {OOB}")
            A("s_waitcnt vmcnt(0) lgkmcnt(0)\ns_barrier")
            A(f"v_min_i32 {vFd[0]}, {vFd[0]}, {vFd[1]}\nv_min3_i32 {vFd[0]}, {vFd[0]}, {vFd[2]}, {vFd[3]}\nv_readfirstlane_b32 {s_rk}, {vFd[0]}")
            A(f"s_cmp_eq_u32 {s_blk}, {NSEG}\ns_cbranch_scc1 L_t6r")
            A(f"s_cmp_ge_i32 {s_rk}, {s_tgt}\ns_cbranch_scc0 L_grd")
            A(f"s_cmp_ge_u32 {s_blk}, {s_tgt}\ns_cbranch_scc0 L_grd")
            A("L_t6r:")
            V.next = tbase
            def wait_kv():
                A(f"s_cmp_eq_u32 {s_kvd}, 1\ns_cbranch_scc1 L_wk_done\ns_branch L_wk_go")
                A("L_wk:\ns_sleep 16\nL_wk_go:")
                A(f"buffer_load_dword {vFd[0]}, {vKf}, {WS}, 0 offen sc1")
                budget()
                A(f"s_waitcnt vmcnt(0)\nv_cmp_gt_i32 vcc, {s_tgt}, {vFd[0]}\ns_cbranch_vccnz L_wk")
                A(f"v_cmp_gt_i32 vcc, {NSEG}, {vFd[0]}\ns_cbranch_vccnz L_wk_done\ns_mov_b32 {s_kvd}, 1")
                A("L_wk_done:")
            def wait_r():
                A(f"s_cmp_ge_i32 {s_rk}, {s_tgt}\ns_cbranch_scc1 L_wr_done\ns_branch L_wr_go")
                A(f"L_wr:\ns_sleep 4\ns_add_u32 {s_t0}, {s_rk}, 2\ns_cmp_ge_i32 {s_t0}, {s_tgt}\ns_cbranch_scc1 L_wr_go\ns_sleep 40")
                A("L_wr_go:")
                A(f"buffer_load_dwordx4 {vFd}, {vFa}, {WS}, 0 offen sc1")
                budget()
                A("s_waitcnt vmcnt(0)")
                A(f"v_min_i32 {vFd[0]}, {vFd[0]}, {vFd[1]}\nv_min3_i32 {vFd[0]}, {vFd[0]}, {vFd[2]}, {vFd[3]}\nv_readfirstlane_b32 {s_rk}, {vFd[0]}")
                A(f"s_cmp_ge_i32 {s_rk}, {s_tgt}\ns_cbranch_scc0 L_wr")
                A("L_wr_done:")
            emit_t6(C, s_task, "sc1", wait_r, wait_kv)
            A(f"s_add_u32 {s_t0}, {s_tgt}, 3\nv_mov_b32 {vFv}, {s_t0}\ns_waitcnt vmcnt(0)")
            A(f"buffer_store_dword {vFv}, {vTF}, {WS}, 0 offen sc1")
            A(f"s_add_u32 {s_task}, {s_task}, 128\ns_add_u32 {s_tgt}, {s_tgt}, 4")
            A(f"s_cmp_lg_u32 {s_blk}, {NSEG}\ns_cbranch_scc1 L_grd")
            A(f"s_cmp_le_u32 {s_tgt}, {NSEG}\ns_cbranch_scc1 L_t6r")
            stamp(44)
            A("s_branch L_end")
    g_loop('T')
    g_loop('N')

    A("L_fg:")
    NT = opt.get('nt', 2); assert NT in (2, 4)
    FPD = opt.get('fpd', 2)
    V.next = PIN[3].base + 4
    PARK = PIN
    PG = [V.alloc(f'pg{i}', 4) for i in range(6)]
    UP = V.alloc('up', 2); SUMR = [V.alloc(f'sum{i}', 4) for i in range(4)]
    M.load_kernargs(A); A("s_waitcnt lgkmcnt(0)")
    s_set, s_kc, s_ng, s_nblk, s_clamp, s_tin = "s48", "s49", "s50", "s51", "s46", "s45"
    s_inb = ["s52", "s53", "s54", "s55"]; s_istr2 = "s56"
    s_e1, s_e2, s_px, s_pxn, s_out, s_outn, s_outstr = "s57", "s58", "s59", "s60", "s61", "s62", "s63"
    s_ppx, s_pout, s_kco = "s35", "s36", "s37"
    s_pe = ["s39", "s40", "s47"]
    vTg, vTs, vFl, vPa, vOa, vOb = vXq[0], vXq[1], vXq[2], vXq[3], vPf, vPfd
    vR0, vR1 = vRB[0][0], vRB[1][0]
    OUT = "s[16:19]"
    A(f"s_and_b32 {s_ng}, {s_g}, 7\ns_mov_b32 {s_wstr}, 2048")
    A(f"s_mov_b32 s16, s{P.P_OUT}\ns_mov_b32 s17, s{P.P_OUT+1}\ns_mov_b32 s18, {8*MB}")
    A(f"v_and_b32 {vT2}, 31, {vLane}\nv_lshlrev_b32 {vT2}, 2, {vT2}")
    A(f"s_lshr_b32 {s_t2}, {s_wave}, 1\ns_and_b32 {s_t3}, {s_wave}, 1\ns_lshl_b32 {s_t3}, {s_t3}, 13")
    A(f"s_cmp_ge_u32 {s_g}, 96\ns_cbranch_scc1 L_fgB")
    A(f"s_lshr_b32 {s_set}, {s_g}, 5\ns_bfe_u32 {s_kc}, {s_g}, 0x20003\ns_mov_b32 {s_nblk}, {32 - NT}\ns_add_u32 {s_clamp}, {s_set}, {63 - 2 * NT}")
    A(f"s_add_u32 {s_e1}, {s_kc}, 1\ns_and_b32 {s_e1}, {s_e1}, 3\ns_mov_b32 {s_e2}, {s_kc}")
    A(f"s_mov_b32 s12, s{P.P_WO}\ns_mov_b32 s13, s{P.P_WO+1}\ns_mov_b32 s14, {8*MB}")
    A(f"s_lshl_b32 {s_t0}, {s_set}, 18\ns_lshl_b32 {s_t1}, {s_t2}, 17\ns_add_u32 {s_t0}, {s_t0}, {s_t1}\ns_lshl_b32 {s_t1}, {s_kc}, 15\ns_add_u32 {s_t0}, {s_t0}, {s_t1}\ns_add_u32 {s_t0}, {s_t0}, {s_t3}\ns_add_u32 {s_inb[0]}, {s_t0}, {OAF}")
    A(f"s_mov_b32 {s_t0}, {2 * 0x40000}\ns_mov_b32 {s_t1}, 2\ns_mov_b32 {s_wcol}, 0")
    A(f"s_lshl_b32 {s_t2}, {s_kc}, 7\ns_add_u32 {s_t2}, {s_t2}, {FLAGT}")
    A("s_branch L_fgP")
    A("L_fgB:")
    A(f"s_sub_u32 {s_set}, {s_g}, 96\ns_lshr_b32 {s_set}, {s_set}, 3\ns_mov_b32 {s_kc}, 4\ns_mov_b32 {s_nblk}, 16\ns_mov_b32 {s_clamp}, -2\ns_mov_b32 {s_e1}, 7\ns_mov_b32 {s_e2}, 7")
    A(f"s_mov_b32 s12, s{P.P_WOB}\ns_mov_b32 s13, s{P.P_WOB+1}\ns_mov_b32 s14, {2*MB}")
    A(f"s_lshl_b32 {s_t0}, {s_set}, 16\ns_lshl_b32 {s_t1}, {s_t2}, 15\ns_add_u32 {s_t0}, {s_t0}, {s_t1}\ns_add_u32 {s_t0}, {s_t0}, {s_t3}\ns_add_u32 {s_inb[0]}, {s_t0}, {OBF}")
    A(f"s_mov_b32 {s_t0}, {4 * 0x10000}\ns_mov_b32 {s_t1}, 4\ns_mov_b32 {s_wcol}, 2048\ns_mov_b32 {s_t2}, {DONEB}\nv_mov_b32 {vT2}, 0")
    A("L_fgP:")
    for i in range(1, 4): A(f"s_add_u32 {s_inb[i]}, {s_inb[i-1]}, {s_t0}")
    A(f"s_lshl_b32 {s_istr2}, {s_t0}, 1\ns_lshl_b32 {s_outstr}, {s_t1}, 17")
    A(f"v_add_u32 {vT2}, {s_t2}, {vT2}")
    A(f"s_and_b32 {s_t2}, {s_g}, 0x27\ns_lshl_b32 {s_t2}, {s_t2}, 7\ns_add_u32 {s_t2}, {s_t2}, {FLAGC}")
    A(f"v_and_b32 {vT0}, 3, {vLane}\nv_lshlrev_b32 {vT0}, 10, {vT0}\nv_add_u32 {vT0}, {s_t2}, {vT0}\nv_cmp_gt_u32 vcc, 32, {vLane}\nv_cndmask_b32 {vFa}, {vT0}, {vT2}, vcc")
    A(f"v_mov_b32 {vT0}, 1\nv_mov_b32 {vT1}, {s_t1}\nv_cndmask_b32 {vTs}, {vT0}, {vT1}, vcc")
    A(f"s_add_u32 {s_t2}, {s_set}, {s_t1}\ns_add_u32 {s_t2}, {s_t2}, 1\ns_cmp_eq_u32 {s_kc}, 4\ns_cselect_b32 {s_t2}, 127, {s_t2}\nv_mov_b32 {vT0}, -3\nv_mov_b32 {vT1}, {s_t2}\nv_cndmask_b32 {vTg}, {vT0}, {vT1}, vcc")
    A(f"s_and_b32 {s_t2}, {s_g}, 63\ns_lshl_b32 {s_t2}, {s_t2}, 7\ns_add_u32 {s_t2}, {s_t2}, {FLAGC}")
    A(f"s_cmp_lt_u32 {s_kc}, 4\ns_cselect_b32 {s_t2}, {s_t2}, {OOB}\ns_cmp_eq_u32 {s_wave}, 0\ns_cselect_b32 {s_t2}, {s_t2}, {OOB}")
    A(f"s_cmp_eq_u32 {s_wave}, 0\ns_cbranch_scc1 L_fgw0p")
    A(f"v_mov_b32 {vFa}, {OOB}\nv_mov_b32 {vTs}, 0\nv_mov_b32 {vTg}, -2")
    A("L_fgw0p:")
    lane0_addr(vGF, s_t2)
    A(f"s_lshl_b32 {s_t2}, {s_ng}, 2\ns_add_u32 {s_t2}, {s_t2}, {s_wave}\ns_lshl_b32 {s_t3}, {s_t2}, 12\nv_add_u32 {vPa}, {s_t3}, {vL16}")
    A(f"s_lshl_b32 {s_pxn}, {s_set}, 19\ns_add_u32 {s_pxn}, {s_pxn}, {PX}\ns_lshl_b32 {s_outn}, {s_set}, 17\ns_lshl_b32 {s_kco}, {s_kc}, 17")
    for i in range(3): A(f"s_xor_b32 {s_pe[i]}, {s_kco}, {(i + 1) << 17}")
    A(f"s_mov_b32 {s_px}, {OOB}\ns_mov_b32 {s_out}, {OOB}\ns_mov_b32 {s_ppx}, {OOB}\ns_mov_b32 {s_pout}, {OOB}")
    A(f"v_lshrrev_b32 {vT0}, 2, {vJ}\nv_lshlrev_b32 {vT0}, 3, {vT0}\nv_and_b32 {vT1}, 3, {vJ}\nv_add_u32 {vT0}, {vT0}, {vT1}\nv_lshlrev_b32 {vT0}, 12, {vT0}\nv_lshl_add_u32 {vT0}, {vG}, 4, {vT0}")
    A(f"s_lshl_b32 {s_t2}, {s_t2}, 6\ns_add_u32 {s_t3}, {s_t2}, {s_wcol}\nv_add_u32 {vOa}, {s_t3}, {vT0}\nv_add_u32 {vOb}, 16384, {vOa}")
    A(f"v_mov_b32 {vR0}, {vL16}\nv_add_u32 {vR1}, 65536, {vL16}")
    vFp, vTp, vFpd = vRB[0][1], vRB[0][2], vRB[0][3]
    A(f"s_cmp_eq_u32 {s_kc}, 4\ns_cselect_b32 {s_t0}, 15, 17\ns_lshr_b32 {s_t1}, {s_ng}, 2\ns_lshl_b32 {s_t0}, {s_t1}, {s_t0}\ns_and_b32 {s_t1}, {s_ng}, 3\ns_lshl_b32 {s_t1}, {s_t1}, 13\ns_add_u32 {s_t0}, {s_t0}, {s_t1}")
    A(f"s_lshr_b32 {s_t1}, {s_istr2}, 1\ns_mul_i32 {s_t1}, {s_t1}, {FPD}\ns_add_u32 {s_t0}, {s_t0}, {s_t1}\ns_cmp_eq_u32 {s_wave}, 0\ns_cselect_b32 {s_t0}, {s_t0}, {OOB // 2}")
    A(f"v_lshlrev_b32 {vFp}, 7, {vLane}\nv_add_u32 {vFp}, {s_t0}, {vFp}")
    A(f"s_and_b32 {s_t1}, {s_kc}, 3\ns_lshl_b32 {s_gsrc}, {s_t1}, 21\ns_add_u32 {s_gsrc}, {s_gsrc}, {s_t2}")
    g_voff()
    A(f"s_sub_u32 {s_t0}, {s_kc}, {4 - NT}\ns_cmp_lt_u32 {s_t0}, {NT}\ns_cbranch_scc0 L_fgnp")
    for i in range(4): A(f"v_mov_b32 {POI[i]}, -1")
    A(f"s_lshl_b32 {s_t0}, {s_t0}, 19\ns_lshl_b32 {s_t1}, {s_set}, 21\ns_add_u32 {s_t0}, {s_t0}, {s_t1}\ns_add_u32 {s_t0}, {s_t0}, {PXT}")
    for kk in range(3):
        A(f"s_add_u32 {s_t1}, {s_t0}, {s_pe[kk]}")
        for i in range(2): A(f"buffer_store_dwordx4 {POI}, {vPa}, {WS}, {s_t1} offen offset:{i*1024} sc1")
    A("L_fgnp:")
    g_stage(0, 5)
    A("s_waitcnt vmcnt(0)\ns_barrier")
    g_wload(5)
    def spin(lab, back, slp=16):
        A(f"{lab}:\ns_sleep {slp}")
        A(f"buffer_load_dword {vFl}, {vFa}, {WS}, 0 offen sc1")
        budget()
        A(f"s_waitcnt vmcnt(0)\nv_cmp_gt_i32 vcc, {vTg}, {vFl}\ns_cbranch_vccnz {lab}")
        if back: A(f"s_branch {back}")
    spin("L_fgw0", None)
    A("s_barrier")
    def f_dma(A, hh, r):
        A(f"s_add_u32 m0, {s_m0}, {(hh & 3) * 32768 + r * 1024}")
        A(f"s_add_u32 {s_xs}, {s_inb[hh >> 1]}, {(hh & 1) * 16384 + r * 1024}")
        A(f"buffer_load_dwordx4 {vL16}, {WS}, {s_xs} offen lds")
    def f_rd(A, dst, n):
        n &= 127
        hh, ks, u = n >> 5, (n >> 1) & 15, n & 1
        A(f"ds_read_b128 {dst}, {vR0 if hh < 2 else vR1} offset:{(hh & 1) * 32768 + u * 16384 + ks * 1024}")
    for hh in range(2):
        for r in range(8): f_dma(A, hh, r)
    A(f"s_mov_b32 {s_blk}, 0")
    stamp(36)
    A("s_waitcnt vmcnt(0)\ns_barrier")
    f_dma(A, 2, 0); f_dma(A, 2, 1)
    for n in range(8): f_rd(A, XF[n], n)
    def out_store(A, src, so):
        for u in range(2):
            pack(A, PK[u], src[u * 2], src[u * 2 + 1])
            A(f"buffer_store_dwordx4 {PK[u]}, {vOa if u == 0 else vOb}, {OUT}, {so} offen")
    def part_store(A, acc):
        A(f"s_add_u32 {s_t0}, {s_px}, {s_kco}")
        for u in range(2):
            pack(A, PK[u], acc[u * 2], acc[u * 2 + 1])
            A(f"buffer_store_dwordx4 {PK[u]}, {vPa}, {WS}, {s_t0} offen offset:{u*1024} sc1")
    def e1(A, acc, tag):
        A(f"s_and_b32 {s_t0}, {s_blk}, 3\ns_cmp_eq_u32 {s_t0}, {s_e1}\ns_cbranch_scc1 L_e1p{tag}")
        A(f"s_cmp_eq_u32 {s_kc}, 4\ns_cbranch_scc1 L_e1o{tag}")
        part_store(A, acc)
        A(f"s_branch L_e1d{tag}")
        A(f"L_e1o{tag}:")
        out_store(A, acc, s_out)
        A(f"s_branch L_e1d{tag}")
        A(f"L_e1p{tag}:")
        for i in range(4):
            for k in range(4): A(f"v_mov_b32 {PARK[i][k]}, {acc[i][k]}")
        A(f"s_mov_b32 {s_ppx}, {s_px}\ns_mov_b32 {s_pout}, {s_out}")
        A(f"L_e1d{tag}:")
        A(f"s_mov_b32 {s_px}, {s_pxn}\ns_add_u32 {s_pxn}, {s_pxn}, {2 << 19}\ns_mov_b32 {s_out}, {s_outn}\ns_add_u32 {s_outn}, {s_outn}, {s_outstr}")
    def pg_load(A, base, kk, fl=""):
        A(f"s_add_u32 {s_t0}, {base}, {s_pe[kk]}")
        for u in range(2): A(f"buffer_load_dwordx4 {PG[kk*2+u]}, {vPa}, {WS}, {s_t0} offen offset:{u*1024} {fl}")
    def pg_fin(A, own, so):
        for kk in range(3):
            for u in range(2):
                for d in range(4):
                    dst = SUMR[u * 2 + (d >> 1)][2 * (d & 1):2 * (d & 1) + 2]
                    src = own[u * 2 + (d >> 1)][2 * (d & 1):2 * (d & 1) + 2] if kk == 0 else dst
                    x = PG[kk * 2 + u][d]
                    A(f"v_lshlrev_b32 {UP[0]}, 16, {x}\nv_and_b32 {UP[1]}, 0xffff0000, {x}\nv_pk_add_f32 {dst}, {src}, {UP}")
        out_store(A, SUMR, so)
    def emit(A, q):
        def hook(hh, k, ph):
            par = hh >> 1
            if ph == 'pre':
                if (hh & 1) == 1 and k == 12:
                    A(f"s_waitcnt vmcnt({min(q.younger('fld'), q.younger('st'))})")
                    A(f"v_cmp_gt_i32 vcc, {vTg}, {vFl}\ns_cbranch_vccnz L_fgs{hh}\nL_fgb{hh}:")
                return
            if (hh & 1) == 0 and k == 2:
                e1(A, GA[1 - par], f"{hh}"); q.op('st', True)
            if (hh & 1) == opt.get('e2h', 1) and k == opt.get('e2k', 4):
                A(f"s_and_b32 {s_t0}, {s_blk}, 3\ns_cmp_lg_u32 {s_t0}, {s_e2}\ns_cbranch_scc1 L_e2d{hh}")
                A(f"s_waitcnt vmcnt({q.younger('pin')})")
                pg_fin(A, PARK, s_pout); q.op('o2', True)
                A(f"s_mov_b32 {s_ppx}, {OOB}")
                A(f"L_e2d{hh}:")
            if (hh & 1) == opt.get('flh', 0) and k == opt.get('flk', 6):
                A(f"v_add_u32 {vTg}, {vTg}, {vTs}\nv_min_i32 {vTg}, {s_clamp}, {vTg}")
                A(f"buffer_load_dword {vFl}, {vFa}, {WS}, 0 offen sc1"); q.op('fld')
            if (hh & 1) == 1 and k == 12:
                A(f"v_mov_b32 {vFv}, {s_blk}")
                A(f"buffer_store_dword {vFv}, {vGF}, {WS}, 0 offen sc1"); q.op('fl')
                A(f"s_add_u32 {s_blk}, {s_blk}, 1")
                A(f"s_add_u32 {s_t0}, {s_blk}, {1 + FPD}\ns_lshl_b32 {s_t1}, {s_t0}, 1\ns_add_u32 {s_t1}, {s_t1}, {s_set}\ns_cmp_eq_u32 {s_kc}, 4\ns_cselect_b32 {s_t1}, -2, {s_t1}")
                A(f"v_cmp_ge_i32 vcc, {s_t1}, {vFl}\ns_cmp_lt_u32 {s_t0}, {s_nblk}\ns_cselect_b32 {s_t0}, {s_inb[2 + par]}, {OOB}\ns_nop 2\ns_cmp_eq_u32 vcc_lo, 0\ns_cselect_b32 {s_t0}, {s_t0}, {OOB}")
                A(f"buffer_load_dword {vFpd}, {vFp}, {WS}, {s_t0} offen"); q.op('fp')
            if (hh & 1) == 1 and k in (13, 14, 15):
                A(f"s_and_b32 {s_t0}, {s_blk}, 3\ns_cmp_lg_u32 {s_t0}, {s_e2}\ns_cbranch_scc1 L_pl{hh}_{k}")
                pg_load(A, s_ppx, k - 13); q.op('pin', True)
                A(f"L_pl{hh}_{k}:")
        stream_body(A, q, 'T', f_dma, f_rd, hook)
    A("L_fgl:")
    two_pass(emit)
    for r in s_inb: A(f"s_add_u32 {r}, {r}, {s_istr2}")
    A(f"s_add_u32 {s_t0}, {s_blk}, 2\ns_cmp_eq_u32 {s_t0}, {s_nblk}\ns_cselect_b32 {s_tin}, {s_inb[2]}, {s_tin}\ns_cselect_b32 {s_inb[2]}, {OOB}, {s_inb[2]}\ns_cselect_b32 {s_inb[3]}, {OOB}, {s_inb[3]}")
    if STAMP:
        A(f"s_cmp_lg_u32 {s_blk}, 16\ns_cbranch_scc1 L_fgst"); stamp(28); A("L_fgst:")
    A(f"s_cmp_lg_u32 {s_blk}, {s_nblk}\ns_cbranch_scc1 L_fgl")
    A("s_waitcnt lgkmcnt(0)\ns_nop 7")
    stamp(32)
    e1(A, GA[1], "x")
    A(f"s_waitcnt vmcnt(0)\ns_barrier\nv_mov_b32 {vFv}, {s_blk}")
    A(f"buffer_store_dword {vFv}, {vGF}, {WS}, 0 offen sc1")
    A(f"s_cmp_eq_u32 {s_kc}, 4\ns_cbranch_scc1 L_fgdone")
    A(f"s_cmp_eq_u32 {s_ppx}, {OOB}\ns_cbranch_scc1 L_fgt0")
    A(f"v_mov_b32 {vT0}, {s_nblk}\nv_mov_b32 {vT1}, -2\nv_lshrrev_b32 {vT2}, 5, v0\nv_cmp_eq_u32 vcc, 1, {vT2}\nv_cndmask_b32 {vTg}, {vT1}, {vT0}, vcc")
    spin("L_fgw1", None, 3)
    A("s_barrier")
    for kk in range(3): pg_load(A, s_ppx, kk)
    A("s_waitcnt vmcnt(0)")
    pg_fin(A, PARK, s_pout)
    A("L_fgt0:")
    A(f"s_lshl_b32 {s_px}, {s_set}, 21\ns_add_u32 {s_px}, {s_px}, {PXT}\ns_mov_b32 {s_inb[0]}, {s_tin}")
    A(f"s_add_u32 {s_t0}, {s_set}, {65 - 2 * NT}\nv_mov_b32 {vT0}, {s_t0}\nv_mov_b32 {vT1}, -2\nv_cmp_gt_u32 vcc, 32, v0\nv_cndmask_b32 {vTg}, {vT1}, {vT0}, vcc")
    A(f"v_mov_b32 {vT0}, 2\nv_mov_b32 {vT1}, 0\nv_cndmask_b32 {vTs}, {vT1}, {vT0}, vcc")
    A("L_ftl:")
    spin("L_ftw", None, 3)
    A("s_barrier")
    for hh in range(2):
        for r in range(8): f_dma(A, hh, r)
    acc = GA[0]
    A("s_waitcnt vmcnt(8)\ns_barrier")
    for n in range(8): f_rd(A, XF[n], n)
    for ks in range(32):
        if ks == 12: A("s_waitcnt vmcnt(0)\ns_barrier")
        A(f"s_waitcnt lgkmcnt({min(8, 64 - 2 * ks) - 2})")
        for u in range(2):
            n = 2 * ks + u
            for t in range(2): A(f"v_mfma_f32_16x16x32_bf16 {acc[u*2+t]}, {GW(t, ks)}, {XF[n % 8]}, {'0' if ks == 0 else acc[u*2+t]}")
            if n + 8 < 64: f_rd(A, XF[n % 8], n + 8)
    A(f"s_and_b32 {s_t0}, {s_blk}, 3\ns_cmp_eq_u32 {s_t0}, {s_kc}\ns_cbranch_scc1 L_ftg")
    A("s_nop 4")
    part_store(A, acc)
    A("s_branch L_ftn")
    A("L_ftg:")
    for kk in range(3): pg_load(A, s_px, kk, "sc1")
    budget()
    A("s_waitcnt vmcnt(0)")
    regs = [PG[i][k] for i in range(6) for k in range(4)]
    A(f"v_max3_u32 {vT0}, {regs[0]}, {regs[1]}, {regs[2]}"); regs = regs[3:]
    while len(regs) >= 2: A(f"v_max3_u32 {vT0}, {vT0}, {regs[0]}, {regs[1]}"); regs = regs[2:]
    if regs: A(f"v_max_u32 {vT0}, {vT0}, {regs[0]}")
    A(f"v_cmp_eq_u32 vcc, -1, {vT0}\ns_cbranch_vccnz L_ftg")
    pg_fin(A, acc, s_out)
    A("L_ftn:")
    A(f"s_add_u32 {s_out}, {s_out}, {s_outstr}\ns_add_u32 {s_px}, {s_px}, {1 << 19}\ns_add_u32 {s_inb[0]}, {s_inb[0]}, {2 * 0x40000}\nv_add_u32 {vTg}, {vTg}, {vTs}")
    A(f"s_add_u32 {s_blk}, {s_blk}, 1\ns_cmp_lt_u32 {s_blk}, 32\ns_cbranch_scc1 L_ftl")
    A("L_fgdone:")
    stamp(44)
    A("s_branch L_end")
    spin("L_fgs1", "L_fgb1"); spin("L_fgs3", "L_fgb3")

    A("L_b2role:")
    confirm("t")
    stamp(52)
    A("L_b2go:")
    B2S = opt.get('b2s', 40); B2N = (NSEG - B2S) // 3
    assert B2S + 3 * B2N == NSEG and B2S >= 8
    C.setup()
    V.next = tbase
    s_hb, s_qb, s_p, s_bk, s_off, s_qe = "s48", "s49", "s50", "s51", "s52", "s53"
    s_c2 = C.s_c2; vM, vNeg, ONES, MK = C.vM, C.vNeg, C.ONES, C.MK
    def KVr(slot): return [R('a', slot * 16 + i * 4, 4) for i in range(4)]
    OLD, NEW, NXT = 7, 8, 9
    Q = [V.alloc(f'q{u}', 4) for u in range(2)]; QN = [V.alloc(f'qn{u}', 4) for u in range(2)]
    S = [[[V.alloc(f's{b}{uq}{u}', 4) for u in range(2)] for uq in range(2)] for b in range(9)]
    O = [[V.alloc(f'o{uq}{t}', 4) for t in range(2)] for uq in range(2)]
    L = [V.alloc(f'l{uq}', 4) for uq in range(2)]
    vIn, vOut = vO, vGF
    A(f"s_and_b32 {s_hb}, {s_g}, 7\ns_lshl_b32 {s_hb}, {s_hb}, 2\ns_add_u32 {s_hb}, {s_hb}, {s_wave}")
    A(f"s_mov_b32 {s_c2}, {f32(32 ** -0.5 * math.log2(math.e))}")
    A(f"s_lshl_b32 {s_t0}, {s_hb}, 11\ns_add_u32 {s_t0}, {s_t0}, {QBF}\nv_add_u32 {vIn}, {s_t0}, {vL16}")
    A(f"s_lshl_b32 {s_t0}, {s_hb}, 10\ns_add_u32 {s_t0}, {s_t0}, {OBF}\nv_add_u32 {vOut}, {s_t0}, {vL16}")
    A(f"v_min_u32 {vT0}, 2, {vLane}\nv_lshlrev_b32 {vT0}, 11, {vT0}\ns_add_u32 {s_t0}, {s_hb}, 384\ns_lshl_b32 {s_t0}, {s_t0}, 6\nv_add_u32 {vFa}, {s_t0}, {vT0}")
    A(f"s_sub_u32 {s_t0}, {s_g}, 96\ns_lshr_b32 {s_t0}, {s_t0}, 3\ns_mul_i32 {s_t0}, {s_t0}, {B2N}\ns_add_u32 {s_qb}, {s_t0}, {B2S - 1}\ns_add_u32 {s_qe}, {s_qb}, {B2N}")
    A(f"s_cmp_ge_u32 {s_g}, 120\ns_cselect_b32 {s_qb}, -1, {s_qb}\ns_cselect_b32 {s_qe}, {B2S - 1}, {s_qe}\ns_cselect_b32 {s_p}, 6, 0\ns_mov_b32 {s_bk}, 0")
    A(f"s_add_u32 {s_off}, {s_qb}, 1\ns_lshl_b32 {s_off}, {s_off}, 16")
    for i in range(160): A(f"v_accvgpr_write_b32 a{i}, 0")
    def fetch(tag):
        A(f"s_add_u32 {s_t2}, {s_qb}, 2\ns_min_i32 {s_t2}, {s_t2}, {NSEG}")
        A(f"s_cmp_ge_i32 {s_bk}, {s_t2}\ns_cbranch_scc1 L_bf_ok{tag}\ns_branch L_bf_go{tag}")
        A(f"L_bf{tag}:\ns_sleep 16\nL_bf_go{tag}:")
        A(f"buffer_load_dword {vFd[0]}, {vFa}, {WS}, 0 offen sc1")
        budget()
        A("s_waitcnt vmcnt(0)")
        A(f"v_readlane_b32 {s_t0}, {vFd[0]}, 0\nv_readlane_b32 {s_t1}, {vFd[0]}, 1\nv_readlane_b32 {s_bk}, {vFd[0]}, 2\ns_min_i32 {s_bk}, {s_bk}, {s_t0}\ns_min_i32 {s_bk}, {s_bk}, {s_t1}")
        A(f"s_cmp_ge_i32 {s_bk}, {s_t2}\ns_cbranch_scc0 L_bf{tag}")
        A(f"L_bf_ok{tag}:")
        A(f"s_sub_u32 {s_t2}, {s_t2}, 1\ns_lshl_b32 {s_t2}, {s_t2}, 16\ns_add_u32 {s_t0}, {s_t2}, {4*MB}\ns_add_u32 {s_t1}, {s_t2}, {8*MB}")
        for u in range(2): A(f"buffer_load_dwordx4 {QN[u]}, {vIn}, {WS}, {s_t2} offen offset:{u*1024}")
        for u in range(2): A(f"buffer_load_dwordx4 {KVr(NXT)[u]}, {vIn}, {WS}, {s_t0} offen offset:{u*1024}")
        for u in range(2): A(f"buffer_load_dwordx4 {KVr(NXT)[2+u]}, {vIn}, {WS}, {s_t1} offen offset:{u*1024}")
    fetch("p")
    A(f"s_cmp_ge_u32 {s_g}, 120\ns_cbranch_scc1 L_b2w")
    for i, slot in enumerate(list(range(7)) + [NEW]):
        A(f"s_add_u32 {s_t0}, {s_off}, {4*MB - (8 - i) * 65536}\ns_add_u32 {s_t1}, {s_t0}, {4*MB}")
        for u in range(2): A(f"buffer_load_dwordx4 {KVr(slot)[u]}, {vIn}, {WS}, {s_t0} offen offset:{u*1024}")
        for u in range(2): A(f"buffer_load_dwordx4 {KVr(slot)[2+u]}, {vIn}, {WS}, {s_t1} offen offset:{u*1024}")
    A("L_b2w:")
    A("s_waitcnt vmcnt(0)")
    A("L_b2l:")
    A("s_waitcnt vmcnt(2)")
    A(f"s_add_u32 {s_qb}, {s_qb}, 1")
    for p in range(7): A(f"s_cmp_eq_u32 {s_p}, {p}\ns_cbranch_scc1 L_rot{p}")
    for p in range(7):
        A(f"L_rot{p}:")
        for i in range(16): A(f"v_accvgpr_mov_b32 a{OLD*16+i}, a{p*16+i}")
        for i in range(16): A(f"v_accvgpr_mov_b32 a{p*16+i}, a{NEW*16+i}")
        A("s_branch L_rotd")
    A("L_rotd:")
    for i in range(16): A(f"v_accvgpr_mov_b32 a{NEW*16+i}, a{NXT*16+i}")
    for u in range(2):
        for i in range(4): A(f"v_mov_b32 {Q[u][i]}, {QN[u][i]}")
    A(f"s_add_u32 {s_p}, {s_p}, 1\ns_cmp_eq_u32 {s_p}, 7\ns_cselect_b32 {s_p}, 0, {s_p}")
    fetch("l")
    order = [OLD, NEW] + list(range(7))
    def merge(valu, mf, first=2):
        out = []; step = max(1, (len(valu) - first) // max(1, len(mf))); mi = 0
        for i, v in enumerate(valu):
            if mi < len(mf) and i >= first and (i - first) % step == 0: out.append(mf[mi]); mi += 1
            out.append(v)
        out += mf[mi:]
        for o in out: A(o)
    def smf(b): return [f"v_mfma_f32_16x16x32_bf16 {S[b][uq][u]}, {KVr(b)[u]}, {Q[uq]}, 0" for uq in range(2) for u in range(2)]
    def post(bi, b):
        o = []
        for uq in range(2):
            vals = [S[b][uq][u][r] for u in range(2) for r in range(4)]
            for ci, v in enumerate(vals):
                if b == OLD: o.append(f"v_cndmask_b32 {v}, {v}, {vNeg}, {MK(uq, ci)}")
                if b == NEW: o.append(f"v_cndmask_b32 {v}, {vNeg}, {v}, {MK(uq, ci)}")
            if bi == 0:
                o.append(f"v_max_f32 {vM[uq]}, {vals[0]}, {vals[1]}"); vals = vals[2:]
            for i in range(0, len(vals), 2): o.append(f"v_max3_f32 {vM[uq]}, {vM[uq]}, {vals[i]}, {vals[i+1]}")
        return o
    def invalid(b):
        if b == NEW: return
        A(f"s_cmp_gt_u32 {s_qb}, {b}\ns_cbranch_scc1 L_bv{b}\ns_nop 7")
        for uq in range(2):
            for u in range(2):
                for r in range(4): A(f"v_mov_b32 {S[b][uq][u][r]}, {vNeg}")
        A(f"L_bv{b}:")
    for o in smf(order[0]) + smf(order[1]): A(o)
    for bi, b in enumerate(order):
        invalid(b)
        merge(post(bi, b), smf(order[bi + 2]) if bi + 2 < 9 else [], first=0)
    for uq in range(2): C.rowmax(vM[uq])
    vC2 = V.alloc('c2', 2); vMp = [V.alloc(f'mp{uq}', 2) for uq in range(2)]
    A(f"v_mov_b32 {vC2[0]}, {s_c2}\nv_mov_b32 {vMp[0][0]}, {vM[0]}\nv_mov_b32 {vMp[1][0]}, {vM[1]}")
    pend = []
    for bi, b in enumerate(order):
        for uq in range(2):
            vals = [S[b][uq][u][r] for u in range(2) for r in range(4)]
            o = []
            for u in range(2):
                for i in (0, 2):
                    pr = S[b][uq][u][i:i+2]
                    if opt.get('pkfma', 0): o.append(f"v_pk_fma_f32 {pr}, {pr}, {vC2}, {vMp[uq]} op_sel_hi:[1,0,0] neg_lo:[0,0,1] neg_hi:[0,0,1]")
                    else: o += [f"v_fma_f32 {pr[z]}, {pr[z]}, {s_c2}, -{vM[uq]}" for z in range(2)]
            for v in vals: o.append(f"v_exp_f32 {v}, {v}")
            for i in range(4): o.append(f"v_cvt_pk_bf16_f32 {S[b][uq][0][i]}, {vals[2*i]}, {vals[2*i+1]}")
            merge(o, pend)
            pend = [f"v_mfma_f32_16x16x32_bf16 {L[uq]}, {ONES}, {S[b][uq][0]}, {'0' if bi == 0 else L[uq]}"]
            pend += [f"v_mfma_f32_16x16x32_bf16 {O[uq][t]}, {KVr(b)[2+t]}, {S[b][uq][0]}, {'0' if bi == 0 else O[uq][t]}" for t in range(2)]
    for o in pend: A(o)
    A(f"s_add_u32 {s_t2}, {s_off}, 32768")
    for uq in range(2):
        A(f"v_rcp_f32 {vM[uq]}, {L[uq][0]}")
        Pk = S[1][uq][1]
        for t in range(2):
            for r in range(4): A(f"v_mul_f32 {O[uq][t][r]}, {O[uq][t][r]}, {vM[uq]}")
            for hh in range(2): A(f"v_cvt_pk_bf16_f32 {Pk[2*t+hh]}, {O[uq][t][2*hh]}, {O[uq][t][2*hh+1]}")
        A(f"buffer_store_dwordx4 {Pk}, {vOut}, {WS}, {s_off if uq == 0 else s_t2} offen sc1")
    A(f"s_add_u32 {s_off}, {s_off}, 65536\ns_cmp_lt_i32 {s_qb}, {s_qe}\ns_cbranch_scc1 L_b2l")
    A(f"v_mov_b32 {vT0}, {DONEB}\nv_mov_b32 {vT1}, 1\ns_waitcnt vmcnt(0)\ns_mov_b64 exec, 1")
    A(f"buffer_atomic_add {vT1}, {vT0}, {WS}, 0 offen sc1\ns_mov_b64 exec, -1")
    stamp(40)
    A("s_branch L_fg")
```

```python
from asmlib import Asm, Regs, R
from layout import *
import math

NSEG = 64
def kd(name, vgpr, accum, sgpr=102):
    return f'''.section .rodata,"a"
.p2align 6
.amdhsa_kernel {name}
  .amdhsa_next_free_vgpr {vgpr}
  .amdhsa_next_free_sgpr {sgpr}
  .amdhsa_accum_offset {accum}
  .amdhsa_group_segment_fixed_size 0
  .amdhsa_kernarg_size 104
  .amdhsa_user_sgpr_count 2
  .amdhsa_user_sgpr_kernarg_segment_ptr 1
  .amdhsa_system_sgpr_workgroup_id_x 1
.end_amdhsa_kernel
.text
'''

def srd(A, d, base, nbytes):
    A(f"s_mov_b32 s{d}, s{base}"); A(f"s_mov_b32 s{d+1}, s{base+1}")
    A(f"s_mov_b32 s{d+2}, {nbytes}"); A(f"s_mov_b32 s{d+3}, 0x20000")

P_AX, P_MEM0, P_WQ, P_WK, P_WV, P_WO, P_SEG, P_BX, P_WQKV, P_WOB, P_OUT, P_DBG, P_WS = [64 + 2 * i for i in range(13)]
WS = "s[4:7]"; DBG = "s[8:11]"; SW = "s[12:15]"; SX = "s[16:19]"

def load_kernargs(A):
    A("s_load_dwordx16 s[64:79], s[0:1], 0")
    A("s_load_dwordx8 s[80:87], s[0:1], 64")
    A("s_load_dwordx2 s[88:89], s[0:1], 96")

def gen_main(name, opt):
    A = Asm()
    PRE = opt.get('pre', (36, 8, 0, 8))
    STAMP = opt.get('stamp', False)
    A(f".globl {name}\n.p2align 8\n.type {name},@function\n{name}:")
    s_xcc, s_wave, s_role, s_mode, s_tick = "s3", "s20", "s21", "s22", "s23"
    s_t0, s_t1, s_t2, s_t3 = "s24", "s25", "s26", "s27"
    s_bud = "s28"
    A("s_cmp_ge_u32 s2, 256\ns_cbranch_scc1 L_end")
    load_kernargs(A)
    if STAMP: A("s_memrealtime s[96:97]")
    A(f"s_getreg_b32 {s_xcc}, hwreg(HW_REG_XCC_ID)\ns_and_b32 {s_xcc}, {s_xcc}, 7")
    V = Regs('v', 1, 256)
    vLane = V.alloc('lane'); vL16 = V.alloc('l16'); vG = V.alloc('g'); vJ = V.alloc('j'); vT0 = V.alloc('t0'); vT1 = V.alloc('t1'); vT2 = V.alloc('t2')
    vPoi = V.alloc('poi', 4)
    A(f"v_lshrrev_b32 {vT0}, 6, v0\nv_and_b32 {vLane}, 63, v0")
    A(f"v_readfirstlane_b32 {s_wave}, {vT0}")
    A(f"v_lshlrev_b32 {vL16}, 4, {vLane}\nv_lshrrev_b32 {vG}, 4, {vLane}\nv_and_b32 {vJ}, 15, {vLane}")
    for i in range(4): A(f"v_mov_b32 {vPoi[i]}, -1")
    A(f"s_mov_b32 {s_bud}, 400000")
    A("s_waitcnt lgkmcnt(0)")
    srd(A, 4, P_WS, WS_BYTES); srd(A, 8, P_DBG, 256)
    srd(A, 12, P_WQ, 8 * MB); srd(A, 16, P_AX, 4 * MB)
    LDS_TICK = 163840 - 16
    vAt = V.alloc('at', 2)
    A(f"s_lshr_b32 {s_t0}, s2, 3\ns_lshl_b32 {s_t1}, 1, {s_t0}")
    A(f"s_lshl_b32 {s_role}, {s_xcc}, 5\ns_add_u32 {s_role}, {s_role}, {s_t0}\ns_mov_b32 {s_mode}, 0")
    A(f"s_cmp_lg_u32 {s_wave}, 3\ns_cbranch_scc1 L_reg_done")
    A(f"s_mul_i32 {s_t0}, s2, {POISON_BYTES // 256}\ns_add_u32 {s_t2}, {s_t0}, 4096")
    for k in range(POISON_BYTES // 256 // 1024):
        A(f"buffer_store_dwordx4 {vPoi}, {vL16}, {WS}, {s_t0 if k < 4 else s_t2} offen offset:{(k & 3) * 1024} sc1")
    A(f"v_mov_b32 {vAt[0]}, {s_t1}\nv_mov_b32 {vAt[1]}, 0x10000")
    A(f"s_lshl_b32 {s_t1}, {s_xcc}, 3\nv_mov_b32 {vT0}, {s_t1}")
    A("s_waitcnt vmcnt(0)\ns_mov_b64 exec, 1")
    A(f"buffer_atomic_add_x2 {vAt}, {vT0}, {DBG}, 0 offen sc1")
    A("s_mov_b64 exec, -1")
    A("L_reg_done:")
    A("s_branch L_dispatch")
    A("L_respec:")
    A(f"s_lshr_b32 {s_t1}, {s_t1}, 16\ns_mov_b32 {s_role}, s2\ns_mov_b32 {s_mode}, 2\ns_barrier")
    A(f"s_cmp_lg_u32 {s_t1}, 0\ns_cbranch_scc1 L_dispatch")
    A(f"s_mov_b32 {s_mode}, 1\ns_lshl_b32 {s_t1}, {s_xcc}, 2\ns_add_u32 {s_t1}, {s_t1}, 128\nv_mov_b32 {vT0}, {s_t1}\nv_mov_b32 {vT1}, {LDS_TICK}\nv_mov_b32 {vT2}, 1")
    A(f"s_cmp_lg_u32 {s_wave}, 0\ns_cbranch_scc1 L_tk1\ns_mov_b64 exec, 1")
    A(f"buffer_atomic_add {vT2}, {vT0}, {DBG}, 0 offen sc0 sc1\ns_waitcnt vmcnt(0)\nds_write_b32 {vT1}, {vT2}\ns_waitcnt lgkmcnt(0)\ns_mov_b64 exec, -1")
    A(f"L_tk1:\ns_barrier\nds_read_b32 {vT2}, {vT1}\ns_waitcnt lgkmcnt(0)\nv_readfirstlane_b32 {s_tick}, {vT2}")
    A(f"s_lshl_b32 {s_role}, {s_xcc}, 5\ns_add_u32 {s_role}, {s_role}, {s_tick}")
    A("L_dispatch:")
    for i in range(4): A(f"v_mov_b32 {vPoi[i]}, -1")
    A(f"s_cmp_ge_u32 {s_role}, 128\ns_cbranch_scc1 L_grole")

    def confirm(tag):
        A(f"s_cmp_lg_u32 {s_mode}, 0\ns_cbranch_scc1 L_conf_ok_{tag}")
        A(f"v_and_b32 {vT0}, 15, {vLane}\nv_lshlrev_b32 {vT0}, 2, {vT0}")
        A(f"L_conf_poll_{tag}:")
        A(f"buffer_load_dword {vT1}, {vT0}, {DBG}, 0 offen sc1")
        A(f"s_sub_u32 {s_bud}, {s_bud}, 1\ns_cbranch_scc1 L_end")
        A("s_waitcnt vmcnt(0) lgkmcnt(0)")
        A(f"s_mov_b32 {s_t0}, 0\ns_mov_b32 {s_t1}, 0\ns_mov_b32 {s_t2}, -1")
        for x in range(8):
            A(f"v_readlane_b32 s30, {vT1}, {2*x}\nv_readlane_b32 s31, {vT1}, {2*x+1}")
            A(f"s_and_b32 {s_t2}, {s_t2}, s30")
            A(f"s_xor_b32 s30, s31, 0x200000\ns_or_b32 {s_t1}, {s_t1}, s30")
            A(f"s_lshr_b32 s31, s31, 16\ns_add_u32 {s_t0}, {s_t0}, s31")
        A(f"s_cmp_lt_u32 {s_t0}, 256\ns_cbranch_scc0 L_conf_all_{tag}")
        A(f"s_sleep 8\ns_branch L_conf_poll_{tag}")
        A(f"L_conf_all_{tag}:")
        A(f"s_mov_b32 {s_mode}, 1")
        A(f"s_not_b32 {s_t2}, {s_t2}\ns_or_b32 {s_t2}, {s_t2}, {s_t1}\ns_cmp_eq_u32 {s_t2}, 0\ns_cbranch_scc0 L_respec")
        A(f"L_conf_ok_{tag}:")

    def dma_chunk(vOff, s_src, stride, nrows, lds_base_s, lds_off):
        for i in range(nrows // 16):
            A(f"s_add_u32 m0, {lds_base_s}, {lds_off + i * 1024}")
            A(f"buffer_load_dwordx4 {vOff}, {SW}, {s_src} offen lds")
            A(f"s_add_u32 {s_src}, {s_src}, {stride}")

    vbase = V.next
    s_x, s_c, s_cu, s_h, s_j = "s32", "s33", "s34", "s35", "s36"
    s_slot, s_kv, s_step, s_known, s_lds, s_src, s_kvm = "s37", "s38", "s39", "s40", "s41", "s42", "s43"
    s_c2 = "s44"
    A(f"s_lshr_b32 {s_x}, {s_role}, 5\ns_and_b32 {s_c}, {s_role}, 31\ns_lshr_b32 {s_h}, {s_role}, 2\ns_and_b32 {s_j}, {s_role}, 3")
    vW1 = V.alloc('w1'); vW2 = V.alloc('w2'); vTr = V.alloc('tr')
    A(f"v_lshrrev_b32 {vT0}, 2, {vLane}\nv_and_b32 {vT1}, 3, {vLane}\nv_lshlrev_b32 {vT1}, 4, {vT1}")
    A(f"v_lshl_add_u32 {vW1}, {vT0}, 13, {vT1}\nv_lshl_add_u32 {vW2}, {vT0}, 11, {vT1}")
    A(f"s_lshl_b32 {s_lds}, {s_wave}, 15")
    A(f"v_lshrrev_b32 {vT0}, 1, {vG}\nv_lshlrev_b32 {vT0}, 4, {vT0}\nv_and_b32 {vT1}, 1, {vG}\nv_lshl_add_u32 {vT0}, {vT1}, 2, {vT0}")
    A(f"v_bfe_u32 {vT1}, {vLane}, 2, 1\nv_add_u32 {vT0}, {vT0}, {vT1}\nv_bfe_u32 {vT1}, {vLane}, 3, 1\nv_lshl_add_u32 {vT0}, {vT1}, 3, {vT0}")
    A(f"v_lshlrev_b32 {vT0}, 6, {vT0}\nv_and_b32 {vT1}, 3, {vLane}\nv_lshl_add_u32 {vT0}, {vT1}, 3, {vT0}\nv_add_u32 {vTr}, {s_lds}, {vT0}")
    def r_issue(m):
        A(f"s_mov_b32 s12, s{[P_WQ,P_WK,P_WV,P_WO][m]}\ns_mov_b32 s13, s{[P_WQ,P_WK,P_WV,P_WO][m]+1}\ns_mov_b32 s14, {8*MB}")
        if m < 3:
            A(f"s_lshl_b32 {s_src}, {s_wave}, 21\ns_lshl_b32 {s_t0}, {s_role}, 6\ns_add_u32 {s_src}, {s_src}, {s_t0}")
            dma_chunk(vW1, s_src, 16 * 8192, 256, s_lds, (m & 1) * 16384)
        else:
            A(f"s_lshl_b32 {s_src}, {s_x}, 21\ns_lshl_b32 {s_t0}, {s_wave}, 19\ns_add_u32 {s_src}, {s_src}, {s_t0}\ns_lshl_b32 {s_t0}, {s_c}, 6\ns_add_u32 {s_src}, {s_src}, {s_t0}")
            dma_chunk(vW2, s_src, 16 * 2048, 256, s_lds, (m & 1) * 16384)
    def r_tr(m):
        for t in range(2):
            for kb in range(4):
                for p2 in range(4):
                    a0 = ((m * 2 + t) * 4 + kb) * 8 + 2 * p2
                    off = (m & 1) * 16384 + (64 * kb + 32 * (p2 >> 1) + 2 * (p2 & 1)) * 64 + 32 * t
                    A(f"ds_read_b64_tr_b16 a[{a0}:{a0+1}], {vTr} offset:{off}")
        A("s_waitcnt lgkmcnt(0)")
    r_issue(0); r_issue(1)
    A("s_waitcnt vmcnt(16)"); r_tr(0); r_issue(2)
    A("s_waitcnt vmcnt(16)"); r_tr(1); r_issue(3)
    A("s_waitcnt vmcnt(16)"); r_tr(2)
    A("s_waitcnt vmcnt(0)"); r_tr(3)
    confirm("r")
    A("s_barrier")
    def WQKV(T, kb): b = (T * 4 + kb) * 8; return f"a[{b}:{b+7}]"
    def WOr(t, kb): b = 192 + (t * 4 + kb) * 8; return f"a[{b}:{b+7}]"

    vPL = [V.alloc(f'pl{i}') for i in range(3)]; vPS = V.alloc('ps'); vMS = V.alloc('ms'); vGM = V.alloc('gm'); vGO = V.alloc('go')
    vS0 = V.alloc('s0'); vS2 = V.alloc('s2'); vSA = [V.alloc(f'sa{i}') for i in range(4)]; vSB = [V.alloc(f'sb{i}') for i in range(4)]
    vOS = V.alloc('os'); vKX = V.alloc('kx'); vVX = V.alloc('vx'); vFl = V.alloc('fl'); vKM = V.alloc('km'); vVM = V.alloc('vm')
    vPo = [V.alloc(f'po{i}') for i in range(5)]; vRF = V.alloc('rf'); vRFv = V.alloc('rfv')
    vQw = V.alloc('qw'); vKw = V.alloc('kw'); vQr = V.alloc('qr'); vVw = V.alloc('vw'); vVr = V.alloc('vr'); vPw = V.alloc('pw'); vPr = V.alloc('pr')
    vIdx = V.alloc('idx'); vChk = V.alloc('chk'); vOOB = V.alloc('oob')
    F = [V.alloc(f'f{i}', 4) for i in range(4)]
    ACC = [V.alloc(f'acc{i}', 4) for i in range(6)]
    T = [V.alloc(f'T{i}', 4) for i in range(13)]
    SB2 = [V.alloc(f'SB2{i}') for i in range(4)]
    X = V.alloc('X', 4); KX = [V.alloc(f'KX{i}', 4) for i in range(2)]; VX = [V.alloc(f'VX{i}', 4) for i in range(2)]
    S = [V.alloc(f'S{i}', 4) for i in range(3)]
    VMo = [V.alloc(f'VMo{i}', 4) for i in range(2)]
    ONES = V.alloc('ones', 4); PB = V.alloc('PB', 4); PM = V.alloc('PM', 4)
    SB = [V.alloc(f'SB{i}') for i in range(4)]
    OWN = V.alloc('own', 4); OO = V.alloc('OO', 4)
    vM = V.alloc('m'); vM2 = V.alloc('m2'); vRL = V.alloc('rl', 2)
    QK_B = 0; V_B = 9216; PW_B = 13312; KV_B = 18432
    s_have = "s45"; s_pslot = "s62"; KVMF = 'sc1'
    A(f"s_mov_b32 {s_have}, 0")
    A(f"v_mov_b32 {vOOB}, {OOB}")
    for i in range(3):
        A(f"s_xor_b32 {s_t0}, {s_role}, {(i+1)*32}\ns_lshl_b32 {s_t0}, {s_t0}, 10\ns_add_u32 {s_t0}, {s_t0}, {PART0}\nv_add_u32 {vPL[i]}, {s_t0}, {vL16}")
    A(f"s_lshl_b32 {s_t0}, {s_role}, 10\ns_add_u32 {s_t1}, {s_t0}, {PART0 + 0x40000}\nv_add_u32 {vPS}, {s_t1}, {vL16}")
    A(f"s_lshl_b32 {s_t0}, {s_role}, 9\ns_add_u32 {s_t1}, {s_t0}, {MEM_OFF}\nv_lshlrev_b32 {vT0}, 3, {vLane}\nv_add_u32 {vMS}, {s_t1}, {vT0}")
    A(f"v_and_b32 {vT0}, 31, {vLane}\nv_lshlrev_b32 {vT0}, 4, {vT0}\nv_lshrrev_b32 {vT1}, 5, {vLane}\nv_lshl_add_u32 {vT0}, {vT1}, 16, {vT0}")
    A(f"s_add_u32 {s_t1}, {s_t0}, {MEM_OFF}\nv_add_u32 {vPo[1]}, {s_t1}, {vT0}")
    A(f"v_lshl_add_u32 {vT0}, {vG}, 3, {vJ}\nv_lshlrev_b32 {vT0}, 4, {vT0}\ns_add_u32 {s_t1}, {s_t0}, {O_OFF}\nv_add_u32 {vT0}, {s_t1}, {vT0}")
    A(f"v_cmp_gt_u32 vcc, 8, {vJ}\nv_cndmask_b32 {vOS}, {vOOB}, {vT0}, vcc")
    A(f"s_lshl_b32 {s_t0}, {s_x}, 14\ns_lshl_b32 {s_t1}, {s_wave}, 12\ns_add_u32 {s_t0}, {s_t0}, {s_t1}\ns_add_u32 {s_t0}, {s_t0}, {MEM_OFF}")
    A(f"v_add_u32 {vGM}, {s_t0}, {vL16}\nv_add_u32 {vGO}, {O_OFF - MEM_OFF}, {vGM}")
    A(f"s_mul_i32 {s_t0}, {s_role}, 1280\ns_add_u32 {s_t0}, {s_t0}, {SC_OFF}")
    A(f"v_add_u32 {vT0}, {s_t0}, {vL16}\nv_cndmask_b32 {vS0}, {vOOB}, {vT0}, vcc")
    A(f"v_mov_b32 {vPo[2]}, {vT0}")
    A(f"v_cmp_gt_u32 vcc, 16, {vLane}\nv_add_u32 {vT1}, 1024, {vT0}\nv_cndmask_b32 {vPo[3]}, {vOOB}, {vT1}, vcc")
    A(f"v_lshl_add_u32 {vT0}, {vG}, 3, {vJ}\nv_lshlrev_b32 {vT0}, 4, {vT0}\ns_add_u32 {s_t1}, {s_t0}, {1024 - 256}\nv_add_u32 {vT0}, {s_t1}, {vT0}")
    A(f"v_and_b32 {vT1}, 0x28, {vLane}\nv_cmp_eq_u32 vcc, 0x20, {vT1}\nv_cndmask_b32 {vS2}, {vOOB}, {vT0}, vcc")
    A(f"v_lshrrev_b32 {vT0}, 3, {vLane}")
    A(f"v_lshrrev_b32 {vT1}, 2, {vT0}\nv_lshlrev_b32 {vT1}, 7, {vT1}\nv_and_b32 {vT0}, 3, {vT0}\nv_lshl_add_u32 {vT1}, {vT0}, 2, {vT1}")
    A(f"v_and_b32 {vT0}, 7, {vLane}\nv_lshl_add_u32 {vT1}, {vT0}, 4, {vT1}\nv_add_u32 {vT1}, 1024, {vT1}")
    for i in range(4):
        A(f"s_xor_b32 {s_t0}, {s_role}, {i}\ns_mul_i32 {s_t0}, {s_t0}, 1280\ns_add_u32 {s_t0}, {s_t0}, {SC_OFF}")
        A(f"v_add_u32 {vSA[i]}, {s_t0}, {vL16}\nv_add_u32 {vSB[i]}, {s_t0}, {vT1}")
    A(f"s_lshl_b32 {s_t0}, {s_role}, 11\ns_add_u32 {s_t1}, {s_t0}, {KXF}\nv_add_u32 {vKX}, {s_t1}, {vL16}\ns_add_u32 {s_t1}, {s_t0}, {VXF}\nv_add_u32 {vVX}, {s_t1}, {vL16}")
    A(f"s_lshl_b32 {s_t0}, {s_role}, 6\nv_and_b32 {vT0}, 1, {vLane}\nv_lshlrev_b32 {vT0}, 13, {vT0}\nv_add_u32 {vFl}, {s_t0}, {vT0}")
    A(f"s_lshl_b32 {s_t0}, {s_role}, 10\ns_add_u32 {s_t0}, {s_t0}, {KVM}")
    A(f"v_lshl_add_u32 {vT0}, {vG}, 3, {vJ}\nv_lshlrev_b32 {vT0}, 4, {vT0}\ns_sub_u32 {s_t1}, {s_t0}, 128\nv_add_u32 {vT0}, {s_t1}, {vT0}")
    A(f"v_cmp_lt_u32 vcc, 7, {vJ}\nv_cndmask_b32 {vKM}, {vOOB}, {vT0}, vcc")
    A(f"s_add_u32 {s_t1}, {s_t0}, 512\nv_lshlrev_b32 {vT0}, 2, {vLane}\nv_add_u32 {vVM}, {s_t1}, {vT0}")
    A(f"s_lshl_b32 {s_t0}, {s_h}, 7\ns_lshl_b32 {s_t1}, {s_j}, 2\ns_add_u32 {s_t0}, {s_t0}, {s_t1}\ns_add_u32 {s_t0}, {s_t0}, {FLAGR}\nv_mov_b32 {vT0}, {s_t0}\nv_cmp_eq_u32 s[30:31], 0, {vLane}\nv_cndmask_b32 {vRF}, {vOOB}, {vT0}, s[30:31]")
    A(f"v_mov_b32 {vT0}, 0x4444\nv_mov_b32 {vT1}, 0xeeee\nv_cndmask_b32 {vIdx}, {vT0}, {vT1}, vcc")
    A(f"v_and_b32 {vT0}, 1, {vG}\nv_mul_u32_u24 {vT0}, {4*144}, {vT0}\nv_lshrrev_b32 {vT1}, 1, {vG}\nv_lshl_add_u32 {vT2}, {vT1}, 4, {vJ}")
    A(f"v_lshl_add_u32 {vT0}, {vT2}, 2, {vT0}")
    A(f"s_mul_i32 {s_t0}, {s_wave}, 2304\nv_add_u32 {vQw}, {s_t0}, {vT0}\nv_add_u32 {vKw}, {8*144}, {vQw}")
    A(f"s_mul_i32 {s_t0}, {s_wave}, 1152\ns_add_u32 {s_t0}, {s_t0}, {PW_B}\nv_add_u32 {vPw}, {s_t0}, {vT0}")
    A(f"v_and_b32 {vT0}, 1, {vG}\nv_lshlrev_b32 {vT0}, 4, {vT0}\nv_lshl_add_u32 {vT0}, {vT2}, 5, {vT0}")
    A(f"s_lshl_b32 {s_t0}, {s_wave}, 10\ns_add_u32 {s_t0}, {s_t0}, {V_B}\nv_add_u32 {vVw}, {s_t0}, {vT0}")
    A(f"v_mul_u32_u24 {vT0}, 144, {vJ}\nv_lshl_add_u32 {vQr}, {vG}, 5, {vT0}")
    A(f"v_lshrrev_b32 {vT0}, 2, {vJ}\nv_lshlrev_b32 {vT0}, 3, {vT0}\nv_and_b32 {vT1}, 3, {vJ}\nv_add_u32 {vT0}, {vT0}, {vT1}\nv_lshlrev_b32 {vT0}, 5, {vT0}")
    A(f"v_lshl_add_u32 {vT0}, {vG}, 3, {vT0}\nv_add_u32 {vVr}, {V_B}, {vT0}")
    A(f"v_lshrrev_b32 {vT0}, 1, {vJ}\nv_mul_u32_u24 {vT0}, 144, {vT0}\nv_lshl_add_u32 {vT0}, {vG}, 5, {vT0}\nv_and_b32 {vT1}, 1, {vJ}\nv_lshl_add_u32 {vT0}, {vT1}, 4, {vT0}\nv_add_u32 {vPr}, {PW_B}, {vT0}")
    for i in range(4): A(f"v_mov_b32 {ONES[i]}, 0x3f803f80")
    for i in (1, 2, 3): A(f"v_mov_b32 {PM[i]}, 0\nv_mov_b32 {VMo[0][i]}, 0\nv_mov_b32 {VMo[1][i]}, 0")
    A(f"s_mov_b32 {s_slot}, {RING0}\ns_mov_b32 {s_pslot}, {RING0 + PD * SLOT_SZ}\ns_mov_b32 {s_kv}, 0\ns_mov_b32 {s_step}, 0\ns_mov_b32 {s_known}, 0\ns_mov_b32 {s_kvm}, 0")
    c2 = (128 ** -0.5) * math.log2(math.e)
    import struct
    A(f"s_mov_b32 {s_c2}, 0x{struct.unpack('<I', struct.pack('<f', c2))[0]:08x}")
    if STAMP:
        for r in range(46, 62): A(f"s_mov_b32 s{r}, 0")
        A("s_memrealtime s[98:99]")
    A(f"s_cmp_eq_u32 {s_mode}, 2\ns_cbranch_scc1 L_r_safe")

    def delay(n):
        while n >= 4: A("s_nop 15"); n -= 4
        if n: A(f"s_nop {4*n-1}")
    def umax(regs):
        A(f"v_max3_u32 {vChk}, {regs[0]}, {regs[1]}, {regs[2]}"); regs = regs[3:]
        while len(regs) >= 2:
            A(f"v_max3_u32 {vChk}, {vChk}, {regs[0]}, {regs[1]}"); regs = regs[2:]
        if regs: A(f"v_max_u32 {vChk}, {vChk}, {regs[0]}")
    def padd(d, a, b):
        for i in range(0, d.n, 2): A(f"v_pk_add_f32 {d[i:i+2]}, {a[i:i+2]}, {b[i:i+2]}")
    def zero(accs):
        for a in accs:
            for i in range(4): A(f"v_mov_b32 {a[i]}, 0")
    def budget(): A(f"s_sub_u32 {s_bud}, {s_bud}, 1\ns_cbranch_scc1 L_end")

    def r_loop(wk, md):
        IF = "" if md == 'f' else "sc1"
        tg = f"{md}{wk}"
        tails = []
        nst = [0]
        def st():
            if STAMP and md == 'f' and wk in (0, 1):
                k = nst[0]; nst[0] += 1
                A(f"s_memtime s[{64+2*k}:{65+2*k}]")
        def st_acc():
            if STAMP and md == 'f' and wk in (0, 1):
                A("s_waitcnt lgkmcnt(0)")
                for k in range(nst[0] - 1):
                    A(f"s_sub_u32 {s_t0}, s{66+2*k}, s{64+2*k}\ns_add_u32 s{46+k}, s{46+k}, {s_t0}")
                if opt.get('raw'):
                    A(f"s_lshl_b32 {s_t0}, {s_step}, 7\ns_add_u32 {s_t0}, {s_t0}, {s_role}\ns_lshl_b32 {s_t0}, {s_t0}, 7\ns_add_u32 {s_t0}, {s_t0}, {DBGO + MB + wk * 64}")
                    for k in range(nst[0]): A(f"v_writelane_b32 {vChk}, s{64+2*k}, {k}")
                    A(f"v_lshlrev_b32 {vT1}, 2, {vLane}\ns_mov_b64 exec, 0xffff")
                    A(f"buffer_store_dword {vChk}, {vT1}, {WS}, {s_t0} offen\ns_mov_b64 exec, -1")
        def st_dump():
            if STAMP and md == 'f' and wk in (0, 1):
                A("s_memrealtime s[100:101]\ns_waitcnt lgkmcnt(0)")
                A(f"s_mov_b32 s58, s96\ns_mov_b32 s59, s98\ns_mov_b32 s60, s100\ns_mov_b32 s61, {s_bud}")
                A(f"s_lshl_b32 {s_t0}, {s_role}, 7\ns_add_u32 {s_t0}, {s_t0}, {DBGO + wk * 64}\nv_mov_b32 {vT1}, 0\ns_mov_b64 exec, 1")
                for k in range(16):
                    A(f"v_mov_b32 {vT0}, s{46+k}\nbuffer_store_dword {vT0}, {vT1}, {WS}, {s_t0} offen offset:{4*k}\ns_nop 0")
                A("s_mov_b64 exec, -1")
        def gather(vAddr, nm, body, accs):
            def issue(i0):
                for i in range(i0, 4): A(f"buffer_load_dwordx4 {F[i]}, {vAddr}, {WS}, {s_slot} offen offset:{i*1024} sc1")
            issue(0)
            A(f"L_{nm}s_{tg}:")
            for i in range(4):
                A(f"s_waitcnt vmcnt({3-i})")
                body(i, 0)
                umax([F[i][k] for k in range(4)])
                A(f"v_cmp_eq_u32 vcc, -1, {vChk}")
                body(i, 1)
                A(f"s_cbranch_vccnz L_{nm}r{i}_{tg}")
                def tail(i=i):
                    A(f"L_{nm}r{i}_{tg}:")
                    issue(i); budget(); A("s_nop 7"); zero(accs); A(f"s_nop 1\ns_branch L_{nm}s_{tg}")
                tails.append(tail)
        def kv_issue(ahead):
            A(f"s_add_u32 {s_t0}, {s_kv}, {ahead * 0x40000}")
            for u in range(2): A(f"buffer_load_dwordx4 {KX[u]}, {vKX}, {WS}, {s_t0} offen offset:{u*1024} sc1")
            for u in range(2): A(f"buffer_load_dwordx4 {VX[u]}, {vVX}, {WS}, {s_t0} offen offset:{u*1024} sc1")
        def kvm_store(so):
            A(f"buffer_store_dwordx4 {X}, {vKM}, {WS}, {so} offen {KVMF}")
            A(f"buffer_store_dword {VMo[0][0]}, {vVM}, {WS}, {so} offen {KVMF}")
            A(f"buffer_store_dword {VMo[1][0]}, {vVM}, {WS}, {so} offen offset:256 {KVMF}")
        if wk == 0:
            srd(A, 16, P_MEM0, 16384)
            A(f"v_lshrrev_b32 {vT0}, 1, {vJ}\nv_lshlrev_b32 {vT0}, 11, {vT0}\nv_lshl_add_u32 {vT0}, {vG}, 4, {vT0}\nv_and_b32 {vT1}, 1, {vJ}\nv_lshl_add_u32 {vT0}, {vT1}, 3, {vT0}")
            A(f"s_lshl_b32 {s_t0}, {s_c}, 6")
            A(f"buffer_load_dwordx2 {OO[0:2]}, {vT0}, {SX}, {s_t0} offen")
            zero(ACC)
            A("s_waitcnt vmcnt(0)")
            A(f"v_min_u32 {OO[0]}, -2, {OO[0]}\nv_min_u32 {OO[1]}, -2, {OO[1]}")
            A(f"buffer_store_dwordx2 {OO[0:2]}, {vMS}, {WS}, {s_slot} offen {IF}")
            if STAMP and md == 'f': A("s_memtime s[64:65]\ns_memtime s[66:67]")
            A(f"s_branch L_s1d_{tg}")
        if wk == 3:
            A(f"L_pre_{tg}:")
            for k in range(RN):
                A(f"s_mov_b32 {s_t0}, {RING0 + k * SLOT_SZ}")
                for i in (1, 2, 3): A(f"buffer_load_dwordx4 {T[i]}, {vPo[i]}, {WS}, {s_t0} offen sc1")
            A("s_waitcnt vmcnt(0)")
        if wk == 1:
            A(f"L_pre_{tg}:\nv_mov_b32 {vT2}, 0\ns_branch L_fl_{tg}")
        A(f"L_loop_{tg}:")
        st()
        if wk == 0:
            zero(ACC)
            delay(PRE[0])
            SUM = T[12]
            A(f"L_p1_{tg}:")
            for i in range(3): A(f"buffer_load_dwordx4 {T[i]}, {vPL[i]}, {WS}, {s_kv} offen sc1")
            A("s_waitcnt vmcnt(2)"); padd(SUM, T[0], OWN)
            A("s_waitcnt vmcnt(0)"); padd(T[1], T[1], T[2]); padd(SUM, SUM, T[1])
            umax([SUM[i] for i in range(4)])
            A(f"v_cmpx_ne_u32 vcc, -1, {vChk}")
            A(f"v_cvt_pk_bf16_f32 {OO[0]}, {SUM[0]}, {SUM[1]}\nv_cvt_pk_bf16_f32 {OO[1]}, {SUM[2]}, {SUM[3]}")
            A(f"buffer_store_dwordx2 {OO[0:2]}, {vMS}, {WS}, {s_slot} offen {IF}")
            A(f"s_mov_b64 exec, -1\ns_cmp_eq_u64 vcc, -1\ns_cbranch_scc0 L_p1r_{tg}")
            def tail():
                A(f"L_p1r_{tg}:"); budget(); A(f"s_branch L_p1_{tg}")
            tails.append(tail)
            st()
            A(f"L_s1d_{tg}:")
        elif wk == 1:
            delay(opt.get('slowd', 8))
            A(f"s_sub_u32 {s_t2}, {s_kvm}, 0x20000\ns_sub_u32 {s_t3}, {s_step}, 1\nv_mov_b32 {vRFv}, {s_t3}")
            kvm_store(s_t2)
            A(f"buffer_store_dword {vRFv}, {vRF}, {WS}, 0 offen sc1")
            A(f"v_readlane_b32 {s_t0}, {vT2}, 0\nv_readlane_b32 {s_t1}, {vT2}, 1\ns_min_i32 {s_known}, {s_t0}, {s_t1}")
            A(f"s_cmp_gt_i32 {s_known}, {s_step}\ns_cbranch_scc1 L_flok_{tg}")
            A(f"L_fl_{tg}:")
            A(f"buffer_load_dword {vT2}, {vFl}, {WS}, 0 offen sc1")
            budget()
            A("s_waitcnt vmcnt(0)")
            A(f"v_readlane_b32 {s_t0}, {vT2}, 0\nv_readlane_b32 {s_t1}, {vT2}, 1\ns_min_i32 {s_known}, {s_t0}, {s_t1}")
            A(f"s_cmp_gt_i32 {s_known}, {s_step}\ns_cbranch_scc0 L_fl_{tg}")
            A(f"L_flok_{tg}:")
            kv_issue(0)
            A(f"s_cmp_ge_i32 {s_known}, {NSEG}\ns_cbranch_scc1 L_nofl_{tg}")
            A(f"buffer_load_dword {vT2}, {vFl}, {WS}, 0 offen sc1")
            A(f"L_nofl_{tg}:")
            zero(ACC)
        else:
            delay(8 * wk); zero(ACC)
        A("s_barrier")
        st()
        delay(PRE[1])
        def body2(i, ph):
            for Tt in ((0,), (1, 2, 3))[ph]: A(f"v_smfmac_f32_16x16x64_bf16 {ACC[Tt]}, {F[i]}, {WQKV(Tt, i)}, {vIdx}")
        gather(vGM, "m", body2, ACC[0:4])
        st()
        vq = [(Tt, i) for i in range(4) for Tt in (4, 5)]
        def vs(n=1):
            for _ in range(n):
                Tt, i = vq.pop(0); A(f"v_smfmac_f32_16x16x64_bf16 {ACC[Tt]}, {F[i]}, {WQKV(Tt, i)}, {vIdx}")
        for (a, b, vw) in ((0, 1, vQw), (2, 3, vKw)):
            for hh in range(2):
                for r in (2 * hh, 2 * hh + 1): A(f"v_permlane32_swap_b32 {ACC[a][r]}, {ACC[b][r]}")
                A(f"v_pk_add_f32 {ACC[a][2*hh:2*hh+2]}, {ACC[a][2*hh:2*hh+2]}, {ACC[b][2*hh:2*hh+2]}")
                A(f"ds_write2_b32 {vw}, {ACC[a][2*hh]}, {ACC[a][2*hh+1]} offset0:{72*hh} offset1:{72*hh+36}")
        vs(3)
        A("s_waitcnt lgkmcnt(0)\ns_barrier")
        st()
        def vpart():
            for r in range(4): A(f"v_permlane32_swap_b32 {ACC[4][r]}, {ACC[5][r]}")
            padd(ACC[4], ACC[4], ACC[5])
            A(f"ds_write_b128 {vVw}, {ACC[4]}")
        if wk == 1:
            for w in range(4):
                for hh in range(2): A(f"ds_read_b128 {T[2*w+hh]}, {vQr} offset:{QK_B + w*2304 + hh*16}")
            vs(2)
            A("s_waitcnt lgkmcnt(4)")
            padd(T[0], T[0], T[2]); padd(T[1], T[1], T[3])
            vs(1)
            A("s_waitcnt lgkmcnt(2)")
            padd(T[0], T[0], T[4]); padd(T[1], T[1], T[5])
            A("s_waitcnt lgkmcnt(0)")
            for i in range(4):
                tt = T[i >> 1][2*(i&1):2*(i&1)+2]
                A(f"v_pk_add_f32 {tt}, {tt}, {T[6 + (i >> 1)][2*(i&1):2*(i&1)+2]}")
                A(f"v_cvt_pk_bf16_f32 {X[i]}, {tt[0]}, {tt[1]}")
            A(f"v_mfma_f32_16x16x32_bf16 {S[0]}, {KX[0]}, {X}, 0")
            A(f"v_mfma_f32_16x16x32_bf16 {S[1]}, {KX[1]}, {X}, 0")
            A(f"v_mfma_f32_16x16x32_bf16 {S[2]}, {X}, {X}, 0")
            A(f"buffer_store_dwordx4 {S[0]}, {vS0}, {WS}, {s_slot} offen {IF}")
            vs(1)
            A(f"buffer_store_dwordx4 {S[1]}, {vS0}, {WS}, {s_slot} offen offset:128 {IF}")
            vs(1)
            A(f"buffer_store_dwordx4 {S[2]}, {vS2}, {WS}, {s_slot} offen {IF}")
            st()
            vpart()
            zero(ACC[0:2])
        else:
            if wk == 2:
                for i in (1, 2, 3): A(f"buffer_store_dwordx4 {vPoi}, {vPo[i]}, {WS}, {s_pslot} offen {IF}")
            vs(5)
            zero(ACC[0:2])
            vpart()
        A("s_waitcnt lgkmcnt(0)\ns_barrier")
        st()
        if wk != 1:
            A(f"s_cmp_eq_u32 {s_step}, {NSEG-1}\ns_cbranch_scc1 L_last_{tg}")
        if wk == 1:
            delay(PRE[2])
            def p3_issue(i0):
                for i in range(i0, 4):
                    A(f"buffer_load_dwordx4 {T[i]}, {vSA[i]}, {WS}, {s_slot} offen sc1")
                    A(f"buffer_load_dword {SB[i]}, {vSB[i]}, {WS}, {s_slot} offen sc1")
            p3_issue(0)
            for t in range(2):
                for w in range(4): A(f"ds_read_b64 {T[4+2*t+(w>>1)][2*(w&1):2*(w&1)+2]}, {vVr} offset:{w*1024 + t*128}")
            A("s_waitcnt lgkmcnt(0)")
            for t in range(2):
                padd(T[4+2*t], T[4+2*t], T[5+2*t])
                A(f"v_pk_add_f32 {T[4+2*t][0:2]}, {T[4+2*t][0:2]}, {T[4+2*t][2:4]}")
                A(f"v_cvt_pk_bf16_f32 {VMo[t][0]}, {T[4+2*t][0]}, {T[4+2*t][1]}")
            A(f"s_cmp_eq_u32 {s_step}, {NSEG-1}\ns_cbranch_scc1 L_last_{tg}")
            A(f"L_p3_{tg}:")
            U = T[4]; ub = T[5][0]
            A("s_waitcnt vmcnt(4)")
            padd(U, T[0], T[1]); A(f"v_add_f32 {ub}, {SB[0]}, {SB[1]}")
            A("s_waitcnt vmcnt(0)")
            padd(T[2], T[2], T[3]); A(f"v_add_f32 {SB[2]}, {SB[2]}, {SB[3]}")
            padd(U, U, T[2]); A(f"v_add_f32 {ub}, {ub}, {SB[2]}")
            vals = [U[i] for i in range(4)] + [ub]
            umax(vals)
            A(f"v_cmp_eq_u32 vcc, -1, {vChk}")
            A(f"v_max3_f32 {vM}, {U[0]}, {U[1]}, {U[2]}\nv_max3_f32 {vM}, {vM}, {U[3]}, {ub}")
            A(f"v_max_f32_dpp {vM}, {vM}, {vM} row_ror:8 row_mask:0xf bank_mask:0xf")
            A(f"v_mov_b32 {vM2}, {vM}")
            A(f"s_cbranch_vccnz L_p3r_{tg}")
            def tail():
                A(f"L_p3r_{tg}:"); p3_issue(0); budget(); A(f"s_branch L_p3_{tg}")
            tails.append(tail)
            st()
            A(f"v_permlane16_swap_b32 {vM}, {vM2}\nv_max_f32 {vM}, {vM}, {vM2}")
            A(f"v_mov_b32 {vM2}, {vM}\nv_permlane32_swap_b32 {vM}, {vM2}\nv_max_f32 {vM}, {vM}, {vM2}")
            A(f"v_mul_f32 {vM}, {s_c2}, {vM}")
            for v in vals: A(f"v_fma_f32 {v}, {v}, {s_c2}, -{vM}")
            for v in vals[0:2]: A(f"v_exp_f32 {v}, {v}")
            for v in vals[2:4]: A(f"v_exp_f32 {v}, {v}")
            A(f"v_cvt_pk_bf16_f32 {PB[0]}, {U[0]}, {U[1]}\nv_cvt_pk_bf16_f32 {PB[1]}, {U[2]}, {U[3]}")
            A(f"v_exp_f32 {ub}, {ub}")
            A(f"v_mov_b32_dpp {PB[2]}, {PB[0]} row_ror:8 row_mask:0xf bank_mask:0xf")
            A(f"v_mov_b32_dpp {PB[3]}, {PB[1]} row_ror:8 row_mask:0xf bank_mask:0xf")
            A(f"v_mov_b32_dpp {vM2}, {ub} row_ror:8 row_mask:0xf bank_mask:0xf")
            A(f"v_cvt_pk_bf16_f32 {PM[0]}, {ub}, {vM2}")
            A(f"v_mfma_f32_16x16x32_bf16 {S[2]}, {ONES}, {PB}, 0")
            A(f"v_mfma_f32_16x16x32_bf16 {S[2]}, {ONES}, {PM}, {S[2]}")
            for t in range(2):
                A(f"v_mfma_f32_16x16x32_bf16 {S[t]}, {VX[t]}, {PB}, 0")
                A(f"v_mfma_f32_16x16x32_bf16 {S[t]}, {VMo[t]}, {PM}, {S[t]}")
                if t == 0: A(f"v_rcp_f32 {vRL[0]}, {S[2][0]}")
            for t in range(2):
                for hh in range(2):
                    sp = S[t][2*hh:2*hh+2]
                    A(f"v_pk_mul_f32 {sp}, {sp}, {vRL} op_sel_hi:[1,0]")
                    A(f"v_cvt_pk_bf16_f32 {OO[2*t+hh]}, {sp[0]}, {sp[1]}")
            A(f"buffer_store_dwordx4 {OO}, {vOS}, {WS}, {s_slot} offen {IF}")
        A("s_barrier")
        st()
        delay(PRE[3])
        def body4(i, ph):
            A(f"v_smfmac_f32_16x16x64_bf16 {ACC[ph]}, {F[i]}, {WOr(ph, i)}, {vIdx}")
        gather(vGO, "o", body4, ACC[0:2])
        st()
        for hh in range(2):
            for r in (2 * hh, 2 * hh + 1): A(f"v_permlane32_swap_b32 {ACC[0][r]}, {ACC[1][r]}")
            A(f"v_pk_add_f32 {ACC[0][2*hh:2*hh+2]}, {ACC[0][2*hh:2*hh+2]}, {ACC[1][2*hh:2*hh+2]}")
            A(f"ds_write2_b32 {vPw}, {ACC[0][2*hh]}, {ACC[0][2*hh+1]} offset0:{72*hh} offset1:{72*hh+36}")
        A("s_waitcnt lgkmcnt(0)\ns_barrier")
        st()
        if wk == 0:
            for w in range(4): A(f"ds_read_b128 {T[w]}, {vPr} offset:{w*1152}")
            A("s_waitcnt lgkmcnt(2)"); padd(T[0], T[0], T[1])
            A("s_waitcnt lgkmcnt(1)"); padd(T[0], T[0], T[2])
            A("s_waitcnt lgkmcnt(0)"); padd(OWN, T[0], T[3])
            A(f"buffer_store_dwordx4 {OWN}, {vPS}, {WS}, {s_kv} offen sc1")
        st(); st_acc()
        for r in (s_slot, s_pslot):
            A(f"s_add_u32 {r}, {r}, {SLOT_SZ}\ns_cmp_eq_u32 {r}, {RING0 + RN * SLOT_SZ}\ns_cselect_b32 {r}, {RING0}, {r}")
        A(f"s_add_u32 {s_kv}, {s_kv}, 0x40000\ns_add_u32 {s_kvm}, {s_kvm}, 0x20000\ns_add_u32 {s_step}, {s_step}, 1")
        A(f"s_branch L_loop_{tg}")
        A(f"L_last_{tg}:")
        if wk == 1:
            kvm_store(s_kvm)
            A(f"v_mov_b32 {vRFv}, {NSEG}\ns_waitcnt vmcnt(0)")
            A(f"buffer_store_dword {vRFv}, {vRF}, {WS}, 0 offen sc1")
        st_dump()
        A("s_branch L_end")
        for t in tails: t()

    for md in ('f', 's'):
        if md == 's': A("L_r_safe:")
        for wk in (1, 2, 3):
            A(f"s_cmp_eq_u32 {s_wave}, {wk}\ns_cbranch_scc1 L_{'pre' if wk in (1, 3) else 'loop'}_{md}{wk}")
        for wk in (0, 1, 2, 3): r_loop(wk, md)

    from gen_g import emit_g
    emit_g(A, V, opt, dict(vLane=vLane, vL16=vL16, vG=vG, vJ=vJ, vT0=vT0, vT1=vT1, vT2=vT2, confirm=confirm, dma_chunk=dma_chunk))
    A("L_end:\ns_endpgm")
    return A.finish() + kd(name, 512, 256)
```

```python
MB = 1 << 20
FLAG = 0
RING0 = 65536
RN = 4
MEM_OFF = 0
O_OFF = 0x10000
SC_OFF = 0x20000
SLOT_SZ = 0x48000
PD = 2
PART0 = 1 * MB
PXT = 54 * MB
POISON_BYTES = 1536 * 1024
KXF = 64 * MB
VXF = 80 * MB
QXF = 96 * MB
KVM = PART0 + 0xA0000
QBF = 120 * MB
KBF = 124 * MB
VBF = 128 * MB
OAF = 132 * MB
OBF = 150 * MB
WOF = 156 * MB
WOBF = 160 * MB
WS_BYTES = 256 * MB
OOB = 0x80000000
DBGO = 200 * MB
assert RING0 + RN * SLOT_SZ <= PART0 + 0x40000
FLAGT = FLAG + 32768
FLAGR = FLAG + 40960
CNTB = FLAG + 36864
DONEB = FLAG + 49152
DONEH = FLAG + 53248
FLAGB = FLAG + 33280
FLAGC = FLAG + 57344
PX = 20 * MB
PART2 = 164 * MB
```

```python
from asmlib import Asm, Regs, R
from layout import *
from tasks import Ctx, emit_t6, f32
import math
import gen_main as M
WS, SW, SX = M.WS, M.SW, M.SX
NSEG = 64

class VQ:
    def __init__(self): self.seq = []; self.pos = 0; self.rec = True
    def op(self, tag, optional=False):
        if self.rec: self.seq.append((tag, optional))
        self.pos += 1
    def younger(self, tag, nth=1):
        if self.rec: return 0
        n = len(self.seq); cnt = 0
        for d in range(1, 3 * n + 1):
            t, o = self.seq[(self.pos - d) % n]
            if t == tag:
                nth -= 1
                if nth == 0: return cnt
            if not o: cnt += 1
        raise ValueError(tag)
    def second(self): self.rec = False; self.pos = 0

def emit_g(A0, V, opt, c):
    A = A0
    STAMP = opt.get('stamp', False)
    vLane, vL16, vG, vJ, vT0, vT1, vT2 = [c[k] for k in ('vLane', 'vL16', 'vG', 'vJ', 'vT0', 'vT1', 'vT2')]
    confirm, dma_chunk = c['confirm'], c['dma_chunk']
    s_wave, s_role, s_bud = "s20", "s21", "s28"
    s_t0, s_t1, s_t2, s_t3 = "s24", "s25", "s26", "s27"
    s_g, s_wstr, s_wcol, s_obase, s_ostr, s_type = "s32", "s33", "s34", "s35", "s36", "s37"
    s_blk, s_xsrc, s_osoff, s_gl, s_gsrc, s_xs, s_m0, s_onext, s_isq = "s38", "s39", "s40", "s41", "s42", "s43", "s44", "s47", "s45"
    P = M
    DP1 = True
    s_xd = "s29"
    A("L_grole:")
    V.next = 8
    vGW = V.alloc('gw'); vGTr = V.alloc('gtr'); vXq = [V.alloc(f'xq{q}') for q in range(4)]
    vRB = [[V.alloc(f'rb{b}{q}') for q in range(4)] for b in range(2)]
    vO = V.alloc('o'); vGF = V.alloc('gf'); vFv = V.alloc('fv'); vPf = V.alloc('pf'); vPfd = V.alloc('pfd')
    vFa = V.alloc('fa'); vTF = V.alloc('tf'); vKf = V.alloc('kf'); vPz = V.alloc('pz'); vWp = V.alloc('wp'); vPz2 = V.alloc('pz2'); POI = V.alloc('poi', 4); vFd = V.alloc('fd', 4)
    C = Ctx(A, V, vLane, vL16, vG, vJ, vT0, vT1)
    tbase = V.next
    XF = [V.alloc(f'xf{i}', 4) for i in range(8)]
    GA = [[V.alloc(f'ga{s}{i}', 4) for i in range(4)] for s in range(2)]
    PK = [V.alloc(f'pk{i}', 4) for i in range(2)]
    PIN = [V.alloc(f'pin{i}', 4) for i in range(4)]
    def stamp(off):
        if STAMP:
            A("s_memrealtime s[100:101]\ns_waitcnt lgkmcnt(0)")
            A(f"s_lshl_b32 {s_t0}, {s_role}, 7\ns_add_u32 {s_t0}, {s_t0}, {DBGO}\nv_mov_b32 {vT1}, 0\ns_mov_b64 exec, 1")
            A(f"v_mov_b32 {vT0}, s100\nbuffer_store_dword {vT0}, {vT1}, {WS}, {s_t0} offen offset:{off}")
            A(f"v_mov_b32 {vT2}, s96\nbuffer_store_dword {vT2}, {vT1}, {WS}, {s_t0} offen offset:48\ns_mov_b64 exec, -1\ns_waitcnt vmcnt(0)")
    def budget(): A(f"s_sub_u32 {s_bud}, {s_bud}, 1\ns_cbranch_scc1 L_end")
    def lane0_addr(dst, s_addr):
        A(f"v_mov_b32 {vT0}, {s_addr}\nv_mov_b32 {vT1}, {OOB}\nv_cmp_eq_u32 vcc, 0, {vLane}\nv_cndmask_b32 {dst}, {vT1}, {vT0}, vcc")
    A(f"s_sub_u32 {s_g}, {s_role}, 128")
    for r in (vFa, vTF, vKf): A(f"v_mov_b32 {r}, {OOB}")
    A(f"s_lshl_b32 {s_m0}, {s_wave}, 13")
    A(f"s_cmp_ge_u32 {s_g}, 120\ns_cbranch_scc1 L_b2role")
    def g_voff():
        A(f"v_mul_lo_u32 {vT0}, {vG}, {s_wstr}\nv_lshl_add_u32 {vGW}, {vJ}, 4, {vT0}")
        A(f"s_lshl_b32 {s_t0}, {s_wave}, 5\ns_mul_i32 {s_t0}, {s_t0}, {s_wstr}\ns_add_u32 {s_gsrc}, {s_gsrc}, {s_t0}\ns_lshl_b32 {s_wstr}, {s_wstr}, 2")
    def g_stage(base):
        A(f"s_lshl_b32 {s_gl}, {s_wave}, 13\ns_add_u32 {s_gl}, {s_gl}, {base}")
        A(f"v_bfe_u32 {vT0}, {vLane}, 2, 2\nv_lshl_add_u32 {vT0}, {vG}, 3, {vT0}\nv_lshlrev_b32 {vT0}, 8, {vT0}\nv_and_b32 {vT1}, 3, {vLane}\nv_lshl_add_u32 {vT0}, {vT1}, 4, {vT0}")
        A(f"s_lshl_b32 {s_t0}, {s_wave}, 6\ns_add_u32 {s_t0}, {s_t0}, {base}\nv_add_u32 {vGTr}, {s_t0}, {vT0}")
    def g_wload(depth, fuse=None, extra={}):
        def chunk(ch):
            for i in range(8):
                A(f"s_add_u32 m0, {s_gl}, {(ch % depth) * 32768 + i * 1024}")
                A(f"buffer_load_dwordx4 {vGW}, {SW}, {s_gsrc} offen lds")
                A(f"s_add_u32 {s_gsrc}, {s_gsrc}, {s_wstr}")
            A(f"s_mul_i32 {s_t0}, {s_wstr}, 24\ns_add_u32 {s_gsrc}, {s_gsrc}, {s_t0}")
        for ch in range(depth): chunk(ch)
        issued = depth
        for ch in range(8):
            A(f"s_waitcnt vmcnt({8 * (issued - ch - 1) + extra.get(ch, 0)})\ns_barrier")
            if ch >= 1 and issued < 8: chunk(issued); issued += 1
            sl = ch % depth
            if sl >= 2 and sl % 2 == 0: A(f"v_add_u32 {vGTr}, 65536, {vGTr}")
            if sl == 0 and ch > 0 and depth > 2: A(f"v_subrev_u32 {vGTr}, {65536 * ((depth - 1) // 2)}, {vGTr}")
            for k4 in range(4):
                ks = ch * 4 + k4
                for t in range(2):
                    for hh in range(2):
                        a0 = (t * 32 + ks) * 4 + 2 * hh
                        A(f"ds_read_b64_tr_b16 a[{a0}:{a0+1}], {vGTr} offset:{(sl & 1) * 32768 + (32 * k4 + 4 * hh) * 256 + 8 * t}")
            A("s_waitcnt lgkmcnt(0)")
            if fuse: fuse(ch)
    A(f"s_mov_b32 {s_isq}, 0")
    A(f"s_cmp_ge_u32 {s_g}, 96\ns_cbranch_scc1 L_gB")
    A(f"s_lshr_b32 {s_t0}, {s_g}, 5\ns_and_b32 {s_t1}, {s_g}, 31")
    A(f"s_mov_b32 s12, s{P.P_WK}\ns_mov_b32 s13, s{P.P_WK+1}\ns_mov_b32 {s_obase}, {KXF}\ns_mov_b32 {s_type}, 0")
    A(f"s_cmp_eq_u32 {s_t0}, 1\ns_cselect_b32 s12, s{P.P_WV}, s12\ns_cselect_b32 s13, s{P.P_WV+1}, s13\ns_cselect_b32 {s_obase}, {VXF}, {s_obase}\ns_cselect_b32 {s_type}, 1, 0")
    A(f"s_cmp_eq_u32 {s_t0}, 2\ns_cselect_b32 s12, s{P.P_WQ}, s12\ns_cselect_b32 s13, s{P.P_WQ+1}, s13\ns_cselect_b32 {s_obase}, {QXF}, {s_obase}\ns_cselect_b32 {s_isq}, 1, 0")
    A(f"s_mov_b32 s14, {8*MB}\ns_mov_b32 {s_wstr}, 8192\ns_lshl_b32 {s_wcol}, {s_t1}, 8\ns_mov_b32 {s_ostr}, 0x40000")
    A(f"s_mov_b32 s16, s{P.P_AX}\ns_mov_b32 s17, s{P.P_AX+1}")
    A("s_branch L_gP")
    A("L_gB:")
    A(f"s_sub_u32 {s_t2}, {s_g}, 96\ns_lshr_b32 {s_t0}, {s_t2}, 3\ns_and_b32 {s_t1}, {s_t2}, 7")
    A(f"s_mov_b32 s12, s{P.P_WQKV}\ns_mov_b32 s13, s{P.P_WQKV+1}\ns_mov_b32 s14, {6*MB}\ns_mov_b32 {s_wstr}, 6144\ns_lshl_b32 {s_wcol}, {s_t2}, 8\ns_mov_b32 {s_ostr}, 0x10000")
    A(f"s_lshl_b32 {s_obase}, {s_t0}, 22\ns_add_u32 {s_obase}, {s_obase}, {QBF}")
    A(f"s_cmp_eq_u32 {s_t0}, 2\ns_cselect_b32 {s_type}, 1, 0")
    A(f"s_mov_b32 s16, s{P.P_BX}\ns_mov_b32 s17, s{P.P_BX+1}")
    A("L_gP:")
    A(f"s_mov_b32 s18, {4*MB}")
    A(f"s_lshl_b32 {s_t1}, {s_t1}, 2\ns_add_u32 {s_t1}, {s_t1}, {s_wave}\ns_lshl_b32 {s_t1}, {s_t1}, 11\ns_add_u32 {s_t1}, {s_t1}, {s_obase}\nv_add_u32 {vO}, {s_t1}, {vL16}")
    A(f"s_lshl_b32 {s_t1}, {s_g}, 2\ns_add_u32 {s_t1}, {s_t1}, {s_wave}\ns_lshl_b32 {s_t1}, {s_t1}, 6")
    lane0_addr(vGF, s_t1)
    A(f"s_lshl_b32 {s_t1}, {s_t1}, 4\ns_lshl_b32 {s_t0}, {s_type}, 11\ns_xor_b32 {s_t1}, {s_t1}, {s_t0}\ns_add_u32 {s_t1}, {s_t1}, {PART0 + 0x80000}\ns_cmp_lt_u32 {s_g}, 64\ns_cselect_b32 {s_t1}, {s_t1}, {OOB // 2}\nv_add_u32 {vPz}, {s_t1}, {vL16}\nv_add_u32 {vPz2}, {PART2 - PART0}, {vPz}")
    for i in range(4): A(f"v_mov_b32 {POI[i]}, -1")
    A(f"v_lshrrev_b32 {vT0}, 2, {vJ}\nv_lshlrev_b32 {vT0}, 3, {vT0}\nv_and_b32 {vT1}, 3, {vJ}\nv_add_u32 {vT0}, {vT0}, {vT1}\nv_lshlrev_b32 {vT0}, 10, {vT0}")
    A(f"v_xor_b32 {vT1}, {vG}, {vJ}")
    for q in range(4):
        A(f"v_xor_b32 {vT2}, {4*q}, {vT1}\nv_lshl_add_u32 {vRB[0][q]}, {vT2}, 4, {vT0}\nv_add_u32 {vRB[1][q]}, 65536, {vRB[0][q]}")
    A(f"s_lshl_b32 {s_t0}, {s_wave}, 6")
    for q in range(4):
        A(f"s_add_u32 {s_t1}, {s_t0}, {16*q}\nv_xor_b32 {vXq[q]}, {s_t1}, {vL16}")
    A(f"s_lshl_b32 {s_xsrc}, {s_wave}, 14")
    A(f"s_lshl_b32 {s_m0}, {s_wave}, 13")
    def x_dma(A, hh, r, part=3):
        if part & 1:
            A(f"s_add_u32 m0, {s_m0}, {(hh & 3) * 32768 + r * 1024}")
            A(f"s_add_u32 {s_xd}, {s_xsrc}, {(hh >> 1) * 65536 + (hh & 1) * 1024 + r * 2048}")
        if part & 2: A(f"buffer_load_dwordx4 {vXq[r & 3]}, {SX}, {s_xd} offen lds")
    def xrd(A, dst, n):
        n &= 127
        hh, ks, u = n >> 5, (n >> 1) & 15, n & 1
        A(f"ds_read_b128 {dst}, {vRB[hh >> 1][ks & 3]} offset:{(hh & 1) * 32768 + (ks >> 2) * 256 + u * 4096}")
    for hh in range(2):
        for r in range(8): x_dma(A, hh, r)
    PFD = opt.get('pfd', 5)
    A(f"s_and_b32 {s_t0}, {s_role}, 7\ns_lshl_b32 {s_t0}, {s_t0}, 13\ns_lshl_b32 {s_t1}, {s_wave}, 11\ns_add_u32 {s_t0}, {s_t0}, {s_t1}\ns_add_u32 {s_t0}, {s_t0}, 65536\ns_sub_u32 {s_t0}, {s_t0}, {s_xsrc}")
    A(f"v_lshlrev_b32 {vT0}, 7, {vLane}\nv_add_u32 {vT0}, {s_t0}, {vT0}\nv_mov_b32 {vT1}, {OOB}\nv_cmp_gt_u32 vcc, 16, {vLane}\nv_cndmask_b32 {vPf}, {vT1}, {vT0}, vcc")
    for k in range(PFD):
        A(f"s_add_u32 {s_xs}, {s_xsrc}, {k * 65536}\nbuffer_load_dword {vPfd}, {vPf}, {SX}, {s_xs} offen")
    A(f"v_add_u32 {vPf}, {PFD * 65536}, {vPf}")
    A(f"s_mov_b32 {s_gsrc}, {s_wcol}")
    g_voff()
    def GW(t, ks): b = (t * 32 + ks) * 4; return f"a[{b}:{b+3}]"
    def pack(A, dst, lo, hi):
        A(f"v_cvt_pk_bf16_f32 {dst[0]}, {lo[0]}, {lo[1]}\nv_cvt_pk_bf16_f32 {dst[1]}, {lo[2]}, {lo[3]}")
        A(f"v_cvt_pk_bf16_f32 {dst[2]}, {hi[0]}, {hi[1]}\nv_cvt_pk_bf16_f32 {dst[3]}, {hi[2]}, {hi[3]}")
    def fuse0(ch):
        for n in range(8): xrd(A, XF[n], ch * 8 + n)
        A(f"s_waitcnt lgkmcnt(0)\ns_cmp_eq_u32 {s_type}, 1\ns_cbranch_scc1 L_f0n{ch}")
        for ty in 'TN':
            if ty == 'N': A(f"L_f0n{ch}:")
            for n in range(8):
                ks, u = ch * 4 + (n >> 1), n & 1
                for t in range(2):
                    cc = "0" if ks == 0 else str(GA[1][u * 2 + t])
                    ab = (GW(t, ks), XF[n]) if ty == 'T' else (XF[n], GW(t, ks))
                    A(f"v_mfma_f32_16x16x32_bf16 {GA[1][u*2+t]}, {ab[0]}, {ab[1]}, {cc}")
            if ty == 'T': A(f"s_branch L_f0d{ch}")
        A(f"L_f0d{ch}:")
    if opt.get('wopf', 0) == 1:
        A(f"s_cmp_eq_u32 {s_isq}, 0\ns_cbranch_scc1 L_gnw")
        A(f"s_mov_b32 s52, s{P.P_WO}\ns_mov_b32 s53, s{P.P_WO+1}\ns_mov_b32 s54, {8*MB}\ns_mov_b32 s55, 0x20000")
        A(f"s_and_b32 {s_t0}, {s_g}, 31\ns_lshl_b32 {s_t0}, {s_t0}, 2\ns_add_u32 {s_t0}, {s_t0}, {s_wave}\ns_lshl_b32 {s_t0}, {s_t0}, 16\nv_lshlrev_b32 {vT0}, 7, {vLane}")
        for k in range(8):
            A(f"buffer_load_dword {XF[k][0]}, {vT0}, s[52:55], {s_t0} offen\nbuffer_load_dword {XF[k][1]}, {vT0}, s[52:55], {s_t0} offen offset:64\ns_add_u32 {s_t0}, {s_t0}, 8192")
        A("L_gnw:")
    g_stage(65536)
    g_wload(3, fuse0)
    confirm("g")
    A(f"s_nop 7\ns_cmp_eq_u32 {s_type}, 1\ns_cbranch_scc1 L_f0en")
    for f in range(2): pack(A, PK[f], GA[1][f * 2], GA[1][f * 2 + 1])
    A("s_branch L_f0ed\nL_f0en:")
    for f in range(2): pack(A, PK[f], GA[1][f], GA[1][2 + f])
    A("L_f0ed:")
    for f in range(2): A(f"buffer_store_dwordx4 {PK[f]}, {vO}, {WS}, 0 offen offset:{f*1024} sc1")
    A(f"buffer_store_dwordx4 {POI}, {vPz}, {WS}, 0 offen sc1")
    A(f"buffer_store_dwordx4 {POI}, {vPz2}, {WS}, 0 offen sc1")
    A(f"v_mov_b32 {vFv}, 1\ns_waitcnt vmcnt(0)")
    A(f"buffer_store_dword {vFv}, {vGF}, {WS}, 0 offen sc1")
    stamp(52)
    A(f"s_mov_b32 {s_blk}, 0\ns_mov_b32 {s_osoff}, {OOB}\ns_mov_b32 {s_onext}, 0")
    WPN = opt.get('wpn', 6)
    s_wp = "s46"
    A(f"s_mov_b32 s12, s{P.P_WO}\ns_mov_b32 s13, s{P.P_WO+1}\ns_mov_b32 s14, {8*MB}")
    A(f"s_bfe_u32 {s_t0}, {s_g}, 0x20003\ns_lshl_b32 {s_t0}, {s_t0}, 21\ns_and_b32 {s_t1}, {s_g}, 7\ns_lshl_b32 {s_t1}, {s_t1}, 2\ns_add_u32 {s_t1}, {s_t1}, {s_wave}\ns_lshl_b32 {s_t1}, {s_t1}, 6\ns_add_u32 {s_t0}, {s_t0}, {s_t1}")
    A(f"s_cmp_lt_u32 {s_g}, 64\ns_cselect_b32 {s_t0}, {s_t0}, {OOB // 2}\nv_lshlrev_b32 {vWp}, 11, {vLane}\nv_add_u32 {vWp}, {s_t0}, {vWp}")
    s_task, s_tgt, s_rk, s_kvd = "s48", "s49", "s50", "s51"
    A(f"s_cmp_eq_u32 {s_isq}, 0\ns_cbranch_scc1 L_noq")
    C.setup()
    A(f"s_and_b32 {s_t2}, {s_g}, 31\ns_lshl_b32 {s_t1}, {s_t2}, 7\ns_add_u32 {s_t1}, {s_t1}, {FLAGR}\nv_mov_b32 {vFa}, {s_t1}")
    A(f"s_lshl_b32 {s_t0}, {s_t2}, 4\ns_lshl_b32 {s_t1}, {s_wave}, 2\ns_add_u32 {s_t0}, {s_t0}, {s_t1}\ns_add_u32 {s_t0}, {s_t0}, {FLAGT}")
    lane0_addr(vTF, s_t0)
    A(f"s_lshl_b32 {s_task}, {s_wave}, 5\ns_add_u32 {s_task}, {s_task}, {s_t2}\ns_add_u32 {s_tgt}, {s_wave}, 1\ns_mov_b32 {s_rk}, 0")
    A(f"v_bfe_u32 {vT0}, {vLane}, 2, 1\nv_lshlrev_b32 {vT0}, 13, {vT0}\nv_and_b32 {vT1}, 3, {vLane}\nv_lshl_add_u32 {vT0}, {vT1}, 6, {vT0}\ns_lshl_b32 {s_t0}, {s_t2}, 8\nv_add_u32 {vKf}, {s_t0}, {vT0}\ns_mov_b32 {s_kvd}, 0")
    A("L_noq:")
    A("s_barrier")
    x_dma(A, 2, 0); x_dma(A, 2, 1)
    A("L_grd:")
    for n in range(8): xrd(A, XF[n], n)
    A(f"s_cmp_eq_u32 {s_type}, 1\ns_cbranch_scc1 L_gl_N")

    def stream_body(A, q, ty, dma, rd, hook, w):
        for hh in range(4):
            par = hh >> 1; acc = GA[par]
            for k in range(16):
                ks = (hh & 1) * 16 + k
                hook(hh, k, 'pre')
                if k == 12: A(f"s_waitcnt vmcnt({q.younger(f'd{(hh + 1) & 3}')})\ns_barrier")
                A("s_waitcnt lgkmcnt(6)")
                dh, dr = (hh + 2, 2 + (k >> 1)) if k < 12 else (hh + 3, (k - 12) >> 1)
                for u in range(2):
                    n = hh * 32 + 2 * k + u
                    xf = XF[n % 8]
                    mine = (2 * (k & 1) + u) == w
                    for t in range(2):
                        cc = "0" if ks == 0 else str(acc[u * 2 + t])
                        if mine and t == 0: dma(A, dh, dr, 1)
                        if ty == 'T': A(f"v_mfma_f32_16x16x32_bf16 {acc[u*2+t]}, {GW(t, ks)}, {xf}, {cc}")
                        else: A(f"v_mfma_f32_16x16x32_bf16 {acc[u*2+t]}, {xf}, {GW(t, ks)}, {cc}")
                        if mine and t == 0: dma(A, dh, dr, 2); q.op(f'd{dh & 3}')
                        if (u * 2 + t) == ((w + 1) & 3) | 1 and u == (((w + 1) & 3) >> 1): hook(hh, k, 'post')
                    rd(A, xf, n + 8)
    def two_pass(emit):
        q = VQ(); emit(Asm(), q); q.second(); emit(A, q)

    def g_loop(ty):
        def epi(A, acc, f, adv=True):
            lo, hi = (acc[f * 2 + 0], acc[f * 2 + 1]) if ty == 'T' else (acc[0 * 2 + f], acc[1 * 2 + f])
            pack(A, PK[f], lo, hi)
            if f == 1: A(f"buffer_store_dwordx4 {POI}, {vPz}, {WS}, {s_osoff} offen sc1")
            if f == 0 and ty == 'T' and DP1: A(f"buffer_store_dwordx4 {POI}, {vPz2}, {WS}, {s_osoff} offen sc1")
            A(f"buffer_store_dwordx4 {PK[f]}, {vO}, {WS}, {s_osoff} offen offset:{f*1024} sc1")
            if f == 1 and adv: A(f"s_mov_b32 {s_osoff}, {s_onext}\ns_add_u32 {s_onext}, {s_onext}, {s_ostr}")
        def emit(A, q):
            def hook(hh, k, ph):
                if ph != 'post': return
                par = hh >> 1
                if (hh & 1) == 0 and k in (2, 4):
                    epi(A, GA[1 - par], (k >> 1) - 1); q.op('st')
                    if k == 4 or (ty == 'T' and DP1): q.op('st')
                if (hh & 1) == 1 and k == 4:
                    A(f"s_waitcnt vmcnt({q.younger('st')})\ns_max_u32 {s_t0}, {s_blk}, 1\nv_mov_b32 {vFv}, {s_t0}")
                    A(f"buffer_store_dword {vFv}, {vGF}, {WS}, 0 offen sc1"); q.op('fl')
                    A(f"s_add_u32 {s_xs}, {s_xsrc}, {par * 65536}\nbuffer_load_dword {vPfd}, {vPf}, {SX}, {s_xs} offen"); q.op('pf')
                    A(f"s_sub_u32 {s_wp}, {s_blk}, {NSEG - WPN}\ns_lshl_b32 {s_t0}, {s_wp}, 17\ns_cmp_lt_u32 {s_wp}, {WPN}\ns_cselect_b32 {s_wp}, {s_t0}, {OOB}")
                    A(f"buffer_load_dword {vPfd}, {vWp}, {SW}, {s_wp} offen"); q.op('pf')
                    A(f"s_add_u32 {s_blk}, {s_blk}, 1")
            stream_body(A, q, ty, x_dma, xrd, hook, wv[0])
        wv = [0]
        A(f"L_gl_{ty}:")
        for w in (1, 2, 3): A(f"s_cmp_eq_u32 {s_wave}, {w}\ns_cbranch_scc1 L_gl_{ty}{w}")
        for w in range(4):
            wv[0] = w
            A(f"L_gl_{ty}{w}:")
            two_pass(emit)
            A(f"s_add_u32 {s_xsrc}, {s_xsrc}, 131072")
            if ty == 'T': A(f"s_cmp_eq_u32 {s_isq}, 1\ns_cbranch_scc1 L_qhook")
            A(f"s_cmp_lg_u32 {s_blk}, {NSEG}\ns_cbranch_scc1 L_gl_{ty}{w}")
            if w < 3: A(f"s_branch L_gx_{ty}")
        A(f"L_gx_{ty}:")
        A("s_nop 7")
        epi(A, GA[1], 0); epi(A, GA[1], 1)
        A(f"s_waitcnt vmcnt(0) lgkmcnt(0)\nv_mov_b32 {vFv}, {s_blk}")
        A(f"buffer_store_dword {vFv}, {vGF}, {WS}, 0 offen sc1")
        stamp(56)
        A(f"s_cmp_ge_u32 {s_g}, 96\ns_cbranch_scc1 L_b2go\ns_branch L_fg")
        if ty == 'T':
            A("L_qhook:")
            A(f"s_and_b32 {s_t0}, {s_blk}, 3\ns_cmp_lg_u32 {s_t0}, 0\ns_cbranch_scc1 L_gl_T")
            A(f"buffer_load_dwordx4 {vFd}, {vFa}, {WS}, 0 offen sc1")
            A("s_nop 7")
            epi(A, GA[1], 0, False); epi(A, GA[1], 1, False)
            A(f"s_mov_b32 {s_osoff}, {OOB}")
            A("s_waitcnt vmcnt(0) lgkmcnt(0)\ns_barrier")
            A(f"v_min_i32 {vFd[0]}, {vFd[0]}, {vFd[1]}\nv_min3_i32 {vFd[0]}, {vFd[0]}, {vFd[2]}, {vFd[3]}\nv_readfirstlane_b32 {s_rk}, {vFd[0]}")
            if STAMP:
                A(f"s_cmp_lg_u32 {s_blk}, {NSEG}\ns_cbranch_scc1 L_qst"); stamp(56)
                A(f"s_lshl_b32 {s_t0}, {s_role}, 7\ns_add_u32 {s_t0}, {s_t0}, {DBGO}\nv_mov_b32 {vT1}, 0\ns_mov_b64 exec, 1\nv_mov_b32 {vT0}, {s_tgt}\nbuffer_store_dword {vT0}, {vT1}, {WS}, {s_t0} offen offset:40\ns_mov_b64 exec, -1\nL_qst:")
            A(f"s_cmp_eq_u32 {s_blk}, {NSEG}\ns_cbranch_scc1 L_t6r")
            A(f"s_cmp_ge_i32 {s_rk}, {s_tgt}\ns_cbranch_scc0 L_grd")
            A(f"s_cmp_ge_u32 {s_blk}, {s_tgt}\ns_cbranch_scc0 L_grd")
            A("L_t6r:")
            V.next = tbase
            def wait_kv():
                A(f"s_cmp_eq_u32 {s_kvd}, 1\ns_cbranch_scc1 L_wk_done\ns_branch L_wk_go")
                A("L_wk:\ns_sleep 16\nL_wk_go:")
                A(f"buffer_load_dword {vFd[0]}, {vKf}, {WS}, 0 offen sc1")
                budget()
                A(f"s_waitcnt vmcnt(0)\nv_cmp_gt_i32 vcc, {s_tgt}, {vFd[0]}\ns_cbranch_vccnz L_wk")
                A(f"v_cmp_gt_i32 vcc, {NSEG}, {vFd[0]}\ns_cbranch_vccnz L_wk_done\ns_mov_b32 {s_kvd}, 1")
                A("L_wk_done:")
            def wait_r():
                A(f"s_branch L_wr_chk")
                A(f"L_wr:\ns_sleep 24")
                A(f"buffer_load_dwordx4 {vFd}, {vFa}, {WS}, 0 offen sc1")
                budget()
                A("s_waitcnt vmcnt(0)")
                A(f"v_min_i32 {vFd[0]}, {vFd[0]}, {vFd[1]}\nv_min3_i32 {vFd[0]}, {vFd[0]}, {vFd[2]}, {vFd[3]}\nv_readfirstlane_b32 {s_rk}, {vFd[0]}")
                A(f"L_wr_chk:\ns_add_u32 {s_t0}, {s_rk}, 2\ns_cmp_ge_i32 {s_t0}, {s_tgt}\ns_cbranch_scc0 L_wr")
            emit_t6(C, s_task, "sc1", wait_r, wait_kv)
            A(f"s_add_u32 {s_t0}, {s_tgt}, 3\nv_mov_b32 {vFv}, {s_t0}\ns_waitcnt vmcnt(0)")
            A(f"buffer_store_dword {vFv}, {vTF}, {WS}, 0 offen sc1")
            A(f"s_add_u32 {s_task}, {s_task}, 128\ns_add_u32 {s_tgt}, {s_tgt}, 4")
            A(f"s_cmp_lg_u32 {s_blk}, {NSEG}\ns_cbranch_scc1 L_grd")
            A(f"s_cmp_le_u32 {s_tgt}, {NSEG}\ns_cbranch_scc1 L_t6r")
            stamp(44)
            A("s_branch L_end")
    g_loop('T')
    g_loop('N')

    A("L_fg:")
    NT = (NSEG - opt.get('s0', 60)) // 2; assert NT % 2 == 0 or True
    FPD = opt.get('fpd', 2)
    V.next = PIN[3].base + 4
    PARK = PIN
    PG = [V.alloc(f'pg{i}', 4) for i in range(6)]
    UP = V.alloc('up', 2); SUMR = [V.alloc(f'sum{i}', 4) for i in range(4)]
    M.load_kernargs(A); A("s_waitcnt lgkmcnt(0)")
    s_set, s_kc, s_ng, s_nblk, s_clamp, s_tin = "s48", "s49", "s50", "s51", "s46", "s45"
    s_inb = ["s52", "s53", "s54", "s55"]; s_istr2 = "s56"
    s_e1, s_e2, s_px, s_pxn, s_out, s_outn, s_outstr = "s57", "s58", "s59", "s60", "s61", "s62", "s63"
    s_ppx, s_pout, s_kco = "s35", "s36", "s37"
    s_pe = ["s39", "s40", "s47"]
    vTg, vTs, vFl, vPa, vOa, vOb = vXq[0], vXq[1], vXq[2], vXq[3], vPf, vPfd
    vR0, vR1 = vRB[0][0], vRB[1][0]
    OUT = "s[16:19]"
    A(f"s_and_b32 {s_ng}, {s_g}, 7\ns_mov_b32 {s_wstr}, 2048")
    A(f"s_mov_b32 s16, s{P.P_OUT}\ns_mov_b32 s17, s{P.P_OUT+1}\ns_mov_b32 s18, {8*MB}")
    A(f"v_and_b32 {vT2}, 31, {vLane}\nv_lshlrev_b32 {vT2}, 2, {vT2}")
    A(f"s_lshr_b32 {s_t2}, {s_wave}, 1\ns_and_b32 {s_t3}, {s_wave}, 1\ns_lshl_b32 {s_t3}, {s_t3}, 13")
    A(f"s_cmp_ge_u32 {s_g}, 96\ns_cbranch_scc1 L_fgB")
    A(f"s_lshr_b32 {s_set}, {s_g}, 5\ns_bfe_u32 {s_kc}, {s_g}, 0x20003\ns_mov_b32 {s_nblk}, {32 - NT}\ns_add_u32 {s_clamp}, {s_set}, {63 - 2 * NT}")
    A(f"s_add_u32 {s_e1}, {s_kc}, 1\ns_and_b32 {s_e1}, {s_e1}, 3\ns_mov_b32 {s_e2}, {s_kc}")
    A(f"s_mov_b32 s12, s{P.P_WO}\ns_mov_b32 s13, s{P.P_WO+1}\ns_mov_b32 s14, {8*MB}")
    A(f"s_lshl_b32 {s_t0}, {s_set}, 18\ns_lshl_b32 {s_t1}, {s_t2}, 17\ns_add_u32 {s_t0}, {s_t0}, {s_t1}\ns_lshl_b32 {s_t1}, {s_kc}, 15\ns_add_u32 {s_t0}, {s_t0}, {s_t1}\ns_add_u32 {s_t0}, {s_t0}, {s_t3}\ns_add_u32 {s_inb[0]}, {s_t0}, {OAF}")
    A(f"s_mov_b32 {s_t0}, {2 * 0x40000}\ns_mov_b32 {s_t1}, 2\ns_mov_b32 {s_wcol}, 0")
    A(f"s_lshl_b32 {s_t2}, {s_kc}, 7\ns_add_u32 {s_t2}, {s_t2}, {FLAGT}")
    A("s_branch L_fgP")
    A("L_fgB:")
    A(f"s_sub_u32 {s_set}, {s_g}, 96\ns_lshr_b32 {s_set}, {s_set}, 3\ns_mov_b32 {s_kc}, 4\ns_mov_b32 {s_nblk}, 16\ns_mov_b32 {s_clamp}, -2\ns_mov_b32 {s_e1}, 7\ns_mov_b32 {s_e2}, 7")
    A(f"s_mov_b32 s12, s{P.P_WOB}\ns_mov_b32 s13, s{P.P_WOB+1}\ns_mov_b32 s14, {2*MB}")
    A(f"s_lshl_b32 {s_t0}, {s_set}, 16\ns_lshl_b32 {s_t1}, {s_t2}, 15\ns_add_u32 {s_t0}, {s_t0}, {s_t1}\ns_add_u32 {s_t0}, {s_t0}, {s_t3}\ns_add_u32 {s_inb[0]}, {s_t0}, {OBF}")
    A(f"s_mov_b32 {s_t0}, {4 * 0x10000}\ns_mov_b32 {s_t1}, 4\ns_mov_b32 {s_wcol}, 2048\ns_mov_b32 {s_t2}, {DONEB}\nv_mov_b32 {vT2}, 0")
    A("L_fgP:")
    for i in range(1, 4): A(f"s_add_u32 {s_inb[i]}, {s_inb[i-1]}, {s_t0}")
    A(f"s_lshl_b32 {s_istr2}, {s_t0}, 1\ns_lshl_b32 {s_outstr}, {s_t1}, 17")
    A(f"v_add_u32 {vT2}, {s_t2}, {vT2}")
    A(f"s_and_b32 {s_t2}, {s_g}, 0x27\ns_lshl_b32 {s_t2}, {s_t2}, 7\ns_add_u32 {s_t2}, {s_t2}, {FLAGC}")
    A(f"v_and_b32 {vT0}, 3, {vLane}\nv_lshlrev_b32 {vT0}, 10, {vT0}\nv_add_u32 {vT0}, {s_t2}, {vT0}\nv_cmp_gt_u32 vcc, 32, {vLane}\nv_cndmask_b32 {vFa}, {vT0}, {vT2}, vcc")
    A(f"v_mov_b32 {vT0}, 1\nv_mov_b32 {vT1}, {s_t1}\nv_cndmask_b32 {vTs}, {vT0}, {vT1}, vcc")
    A(f"s_add_u32 {s_t2}, {s_set}, {s_t1}\ns_add_u32 {s_t2}, {s_t2}, 1\ns_cmp_eq_u32 {s_kc}, 4\ns_cselect_b32 {s_t2}, 127, {s_t2}\nv_mov_b32 {vT0}, -3\nv_mov_b32 {vT1}, {s_t2}\nv_cndmask_b32 {vTg}, {vT0}, {vT1}, vcc")
    A(f"s_and_b32 {s_t2}, {s_g}, 63\ns_lshl_b32 {s_t2}, {s_t2}, 7\ns_add_u32 {s_t2}, {s_t2}, {FLAGC}")
    A(f"s_cmp_lt_u32 {s_kc}, 4\ns_cselect_b32 {s_t2}, {s_t2}, {OOB}\ns_cmp_eq_u32 {s_wave}, 0\ns_cselect_b32 {s_t2}, {s_t2}, {OOB}")
    A(f"s_cmp_eq_u32 {s_wave}, 0\ns_cbranch_scc1 L_fgw0p")
    A(f"v_mov_b32 {vFa}, {OOB}\nv_mov_b32 {vTs}, 0\nv_mov_b32 {vTg}, -2")
    A("L_fgw0p:")
    lane0_addr(vGF, s_t2)
    A(f"s_lshl_b32 {s_t2}, {s_ng}, 2\ns_add_u32 {s_t2}, {s_t2}, {s_wave}\ns_lshl_b32 {s_t3}, {s_t2}, 12\nv_add_u32 {vPa}, {s_t3}, {vL16}")
    A(f"s_lshl_b32 {s_pxn}, {s_set}, 19\ns_add_u32 {s_pxn}, {s_pxn}, {PX}\ns_lshl_b32 {s_outn}, {s_set}, 17\ns_lshl_b32 {s_kco}, {s_kc}, 17")
    for i in range(3): A(f"s_xor_b32 {s_pe[i]}, {s_kco}, {(i + 1) << 17}")
    A(f"s_mov_b32 {s_px}, {OOB}\ns_mov_b32 {s_out}, {OOB}\ns_mov_b32 {s_ppx}, {OOB}\ns_mov_b32 {s_pout}, {OOB}")
    A(f"v_lshrrev_b32 {vT0}, 2, {vJ}\nv_lshlrev_b32 {vT0}, 3, {vT0}\nv_and_b32 {vT1}, 3, {vJ}\nv_add_u32 {vT0}, {vT0}, {vT1}\nv_lshlrev_b32 {vT0}, 12, {vT0}\nv_lshl_add_u32 {vT0}, {vG}, 4, {vT0}")
    A(f"s_lshl_b32 {s_t2}, {s_t2}, 6\ns_add_u32 {s_t3}, {s_t2}, {s_wcol}\nv_add_u32 {vOa}, {s_t3}, {vT0}\nv_add_u32 {vOb}, 16384, {vOa}")
    A(f"v_mov_b32 {vR0}, {vL16}\nv_add_u32 {vR1}, 65536, {vL16}")
    vFp, vTp, vFpd = vRB[0][1], vRB[0][2], vRB[0][3]
    A(f"s_cmp_eq_u32 {s_kc}, 4\ns_cselect_b32 {s_t0}, 15, 17\ns_lshr_b32 {s_t1}, {s_ng}, 2\ns_lshl_b32 {s_t0}, {s_t1}, {s_t0}\ns_and_b32 {s_t1}, {s_ng}, 3\ns_lshl_b32 {s_t1}, {s_t1}, 13\ns_add_u32 {s_t0}, {s_t0}, {s_t1}")
    A(f"s_lshr_b32 {s_t1}, {s_istr2}, 1\ns_mul_i32 {s_t1}, {s_t1}, {FPD}\ns_add_u32 {s_t0}, {s_t0}, {s_t1}\ns_cmp_eq_u32 {s_wave}, 0\ns_cselect_b32 {s_t0}, {s_t0}, {OOB // 2}")
    A(f"v_lshlrev_b32 {vFp}, 7, {vLane}\nv_add_u32 {vFp}, {s_t0}, {vFp}")
    A(f"s_and_b32 {s_t1}, {s_kc}, 3\ns_lshl_b32 {s_gsrc}, {s_t1}, 21\ns_lshl_b32 {s_t1}, {s_ng}, 8\ns_add_u32 {s_gsrc}, {s_gsrc}, {s_t1}")
    g_voff()
    def spin(lab, back, slp=16):
        if not back: A(f"s_branch {lab}_go")
        A(f"{lab}:\ns_sleep {slp}\n{lab}_go:")
        A(f"buffer_load_dword {vFl}, {vFa}, {WS}, 0 offen sc1")
        budget()
        A(f"s_waitcnt vmcnt(0)\nv_cmp_gt_i32 vcc, {vTg}, {vFl}\ns_cbranch_vccnz {lab}")
        if back: A(f"s_branch {back}")
    def f_dma(A, hh, r, part=3):
        if part & 1:
            A(f"s_add_u32 m0, {s_m0}, {(hh & 3) * 32768 + r * 1024}")
            A(f"s_add_u32 {s_xd}, {s_inb[hh >> 1]}, {(hh & 1) * 16384 + r * 1024}")
        if part & 2: A(f"buffer_load_dwordx4 {vL16}, {WS}, {s_xd} offen lds")
    def f_rd(A, dst, n):
        n &= 127
        hh, ks, u = n >> 5, (n >> 1) & 15, n & 1
        A(f"ds_read_b128 {dst}, {vR0 if hh < 2 else vR1} offset:{(hh & 1) * 32768 + u * 16384 + ks * 1024}")
    g_stage(65536)
    A("s_waitcnt vmcnt(0)\ns_barrier")
    def mid(ch):
        if ch == 5:
            spin("L_fgw0", None, 8)
        if ch == 6:
            for hh in range(2):
                for r in range(8): f_dma(A, hh, r)
    g_wload(3, mid, extra={7: 16})
    A(f"s_mov_b32 {s_blk}, 0")
    stamp(36)
    A("s_waitcnt vmcnt(0)\ns_barrier")
    f_dma(A, 2, 0); f_dma(A, 2, 1)
    for n in range(8): f_rd(A, XF[n], n)
    def out_store(A, src, so):
        for u in range(2):
            pack(A, PK[u], src[u * 2], src[u * 2 + 1])
            A(f"buffer_store_dwordx4 {PK[u]}, {vOa if u == 0 else vOb}, {OUT}, {so} offen {opt.get('outf', 'sc1')}")
    def part_store(A, acc):
        A(f"s_add_u32 {s_t0}, {s_px}, {s_kco}")
        for u in range(2):
            pack(A, PK[u], acc[u * 2], acc[u * 2 + 1])
            A(f"buffer_store_dwordx4 {PK[u]}, {vPa}, {WS}, {s_t0} offen offset:{u*1024} sc1")
    def e1(A, acc, tag):
        A(f"s_and_b32 {s_t0}, {s_blk}, 3\ns_cmp_eq_u32 {s_t0}, {s_e1}\ns_cbranch_scc1 L_e1p{tag}")
        A(f"s_cmp_eq_u32 {s_kc}, 4\ns_cbranch_scc1 L_e1o{tag}")
        part_store(A, acc)
        A(f"s_branch L_e1d{tag}")
        A(f"L_e1o{tag}:")
        out_store(A, acc, s_out)
        A(f"s_branch L_e1d{tag}")
        A(f"L_e1p{tag}:")
        for i in range(4):
            for k in range(4): A(f"v_mov_b32 {PARK[i][k]}, {acc[i][k]}")
        A(f"s_mov_b32 {s_ppx}, {s_px}\ns_mov_b32 {s_pout}, {s_out}")
        A(f"L_e1d{tag}:")
        A(f"s_mov_b32 {s_px}, {s_pxn}\ns_add_u32 {s_pxn}, {s_pxn}, {2 << 19}\ns_mov_b32 {s_out}, {s_outn}\ns_add_u32 {s_outn}, {s_outn}, {s_outstr}")
    def pg_load(A, base, kk, fl=""):
        A(f"s_add_u32 {s_t0}, {base}, {s_pe[kk]}")
        for u in range(2): A(f"buffer_load_dwordx4 {PG[kk*2+u]}, {vPa}, {WS}, {s_t0} offen offset:{u*1024} {fl}")
    def pg_fin(A, own, so):
        for kk in range(3):
            for u in range(2):
                for d in range(4):
                    dst = SUMR[u * 2 + (d >> 1)][2 * (d & 1):2 * (d & 1) + 2]
                    src = own[u * 2 + (d >> 1)][2 * (d & 1):2 * (d & 1) + 2] if kk == 0 else dst
                    x = PG[kk * 2 + u][d]
                    A(f"v_lshlrev_b32 {UP[0]}, 16, {x}\nv_and_b32 {UP[1]}, 0xffff0000, {x}\nv_pk_add_f32 {dst}, {src}, {UP}")
        out_store(A, SUMR, so)
    def emit(A, q):
        def hook(hh, k, ph):
            par = hh >> 1
            if ph == 'pre':
                if (hh & 1) == 1 and k == 12:
                    A(f"s_waitcnt vmcnt({min(q.younger('fld'), q.younger('st')) if wv[0] == 0 else q.younger('st')})")
                    A(f"v_cmp_gt_i32 vcc, {vTg}, {vFl}\ns_cbranch_vccnz L_fgs{hh}\nL_fgb{hh}:" if wv[0] == 0 else "s_nop 0")
                return
            if (hh & 1) == 0 and k == 2:
                e1(A, GA[1 - par], f"{hh}_{wv[0]}"); q.op('st', True)
            if (hh & 1) == opt.get('e2h', 1) and k == opt.get('e2k', 4):
                A(f"s_and_b32 {s_t0}, {s_blk}, 3\ns_cmp_lg_u32 {s_t0}, {s_e2}\ns_cbranch_scc1 L_e2d{hh}_{wv[0]}")
                A(f"s_waitcnt vmcnt({q.younger('pin')})")
                pg_fin(A, PARK, s_pout); q.op('o2', True)
                A(f"s_mov_b32 {s_ppx}, {OOB}")
                A(f"L_e2d{hh}_{wv[0]}:")
            if (hh & 1) == opt.get('flh', 0) and k == opt.get('flk', 6) and wv[0] == 0:
                A(f"v_add_u32 {vTg}, {vTg}, {vTs}\nv_min_i32 {vTg}, {s_clamp}, {vTg}")
                A(f"buffer_load_dword {vFl}, {vFa}, {WS}, 0 offen sc1"); q.op('fld')
            if (hh & 1) == 1 and k == 12 and wv[0] != 0: A(f"s_add_u32 {s_blk}, {s_blk}, 1")
            if (hh & 1) == 1 and k == 12 and wv[0] == 0:
                A(f"v_mov_b32 {vFv}, {s_blk}")
                A(f"buffer_store_dword {vFv}, {vGF}, {WS}, 0 offen sc1"); q.op('fl')
                A(f"s_add_u32 {s_blk}, {s_blk}, 1")
                A(f"s_add_u32 {s_t0}, {s_blk}, {1 + FPD}\ns_lshl_b32 {s_t1}, {s_t0}, 1\ns_add_u32 {s_t1}, {s_t1}, {s_set}\ns_cmp_eq_u32 {s_kc}, 4\ns_cselect_b32 {s_t1}, -2, {s_t1}")
                A(f"v_cmp_ge_i32 vcc, {s_t1}, {vFl}\ns_cmp_lt_u32 {s_t0}, {s_nblk}\ns_cselect_b32 {s_t0}, {s_inb[2 + par]}, {OOB}\ns_nop 2\ns_cmp_eq_u32 vcc_lo, 0\ns_cselect_b32 {s_t0}, {s_t0}, {OOB}")
                A(f"buffer_load_dword {vFpd}, {vFp}, {WS}, {s_t0} offen"); q.op('fp')
            if (hh & 1) == 1 and k in (13, 14, 15):
                A(f"s_and_b32 {s_t0}, {s_blk}, 3\ns_cmp_lg_u32 {s_t0}, {s_e2}\ns_cbranch_scc1 L_pl{hh}_{k}_{wv[0]}")
                pg_load(A, s_ppx, k - 13); q.op('pin', True)
                A(f"L_pl{hh}_{k}_{wv[0]}:")
        stream_body(A, q, 'T', f_dma, f_rd, hook, wv[0])
    wv = [0]
    for w in (1, 2, 3): A(f"s_cmp_eq_u32 {s_wave}, {w}\ns_cbranch_scc1 L_fgl{w}")
    for w in range(4):
        wv[0] = w
        A(f"L_fgl{w}:")
        two_pass(emit)
        for r in s_inb: A(f"s_add_u32 {r}, {r}, {s_istr2}")
        A(f"s_add_u32 {s_t0}, {s_blk}, 2\ns_cmp_eq_u32 {s_t0}, {s_nblk}\ns_cselect_b32 {s_tin}, {s_inb[2]}, {s_tin}\ns_cselect_b32 {s_inb[2]}, {OOB}, {s_inb[2]}\ns_cselect_b32 {s_inb[3]}, {OOB}, {s_inb[3]}")
        if STAMP and w == 0:
            A(f"s_cmp_lg_u32 {s_blk}, 16\ns_cbranch_scc1 L_fgst"); stamp(28); A("L_fgst:")
        A(f"s_cmp_lg_u32 {s_blk}, {s_nblk}\ns_cbranch_scc1 L_fgl{w}")
        if w < 3: A("s_branch L_fgx")
    A("L_fgx:")
    A("s_waitcnt lgkmcnt(0)\ns_nop 7")
    stamp(32)
    e1(A, GA[1], "x")
    A(f"s_waitcnt vmcnt(0)\ns_barrier\nv_mov_b32 {vFv}, {s_blk}")
    A(f"buffer_store_dword {vFv}, {vGF}, {WS}, 0 offen sc1")
    A(f"s_cmp_eq_u32 {s_kc}, 4\ns_cbranch_scc1 L_fgdone")
    A(f"v_mov_b32 {vT0}, {s_nblk}\nv_mov_b32 {vT1}, -2\nv_lshrrev_b32 {vT2}, 5, v0\nv_cmp_eq_u32 vcc, 1, {vT2}\nv_cndmask_b32 {vTg}, {vT1}, {vT0}, vcc")
    spin("L_fgw1", None, 2)
    A("s_barrier")
    for kk in range(3): pg_load(A, s_ppx, kk)
    A("s_waitcnt vmcnt(0)")
    pg_fin(A, PARK, s_pout)
    A("L_fgdone:")
    stamp(44)
    A("s_branch L_end")
    spin("L_fgs1", "L_fgb1"); spin("L_fgs3", "L_fgb3")

    A("L_b2role:")
    if opt.get('wopf', 0) == 2:
        A(f"s_mov_b32 s52, s{P.P_WO}\ns_mov_b32 s53, s{P.P_WO+1}\ns_mov_b32 s54, {8*MB}\ns_mov_b32 s55, 0x20000")
        A(f"s_and_b32 {s_t0}, {s_g}, 7\ns_lshl_b32 {s_t0}, {s_t0}, 2\ns_add_u32 {s_t0}, {s_t0}, {s_wave}\ns_lshl_b32 {s_t0}, {s_t0}, 13\nv_lshlrev_b32 {vT0}, 7, {vLane}")
        for k in range(32):
            A(f"buffer_load_dword {XF[k & 7][0]}, {vT0}, s[52:55], {s_t0} offen\nbuffer_load_dword {XF[k & 7][1]}, {vT0}, s[52:55], {s_t0} offen offset:64\ns_add_u32 {s_t0}, {s_t0}, 0x40000")
    confirm("t")
    stamp(52)
    A("L_b2go:")
    B2S = opt.get('b2s', 40); B2N = (NSEG - B2S) // 3
    assert B2S + 3 * B2N == NSEG and B2S >= 8
    C.setup()
    V.next = tbase
    s_hb, s_qb, s_p, s_bk, s_off, s_qe = "s48", "s49", "s50", "s51", "s52", "s53"
    s_c2 = C.s_c2; vM, vNeg, ONES, MK = C.vM, C.vNeg, C.ONES, C.MK
    def KVr(slot): return [R('a', slot * 16 + i * 4, 4) for i in range(4)]
    OLD, NEW, NXT = 7, 8, 9
    Q = [V.alloc(f'q{u}', 4) for u in range(2)]; QN = [V.alloc(f'qn{u}', 4) for u in range(2)]
    S = [[[V.alloc(f's{b}{uq}{u}', 4) for u in range(2)] for uq in range(2)] for b in range(9)]
    O = [[V.alloc(f'o{uq}{t}', 4) for t in range(2)] for uq in range(2)]
    L = [V.alloc(f'l{uq}', 4) for uq in range(2)]
    vIn, vOut = vO, vGF
    A(f"s_and_b32 {s_hb}, {s_g}, 7\ns_lshl_b32 {s_hb}, {s_hb}, 2\ns_add_u32 {s_hb}, {s_hb}, {s_wave}")
    A(f"s_mov_b32 {s_c2}, {f32(32 ** -0.5 * math.log2(math.e))}")
    A(f"s_lshl_b32 {s_t0}, {s_hb}, 11\ns_add_u32 {s_t0}, {s_t0}, {QBF}\nv_add_u32 {vIn}, {s_t0}, {vL16}")
    A(f"s_lshl_b32 {s_t0}, {s_hb}, 10\ns_add_u32 {s_t0}, {s_t0}, {OBF}\nv_add_u32 {vOut}, {s_t0}, {vL16}")
    A(f"v_min_u32 {vT0}, 2, {vLane}\nv_lshlrev_b32 {vT0}, 11, {vT0}\ns_add_u32 {s_t0}, {s_hb}, 384\ns_lshl_b32 {s_t0}, {s_t0}, 6\nv_add_u32 {vFa}, {s_t0}, {vT0}")
    A(f"s_sub_u32 {s_t0}, {s_g}, 96\ns_lshr_b32 {s_t0}, {s_t0}, 3\ns_mul_i32 {s_t0}, {s_t0}, {B2N}\ns_add_u32 {s_qb}, {s_t0}, {B2S - 1}\ns_add_u32 {s_qe}, {s_qb}, {B2N}")
    A(f"s_cmp_ge_u32 {s_g}, 120\ns_cselect_b32 {s_qb}, -1, {s_qb}\ns_cselect_b32 {s_qe}, {B2S - 1}, {s_qe}\ns_cselect_b32 {s_p}, 6, 0\ns_mov_b32 {s_bk}, 0")
    A(f"s_add_u32 {s_off}, {s_qb}, 1\ns_lshl_b32 {s_off}, {s_off}, 16")
    for i in range(160): A(f"v_accvgpr_write_b32 a{i}, 0")
    def fetch(tag):
        A(f"s_add_u32 {s_t2}, {s_qb}, 2\ns_min_i32 {s_t2}, {s_t2}, {NSEG}")
        A(f"s_cmp_ge_i32 {s_bk}, {s_t2}\ns_cbranch_scc1 L_bf_ok{tag}\ns_branch L_bf_go{tag}")
        A(f"L_bf{tag}:\ns_sleep 16\nL_bf_go{tag}:")
        A(f"buffer_load_dword {vFd[0]}, {vFa}, {WS}, 0 offen sc1")
        budget()
        A("s_waitcnt vmcnt(0)")
        A(f"v_readlane_b32 {s_t0}, {vFd[0]}, 0\nv_readlane_b32 {s_t1}, {vFd[0]}, 1\nv_readlane_b32 {s_bk}, {vFd[0]}, 2\ns_min_i32 {s_bk}, {s_bk}, {s_t0}\ns_min_i32 {s_bk}, {s_bk}, {s_t1}")
        A(f"s_cmp_ge_i32 {s_bk}, {s_t2}\ns_cbranch_scc0 L_bf{tag}")
        A(f"L_bf_ok{tag}:")
        A(f"s_sub_u32 {s_t2}, {s_t2}, 1\ns_lshl_b32 {s_t2}, {s_t2}, 16\ns_add_u32 {s_t0}, {s_t2}, {4*MB}\ns_add_u32 {s_t1}, {s_t2}, {8*MB}")
        for u in range(2): A(f"buffer_load_dwordx4 {QN[u]}, {vIn}, {WS}, {s_t2} offen offset:{u*1024}")
        for u in range(2): A(f"buffer_load_dwordx4 {KVr(NXT)[u]}, {vIn}, {WS}, {s_t0} offen offset:{u*1024}")
        for u in range(2): A(f"buffer_load_dwordx4 {KVr(NXT)[2+u]}, {vIn}, {WS}, {s_t1} offen offset:{u*1024}")
    fetch("p")
    A(f"s_cmp_ge_u32 {s_g}, 120\ns_cbranch_scc1 L_b2w")
    for i, slot in enumerate(list(range(7)) + [NEW]):
        A(f"s_add_u32 {s_t0}, {s_off}, {4*MB - (8 - i) * 65536}\ns_add_u32 {s_t1}, {s_t0}, {4*MB}")
        for u in range(2): A(f"buffer_load_dwordx4 {KVr(slot)[u]}, {vIn}, {WS}, {s_t0} offen offset:{u*1024}")
        for u in range(2): A(f"buffer_load_dwordx4 {KVr(slot)[2+u]}, {vIn}, {WS}, {s_t1} offen offset:{u*1024}")
    A("L_b2w:")
    A("s_waitcnt vmcnt(0)")
    A("L_b2l:")
    A("s_waitcnt vmcnt(2)")
    A(f"s_add_u32 {s_qb}, {s_qb}, 1")
    for p in range(7): A(f"s_cmp_eq_u32 {s_p}, {p}\ns_cbranch_scc1 L_rot{p}")
    for p in range(7):
        A(f"L_rot{p}:")
        for i in range(16): A(f"v_accvgpr_mov_b32 a{OLD*16+i}, a{p*16+i}")
        for i in range(16): A(f"v_accvgpr_mov_b32 a{p*16+i}, a{NEW*16+i}")
        A("s_branch L_rotd")
    A("L_rotd:")
    for i in range(16): A(f"v_accvgpr_mov_b32 a{NEW*16+i}, a{NXT*16+i}")
    for u in range(2):
        for i in range(4): A(f"v_mov_b32 {Q[u][i]}, {QN[u][i]}")
    A(f"s_add_u32 {s_p}, {s_p}, 1\ns_cmp_eq_u32 {s_p}, 7\ns_cselect_b32 {s_p}, 0, {s_p}")
    fetch("l")
    order = [OLD, NEW] + list(range(7))
    def merge(valu, mf, first=2):
        out = []; step = max(1, (len(valu) - first) // max(1, len(mf))); mi = 0
        for i, v in enumerate(valu):
            if mi < len(mf) and i >= first and (i - first) % step == 0: out.append(mf[mi]); mi += 1
            out.append(v)
        out += mf[mi:]
        for o in out: A(o)
    def smf(b): return [f"v_mfma_f32_16x16x32_bf16 {S[b][uq][u]}, {KVr(b)[u]}, {Q[uq]}, 0" for uq in range(2) for u in range(2)]
    def post(bi, b):
        o = []
        for uq in range(2):
            vals = [S[b][uq][u][r] for u in range(2) for r in range(4)]
            for ci, v in enumerate(vals):
                if b == OLD: o.append(f"v_cndmask_b32 {v}, {v}, {vNeg}, {MK(uq, ci)}")
                if b == NEW: o.append(f"v_cndmask_b32 {v}, {vNeg}, {v}, {MK(uq, ci)}")
            if bi == 0:
                o.append(f"v_max_f32 {vM[uq]}, {vals[0]}, {vals[1]}"); vals = vals[2:]
            for i in range(0, len(vals), 2): o.append(f"v_max3_f32 {vM[uq]}, {vM[uq]}, {vals[i]}, {vals[i+1]}")
        return o
    def invalid(b):
        if b == NEW: return
        A(f"s_cmp_gt_u32 {s_qb}, {b}\ns_cbranch_scc1 L_bv{b}\ns_nop 7")
        for uq in range(2):
            for u in range(2):
                for r in range(4): A(f"v_mov_b32 {S[b][uq][u][r]}, {vNeg}")
        A(f"L_bv{b}:")
    for o in smf(order[0]) + smf(order[1]): A(o)
    for bi, b in enumerate(order):
        invalid(b)
        merge(post(bi, b), smf(order[bi + 2]) if bi + 2 < 9 else [], first=0)
    for uq in range(2): C.rowmax(vM[uq])
    vC2 = V.alloc('c2', 2); vMp = [V.alloc(f'mp{uq}', 2) for uq in range(2)]
    A(f"v_mov_b32 {vC2[0]}, {s_c2}\nv_mov_b32 {vMp[0][0]}, {vM[0]}\nv_mov_b32 {vMp[1][0]}, {vM[1]}")
    pend = []
    for bi, b in enumerate(order):
        for uq in range(2):
            vals = [S[b][uq][u][r] for u in range(2) for r in range(4)]
            o = []
            for u in range(2):
                for i in (0, 2):
                    pr = S[b][uq][u][i:i+2]
                    if opt.get('pkfma', 0): o.append(f"v_pk_fma_f32 {pr}, {pr}, {vC2}, {vMp[uq]} op_sel_hi:[1,0,0] neg_lo:[0,0,1] neg_hi:[0,0,1]")
                    else: o += [f"v_fma_f32 {pr[z]}, {pr[z]}, {s_c2}, -{vM[uq]}" for z in range(2)]
            for v in vals: o.append(f"v_exp_f32 {v}, {v}")
            for i in range(4): o.append(f"v_cvt_pk_bf16_f32 {S[b][uq][0][i]}, {vals[2*i]}, {vals[2*i+1]}")
            merge(o, pend)
            pend = [f"v_mfma_f32_16x16x32_bf16 {L[uq]}, {ONES}, {S[b][uq][0]}, {'0' if bi == 0 else L[uq]}"]
            pend += [f"v_mfma_f32_16x16x32_bf16 {O[uq][t]}, {KVr(b)[2+t]}, {S[b][uq][0]}, {'0' if bi == 0 else O[uq][t]}" for t in range(2)]
    for o in pend: A(o)
    A(f"s_add_u32 {s_t2}, {s_off}, 32768")
    for uq in range(2):
        A(f"v_rcp_f32 {vM[uq]}, {L[uq][0]}")
        Pk = S[1][uq][1]
        for t in range(2):
            for r in range(4): A(f"v_mul_f32 {O[uq][t][r]}, {O[uq][t][r]}, {vM[uq]}")
            for hh in range(2): A(f"v_cvt_pk_bf16_f32 {Pk[2*t+hh]}, {O[uq][t][2*hh]}, {O[uq][t][2*hh+1]}")
        A(f"buffer_store_dwordx4 {Pk}, {vOut}, {WS}, {s_off if uq == 0 else s_t2} offen sc1")
    A(f"s_add_u32 {s_off}, {s_off}, 65536\ns_cmp_lt_i32 {s_qb}, {s_qe}\ns_cbranch_scc1 L_b2l")
    A(f"v_mov_b32 {vT0}, {DONEB}\nv_mov_b32 {vT1}, 1\ns_waitcnt vmcnt(0)\ns_mov_b64 exec, 1")
    A(f"buffer_atomic_add {vT1}, {vT0}, {WS}, 0 offen sc1\ns_mov_b64 exec, -1")
    stamp(40)
    A("s_branch L_fg")
```

```python
from asmlib import Asm, Regs, R
from layout import *
import math

NSEG = 64
def kd(name, vgpr, accum, sgpr=102):
    return f'''.section .rodata,"a"
.p2align 6
.amdhsa_kernel {name}
  .amdhsa_next_free_vgpr {vgpr}
  .amdhsa_next_free_sgpr {sgpr}
  .amdhsa_accum_offset {accum}
  .amdhsa_group_segment_fixed_size 0
  .amdhsa_kernarg_size 104
  .amdhsa_user_sgpr_count 2
  .amdhsa_user_sgpr_kernarg_segment_ptr 1
  .amdhsa_system_sgpr_workgroup_id_x 1
.end_amdhsa_kernel
.text
'''

def srd(A, d, base, nbytes):
    A(f"s_mov_b32 s{d}, s{base}"); A(f"s_mov_b32 s{d+1}, s{base+1}")
    A(f"s_mov_b32 s{d+2}, {nbytes}"); A(f"s_mov_b32 s{d+3}, 0x20000")

P_AX, P_MEM0, P_WQ, P_WK, P_WV, P_WO, P_SEG, P_BX, P_WQKV, P_WOB, P_OUT, P_DBG, P_WS = [64 + 2 * i for i in range(13)]
WS = "s[4:7]"; DBG = "s[8:11]"; SW = "s[12:15]"; SX = "s[16:19]"

def load_kernargs(A):
    A("s_load_dwordx16 s[64:79], s[0:1], 0")
    A("s_load_dwordx8 s[80:87], s[0:1], 64")
    A("s_load_dwordx2 s[88:89], s[0:1], 96")

def gen_main(name, opt):
    A = Asm()
    PRE = opt.get('pre', (36, 8, 0, 8))
    STAMP = opt.get('stamp', False)
    A(f".globl {name}\n.p2align 8\n.type {name},@function\n{name}:")
    s_xcc, s_wave, s_role, s_mode, s_tick = "s3", "s20", "s21", "s22", "s23"
    s_t0, s_t1, s_t2, s_t3 = "s24", "s25", "s26", "s27"
    s_bud = "s28"
    A("s_cmp_ge_u32 s2, 256\ns_cbranch_scc1 L_end")
    load_kernargs(A)
    if STAMP: A("s_memrealtime s[96:97]")
    A(f"s_getreg_b32 {s_xcc}, hwreg(HW_REG_XCC_ID)\ns_and_b32 {s_xcc}, {s_xcc}, 7")
    V = Regs('v', 1, 256)
    vLane = V.alloc('lane'); vL16 = V.alloc('l16'); vG = V.alloc('g'); vJ = V.alloc('j'); vT0 = V.alloc('t0'); vT1 = V.alloc('t1'); vT2 = V.alloc('t2')
    vPoi = V.alloc('poi', 4)
    A(f"v_lshrrev_b32 {vT0}, 6, v0\nv_and_b32 {vLane}, 63, v0")
    A(f"v_readfirstlane_b32 {s_wave}, {vT0}")
    A(f"v_lshlrev_b32 {vL16}, 4, {vLane}\nv_lshrrev_b32 {vG}, 4, {vLane}\nv_and_b32 {vJ}, 15, {vLane}")
    for i in range(4): A(f"v_mov_b32 {vPoi[i]}, -1")
    A(f"s_mov_b32 {s_bud}, 400000")
    A("s_waitcnt lgkmcnt(0)")
    srd(A, 4, P_WS, WS_BYTES); srd(A, 8, P_DBG, 256)
    srd(A, 12, P_WQ, 8 * MB); srd(A, 16, P_AX, 4 * MB)
    LDS_TICK = 163840 - 16
    vAt = V.alloc('at', 2)
    A(f"s_lshr_b32 {s_t0}, s2, 3\ns_lshl_b32 {s_t1}, 1, {s_t0}")
    A(f"s_lshl_b32 {s_role}, {s_xcc}, 5\ns_add_u32 {s_role}, {s_role}, {s_t0}\ns_mov_b32 {s_mode}, 0")
    if opt.get('rx'): A(f"s_xor_b32 {s_role}, {s_role}, {opt['rx']}")
    A(f"s_cmp_lg_u32 {s_wave}, 3\ns_cbranch_scc1 L_reg_done")
    A(f"s_mul_i32 {s_t0}, s2, {POISON_BYTES // 256}\ns_add_u32 {s_t2}, {s_t0}, 4096")
    for k in range(POISON_BYTES // 256 // 1024):
        A(f"buffer_store_dwordx4 {vPoi}, {vL16}, {WS}, {s_t0 if k < 4 else s_t2} offen offset:{(k & 3) * 1024} sc1")
    A(f"s_lshl_b32 {s_t0}, s2, 9\ns_add_u32 {s_t0}, {s_t0}, {PART2 + 0x40000}\nv_lshlrev_b32 {vT0}, 3, {vLane}")
    A(f"buffer_store_dwordx2 {vPoi[0:2]}, {vT0}, {WS}, {s_t0} offen sc1")
    A(f"s_lshl_b32 {s_t1}, 1, {s_xcc}\nv_mov_b32 {vAt[0]}, {s_t1}\nv_mov_b32 {vT0}, s2")
    A("s_waitcnt vmcnt(0)\ns_mov_b64 exec, 1")
    A(f"buffer_store_byte {vAt[0]}, {vT0}, {DBG}, 0 offen sc1")
    A("s_mov_b64 exec, -1")
    A("L_reg_done:")
    A("s_branch L_dispatch")
    A("L_respec:")
    A(f"s_barrier\ns_mov_b32 s30, 0\ns_mov_b32 {s_tick}, 0")
    for x in range(8): A(f"s_mov_b32 s{48+x}, 0")
    A(f"s_lshl_b32 {s_t3}, 0x01010101, {s_xcc}")
    A("L_rs_loop:")
    A(f"v_readlane_b32 s31, {vT1}, s30")
    for x in range(8):
        A(f"s_and_b32 {s_t0}, s31, {0x01010101 << x}\ns_bcnt1_i32_b32 {s_t0}, {s_t0}\ns_add_u32 s{48+x}, s{48+x}, {s_t0}")
    A(f"s_and_b32 {s_t0}, s31, {s_t3}\ns_lshr_b32 {s_t1}, s2, 2\ns_cmp_gt_u32 s30, {s_t1}\ns_cselect_b32 {s_t0}, 0, {s_t0}")
    A(f"s_and_b32 {s_t2}, s2, 3\ns_lshl_b32 {s_t2}, {s_t2}, 3\ns_lshl_b32 {s_t2}, 1, {s_t2}\ns_sub_u32 {s_t2}, {s_t2}, 1\ns_cmp_eq_u32 s30, {s_t1}\ns_cselect_b32 {s_t2}, {s_t2}, -1\ns_and_b32 {s_t0}, {s_t0}, {s_t2}")
    A(f"s_bcnt1_i32_b32 {s_t0}, {s_t0}\ns_add_u32 {s_tick}, {s_tick}, {s_t0}")
    A("s_add_u32 s30, s30, 1\ns_cmp_lt_u32 s30, 64\ns_cbranch_scc1 L_rs_loop")
    A(f"s_mov_b32 {s_t0}, 0")
    for x in range(8): A(f"s_xor_b32 {s_t1}, s{48+x}, 32\ns_or_b32 {s_t0}, {s_t0}, {s_t1}")
    A(f"s_lshl_b32 {s_role}, {s_xcc}, 5\ns_add_u32 {s_role}, {s_role}, {s_tick}")
    A(f"s_cmp_eq_u32 {s_t0}, 0\ns_cselect_b32 {s_role}, {s_role}, s2\ns_cselect_b32 {s_mode}, 1, 2")
    A("L_dispatch:")
    for i in range(4): A(f"v_mov_b32 {vPoi[i]}, -1")
    A(f"s_cmp_ge_u32 {s_role}, 128\ns_cbranch_scc1 L_grole")

    def confirm(tag):
        A(f"s_cmp_lg_u32 {s_mode}, 0\ns_cbranch_scc1 L_conf_ok_{tag}")
        A(f"v_lshlrev_b32 {vT0}, 2, {vLane}\ns_branch L_conf_go_{tag}")
        A(f"L_conf_poll_{tag}:\ns_sleep 16\nL_conf_go_{tag}:")
        A(f"buffer_load_dword {vT1}, {vT0}, {DBG}, 0 offen sc1")
        A(f"s_sub_u32 {s_bud}, {s_bud}, 1\ns_cbranch_scc1 L_end")
        A("s_waitcnt vmcnt(0) lgkmcnt(0)")
        A(f"v_bcnt_u32_b32 {vT2}, {vT1}, 0\nv_cmp_ne_u32 vcc, 4, {vT2}\ns_cbranch_vccnz L_conf_poll_{tag}")
        A(f"v_lshrrev_b32 {vT2}, 16, {vT1}\nv_or_b32 {vT2}, {vT2}, {vT1}\nv_lshrrev_b32 {vT0}, 8, {vT2}\nv_or_b32 {vT2}, {vT2}, {vT0}\nv_and_b32 {vT2}, 0xff, {vT2}")
        A(f"v_or_b32_dpp {vT2}, {vT2}, {vT2} quad_perm:[1,0,3,2] row_mask:0xf bank_mask:0xf")
        A(f"s_mov_b32 {s_mode}, 1\nv_cmp_ne_u32 vcc, 0xff, {vT2}\ns_cbranch_vccnz L_respec")
        A(f"L_conf_ok_{tag}:")

    def dma_chunk(vOff, s_src, stride, nrows, lds_base_s, lds_off):
        for i in range(nrows // 16):
            A(f"s_add_u32 m0, {lds_base_s}, {lds_off + i * 1024}")
            A(f"buffer_load_dwordx4 {vOff}, {SW}, {s_src} offen lds")
            A(f"s_add_u32 {s_src}, {s_src}, {stride}")

    vbase = V.next
    s_x, s_c, s_cu, s_h, s_j = "s32", "s33", "s34", "s35", "s36"
    s_slot, s_kv, s_step, s_known, s_lds, s_src, s_kvm = "s37", "s38", "s39", "s40", "s41", "s42", "s43"
    s_c2 = "s44"
    A(f"s_lshr_b32 {s_x}, {s_role}, 5\ns_and_b32 {s_c}, {s_role}, 31\ns_lshr_b32 {s_h}, {s_role}, 2\ns_and_b32 {s_j}, {s_role}, 3")
    vW1 = V.alloc('w1'); vW2 = V.alloc('w2'); vTr = V.alloc('tr')
    A(f"v_lshrrev_b32 {vT0}, 2, {vLane}\nv_and_b32 {vT1}, 3, {vLane}\nv_lshlrev_b32 {vT1}, 4, {vT1}")
    A(f"v_lshl_add_u32 {vW1}, {vT0}, 13, {vT1}\nv_lshl_add_u32 {vW2}, {vT0}, 11, {vT1}")
    A(f"s_lshl_b32 {s_lds}, {s_wave}, 15")
    A(f"v_lshrrev_b32 {vT0}, 1, {vG}\nv_lshlrev_b32 {vT0}, 4, {vT0}\nv_and_b32 {vT1}, 1, {vG}\nv_lshl_add_u32 {vT0}, {vT1}, 2, {vT0}")
    A(f"v_bfe_u32 {vT1}, {vLane}, 2, 1\nv_add_u32 {vT0}, {vT0}, {vT1}\nv_bfe_u32 {vT1}, {vLane}, 3, 1\nv_lshl_add_u32 {vT0}, {vT1}, 3, {vT0}")
    A(f"v_lshlrev_b32 {vT0}, 6, {vT0}\nv_and_b32 {vT1}, 3, {vLane}\nv_lshl_add_u32 {vT0}, {vT1}, 3, {vT0}\nv_add_u32 {vTr}, {s_lds}, {vT0}")
    LDX = 2
    def r_issue(m):
        A(f"s_mov_b32 s12, s{[P_WQ,P_WK,P_WV,P_WO][m]}\ns_mov_b32 s13, s{[P_WQ,P_WK,P_WV,P_WO][m]+1}\ns_mov_b32 s14, {8*MB}")
        if m < 3:
            A(f"s_lshl_b32 {s_src}, {s_wave}, 21\ns_lshl_b32 {s_t0}, {s_role}, 6\ns_add_u32 {s_src}, {s_src}, {s_t0}")
            if m == 2 and LDX: A(f"s_xor_b32 {s_src}, {s_src}, 128")
            dma_chunk(vW1, s_src, 16 * 8192, 256, s_lds, (m & 1) * 16384)
        else:
            A(f"s_lshl_b32 {s_src}, {s_x}, 21\ns_lshl_b32 {s_t0}, {s_wave}, 19\ns_add_u32 {s_src}, {s_src}, {s_t0}\ns_lshl_b32 {s_t0}, {s_c}, 6\ns_add_u32 {s_src}, {s_src}, {s_t0}")
            if LDX: A(f"s_xor_b32 {s_src}, {s_src}, 128")
            dma_chunk(vW2, s_src, 16 * 2048, 256, s_lds, (m & 1) * 16384)
    def r_tr(m):
        for t in range(2):
            for kb in range(4):
                for p2 in range(4):
                    a0 = ((m * 2 + t) * 4 + kb) * 8 + 2 * p2
                    off = (m & 1) * 16384 + (64 * kb + 32 * (p2 >> 1) + 2 * (p2 & 1)) * 64 + 32 * t
                    A(f"ds_read_b64_tr_b16 a[{a0}:{a0+1}], {vTr} offset:{off}")
        A("s_waitcnt lgkmcnt(0)")
    def pst(k):
        if opt.get('pstamp'): A(f"s_memrealtime s[90:91]\ns_waitcnt lgkmcnt(0)\nv_mov_b32 {vT0}, s90\ns_lshl_b32 s92, {s_role}, 2\ns_add_u32 s92, s92, {s_wave}\ns_lshl_b32 s92, s92, 5\ns_add_u32 s92, s92, {DBGO + 4 * MB + 4 * k}\nv_mov_b32 {vT1}, 0\ns_mov_b64 exec, 1\nbuffer_store_dword {vT0}, {vT1}, {WS}, s92 offen\ns_mov_b64 exec, -1")
    Y = 1 if opt.get('pstamp') else 0
    def r_load(o):
        r_issue(o[0]); r_issue(o[1])
        PF = 0
        if PF:
            A(f"v_lshlrev_b32 {vT0}, 13, {vLane}\nv_lshlrev_b32 {vT1}, 11, {vLane}")
            A(f"s_mov_b32 s12, s{P_WV}\ns_mov_b32 s13, s{P_WV+1}\ns_lshl_b32 {s_src}, {s_wave}, 21\ns_lshl_b32 {s_t0}, {s_role}, 6\ns_add_u32 {s_src}, {s_src}, {s_t0}")
            for k in range(4): A(f"buffer_load_dword v{100+k}, {vT0}, {SW}, {s_src} offen\ns_add_u32 {s_src}, {s_src}, {64*8192}")
            A(f"s_mov_b32 s12, s{P_WO}\ns_mov_b32 s13, s{P_WO+1}\ns_lshl_b32 {s_src}, {s_x}, 21\ns_lshl_b32 {s_t0}, {s_wave}, 19\ns_add_u32 {s_src}, {s_src}, {s_t0}\ns_lshl_b32 {s_t0}, {s_c}, 6\ns_add_u32 {s_src}, {s_src}, {s_t0}")
            for k in range(4): A(f"buffer_load_dword v{104+k}, {vT1}, {SW}, {s_src} offen\ns_add_u32 {s_src}, {s_src}, {64*2048}")
        pst(0)
        A(f"s_waitcnt vmcnt({16 + Y + PF})"); pst(1); r_tr(o[0]); r_issue(o[2])
        A(f"s_waitcnt vmcnt({16 + Y + PF})"); pst(2); r_tr(o[1]); r_issue(o[3])
        A(f"s_waitcnt vmcnt({16 + Y})"); pst(3); r_tr(o[2])
        A("s_waitcnt vmcnt(0)"); pst(4); r_tr(o[3]); pst(5)
    if LDX == 2:
        A(f"s_and_b32 {s_t0}, {s_role}, 2\ns_cmp_eq_u32 {s_t0}, 0\ns_cbranch_scc1 L_rlB")
        r_load((0, 1, 2, 3)); A("s_branch L_rlD\nL_rlB:"); r_load((2, 3, 0, 1)); A("L_rlD:")
    else: r_load((0, 1, 2, 3))
    confirm("r")
    pst(6)
    A("s_barrier")
    def WQKV(T, kb): b = (T * 4 + kb) * 8; return f"a[{b}:{b+7}]"
    def WOr(t, kb): b = 192 + (t * 4 + kb) * 8; return f"a[{b}:{b+7}]"

    vPL = [V.alloc(f'pl{i}') for i in range(3)]; vPS = V.alloc('ps'); vMS = V.alloc('ms'); vGM = V.alloc('gm'); vGO = V.alloc('go')
    vS0 = V.alloc('s0'); vS2 = V.alloc('s2'); vSA = [V.alloc(f'sa{i}') for i in range(4)]; vSB = [V.alloc(f'sb{i}') for i in range(4)]
    vOS = V.alloc('os'); vKX = V.alloc('kx'); vVX = V.alloc('vx'); vFl = V.alloc('fl'); vKM = V.alloc('km'); vVM = V.alloc('vm')
    vPo = [V.alloc(f'po{i}') for i in range(5)]; vRF = V.alloc('rf'); vRFv = V.alloc('rfv')
    vQw = V.alloc('qw'); vKw = V.alloc('kw'); vQr = V.alloc('qr'); vVw = V.alloc('vw'); vVr = V.alloc('vr'); vPw = V.alloc('pw'); vPr = V.alloc('pr')
    vIdx = V.alloc('idx'); vChk = V.alloc('chk'); vOOB = V.alloc('oob')
    F = [V.alloc(f'f{i}', 4) for i in range(4)]; F2 = [V.alloc(f'f2{i}', 4) for i in range(4)]
    ACC = [V.alloc(f'acc{i}', 4) for i in range(6)]
    T = [V.alloc(f'T{i}', 4) for i in range(13)]
    SB2 = [V.alloc(f'SB2{i}') for i in range(4)]
    X = V.alloc('X', 4); KX = [V.alloc(f'KX{i}', 4) for i in range(2)]; VX = [V.alloc(f'VX{i}', 4) for i in range(2)]
    S = [V.alloc(f'S{i}', 4) for i in range(3)]
    VMo = [V.alloc(f'VMo{i}', 4) for i in range(2)]
    ONES = V.alloc('ones', 4); PB = V.alloc('PB', 4); PM = V.alloc('PM', 4)
    SB = [V.alloc(f'SB{i}') for i in range(4)]
    OWN = V.alloc('own', 4); OO = V.alloc('OO', 4)
    vM = V.alloc('m'); vM2 = V.alloc('m2'); vRL = V.alloc('rl', 2)
    QK_B = 0; V_B = 9216; PW_B = 13312; KV_B = 18432
    s_have = "s45"; s_pslot = "s62"; KVMF = 'sc1'
    A(f"s_mov_b32 {s_have}, 0")
    A(f"v_mov_b32 {vOOB}, {OOB}")
    for i in range(3):
        A(f"s_xor_b32 {s_t0}, {s_role}, {(i+1)*32}\ns_lshl_b32 {s_t0}, {s_t0}, 10\ns_add_u32 {s_t0}, {s_t0}, {PART0}\nv_add_u32 {vPL[i]}, {s_t0}, {vL16}")
    A(f"s_lshl_b32 {s_t0}, {s_role}, 10\ns_add_u32 {s_t1}, {s_t0}, {PART0 + 0x40000}\nv_add_u32 {vPS}, {s_t1}, {vL16}")
    A(f"s_xor_b32 {s_cu}, {s_role}, 2")
    A(f"s_lshl_b32 {s_t0}, {s_cu}, 9\ns_add_u32 {s_t1}, {s_t0}, {MEM_OFF}\nv_lshlrev_b32 {vT0}, 3, {vLane}\nv_add_u32 {vMS}, {s_t1}, {vT0}")
    A(f"v_and_b32 {vT0}, 31, {vLane}\nv_lshlrev_b32 {vT0}, 4, {vT0}\nv_lshrrev_b32 {vT1}, 5, {vLane}\nv_lshl_add_u32 {vT0}, {vT1}, 16, {vT0}")
    A(f"s_add_u32 {s_t1}, {s_t0}, {MEM_OFF}\nv_add_u32 {vPo[1]}, {s_t1}, {vT0}")
    A(f"v_lshl_add_u32 {vT0}, {vG}, 3, {vJ}\nv_lshlrev_b32 {vT0}, 4, {vT0}\ns_add_u32 {s_t1}, {s_t0}, {O_OFF}\nv_add_u32 {vT0}, {s_t1}, {vT0}")
    A(f"v_cmp_gt_u32 vcc, 8, {vJ}\nv_cndmask_b32 {vOS}, {vOOB}, {vT0}, vcc")
    A(f"s_lshl_b32 {s_t0}, {s_x}, 14\ns_lshl_b32 {s_t1}, {s_wave}, 12\ns_add_u32 {s_t0}, {s_t0}, {s_t1}\ns_add_u32 {s_t0}, {s_t0}, {MEM_OFF}")
    A(f"v_add_u32 {vGM}, {s_t0}, {vL16}\nv_add_u32 {vGO}, {O_OFF - MEM_OFF}, {vGM}")
    A(f"s_mul_i32 {s_t0}, {s_role}, 1280\ns_add_u32 {s_t0}, {s_t0}, {SC_OFF}")
    A(f"v_add_u32 {vT0}, {s_t0}, {vL16}\nv_cndmask_b32 {vS0}, {vOOB}, {vT0}, vcc")
    A(f"v_mov_b32 {vPo[2]}, {vT0}")
    A(f"v_cmp_gt_u32 vcc, 16, {vLane}\nv_add_u32 {vT1}, 1024, {vT0}\nv_cndmask_b32 {vPo[3]}, {vOOB}, {vT1}, vcc")
    A(f"v_lshl_add_u32 {vT0}, {vG}, 3, {vJ}\nv_lshlrev_b32 {vT0}, 4, {vT0}\ns_add_u32 {s_t1}, {s_t0}, {1024 - 256}\nv_add_u32 {vT0}, {s_t1}, {vT0}")
    A(f"v_and_b32 {vT1}, 0x28, {vLane}\nv_cmp_eq_u32 vcc, 0x20, {vT1}\nv_cndmask_b32 {vS2}, {vOOB}, {vT0}, vcc")
    A(f"v_lshrrev_b32 {vT0}, 3, {vLane}")
    A(f"v_lshrrev_b32 {vT1}, 2, {vT0}\nv_lshlrev_b32 {vT1}, 7, {vT1}\nv_and_b32 {vT0}, 3, {vT0}\nv_lshl_add_u32 {vT1}, {vT0}, 2, {vT1}")
    A(f"v_and_b32 {vT0}, 7, {vLane}\nv_lshl_add_u32 {vT1}, {vT0}, 4, {vT1}\nv_add_u32 {vT1}, 1024, {vT1}")
    for i in range(4):
        A(f"s_xor_b32 {s_t0}, {s_role}, {i}\ns_mul_i32 {s_t0}, {s_t0}, 1280\ns_add_u32 {s_t0}, {s_t0}, {SC_OFF}")
        A(f"v_add_u32 {vSA[i]}, {s_t0}, {vL16}\nv_add_u32 {vSB[i]}, {s_t0}, {vT1}")
    A(f"s_lshl_b32 {s_t0}, {s_role}, 11\ns_add_u32 {s_t1}, {s_t0}, {KXF}\nv_add_u32 {vKX}, {s_t1}, {vL16}\ns_lshl_b32 {s_t0}, {s_cu}, 11\ns_add_u32 {s_t1}, {s_t0}, {VXF}\nv_add_u32 {vVX}, {s_t1}, {vL16}")
    A(f"s_lshl_b32 {s_t0}, {s_role}, 6\nv_and_b32 {vT0}, 1, {vLane}\nv_mul_u32_u24 {vT0}, {8192 + 128}, {vT0}\nv_xor_b32 {vFl}, {s_t0}, {vT0}")
    A(f"s_lshl_b32 {s_t0}, {s_role}, 10\ns_add_u32 {s_t0}, {s_t0}, {KVM}")
    A(f"v_lshl_add_u32 {vT0}, {vG}, 3, {vJ}\nv_lshlrev_b32 {vT0}, 4, {vT0}\ns_sub_u32 {s_t1}, {s_t0}, 128\nv_add_u32 {vT0}, {s_t1}, {vT0}")
    A(f"v_cmp_lt_u32 vcc, 7, {vJ}\nv_cndmask_b32 {vKM}, {vOOB}, {vT0}, vcc")
    A(f"s_add_u32 {s_t1}, {s_t0}, 512\nv_lshlrev_b32 {vT0}, 2, {vLane}\nv_add_u32 {vVM}, {s_t1}, {vT0}")
    A(f"s_lshl_b32 {s_t0}, {s_h}, 7\ns_lshl_b32 {s_t1}, {s_j}, 2\ns_add_u32 {s_t0}, {s_t0}, {s_t1}\ns_add_u32 {s_t0}, {s_t0}, {FLAGR}\nv_mov_b32 {vT0}, {s_t0}\nv_cmp_eq_u32 s[30:31], 0, {vLane}\nv_cndmask_b32 {vRF}, {vOOB}, {vT0}, s[30:31]")
    A(f"v_mov_b32 {vT0}, 0x4444\nv_mov_b32 {vT1}, 0xeeee\nv_cndmask_b32 {vIdx}, {vT0}, {vT1}, vcc")
    A(f"v_and_b32 {vT0}, 1, {vG}\nv_mul_u32_u24 {vT0}, {4*144}, {vT0}\nv_lshrrev_b32 {vT1}, 1, {vG}\nv_lshl_add_u32 {vT2}, {vT1}, 4, {vJ}")
    A(f"v_lshl_add_u32 {vT0}, {vT2}, 2, {vT0}")
    A(f"s_mul_i32 {s_t0}, {s_wave}, 2304\nv_add_u32 {vQw}, {s_t0}, {vT0}\nv_add_u32 {vKw}, {8*144}, {vQw}")
    A(f"s_mul_i32 {s_t0}, {s_wave}, 1152\ns_add_u32 {s_t0}, {s_t0}, {PW_B}\nv_add_u32 {vPw}, {s_t0}, {vT0}")
    A(f"v_and_b32 {vT0}, 1, {vG}\nv_lshlrev_b32 {vT0}, 4, {vT0}\nv_lshl_add_u32 {vT0}, {vT2}, 5, {vT0}")
    A(f"s_lshl_b32 {s_t0}, {s_wave}, 10\ns_add_u32 {s_t0}, {s_t0}, {V_B}\nv_add_u32 {vVw}, {s_t0}, {vT0}")
    A(f"v_mul_u32_u24 {vT0}, 144, {vJ}\nv_lshl_add_u32 {vQr}, {vG}, 5, {vT0}")
    A(f"v_lshrrev_b32 {vT0}, 2, {vJ}\nv_lshlrev_b32 {vT0}, 3, {vT0}\nv_and_b32 {vT1}, 3, {vJ}\nv_add_u32 {vT0}, {vT0}, {vT1}\nv_lshlrev_b32 {vT0}, 5, {vT0}")
    A(f"v_lshl_add_u32 {vT0}, {vG}, 3, {vT0}\nv_add_u32 {vVr}, {V_B}, {vT0}")
    A(f"v_lshrrev_b32 {vT0}, 1, {vJ}\nv_mul_u32_u24 {vT0}, 144, {vT0}\nv_lshl_add_u32 {vT0}, {vG}, 5, {vT0}\nv_and_b32 {vT1}, 1, {vJ}\nv_lshl_add_u32 {vT0}, {vT1}, 4, {vT0}\nv_add_u32 {vPr}, {PW_B}, {vT0}")
    for i in range(4): A(f"v_mov_b32 {ONES[i]}, 0x3f803f80")
    for i in (1, 2, 3): A(f"v_mov_b32 {PM[i]}, 0\nv_mov_b32 {VMo[0][i]}, 0\nv_mov_b32 {VMo[1][i]}, 0")
    A(f"s_mov_b32 {s_slot}, {RING0}\ns_mov_b32 {s_pslot}, {RING0 + PD * SLOT_SZ}\ns_mov_b32 {s_kv}, 0\ns_mov_b32 {s_step}, 0\ns_mov_b32 {s_known}, 0\ns_mov_b32 {s_kvm}, {PART2 - PART0}")
    c2 = (128 ** -0.5) * math.log2(math.e)
    import struct
    A(f"s_mov_b32 {s_c2}, 0x{struct.unpack('<I', struct.pack('<f', c2))[0]:08x}")
    if STAMP:
        for r in range(46, 62): A(f"s_mov_b32 s{r}, 0")
        A("s_memrealtime s[98:99]")
    A(f"s_cmp_eq_u32 {s_mode}, 2\ns_cbranch_scc1 L_r_safe")

    def delay(n):
        while n >= 4: A("s_nop 15"); n -= 4
        if n: A(f"s_nop {4*n-1}")
    def umax(regs):
        A(f"v_max3_u32 {vChk}, {regs[0]}, {regs[1]}, {regs[2]}"); regs = regs[3:]
        while len(regs) >= 2:
            A(f"v_max3_u32 {vChk}, {vChk}, {regs[0]}, {regs[1]}"); regs = regs[2:]
        if regs: A(f"v_max_u32 {vChk}, {vChk}, {regs[0]}")
    def padd(d, a, b):
        for i in range(0, d.n, 2): A(f"v_pk_add_f32 {d[i:i+2]}, {a[i:i+2]}, {b[i:i+2]}")
    def zero(accs):
        for a in accs:
            for i in range(4): A(f"v_mov_b32 {a[i]}, 0")
    def budget(): A(f"s_sub_u32 {s_bud}, {s_bud}, 1\ns_cbranch_scc1 L_end")

    def r_loop(wk, md):
        IF = "" if md == 'f' else "sc1"
        tg = f"{md}{wk}"
        tails = []
        nst = [0]
        def st():
            if STAMP and not opt.get('lite') and md == 'f' and wk in (0, 1):
                k = nst[0]; nst[0] += 1
                A(f"s_memtime s[{64+2*k}:{65+2*k}]")
        def st_acc():
            if STAMP and not opt.get('lite') and md == 'f' and wk in (0, 1):
                A("s_waitcnt lgkmcnt(0)")
                for k in range(nst[0] - 1):
                    A(f"s_sub_u32 {s_t0}, s{66+2*k}, s{64+2*k}\ns_add_u32 s{46+k}, s{46+k}, {s_t0}")
                if opt.get('raw'):
                    A(f"s_lshl_b32 {s_t0}, {s_step}, 7\ns_add_u32 {s_t0}, {s_t0}, {s_role}\ns_lshl_b32 {s_t0}, {s_t0}, 7\ns_add_u32 {s_t0}, {s_t0}, {DBGO + MB + wk * 64}")
                    for k in range(nst[0]): A(f"v_writelane_b32 {vChk}, s{64+2*k}, {k}")
                    A(f"v_lshlrev_b32 {vT1}, 2, {vLane}\ns_mov_b64 exec, 0xffff")
                    A(f"buffer_store_dword {vChk}, {vT1}, {WS}, {s_t0} offen\ns_mov_b64 exec, -1")
        def st_dump():
            if STAMP and md == 'f' and wk in (0, 1):
                A("s_memrealtime s[100:101]\ns_waitcnt lgkmcnt(0)")
                A(f"s_mov_b32 s58, s96\ns_mov_b32 s59, s98\ns_mov_b32 s60, s100\ns_mov_b32 s61, {s_bud}")
                A(f"s_lshl_b32 {s_t0}, {s_role}, 7\ns_add_u32 {s_t0}, {s_t0}, {DBGO + wk * 64}\nv_mov_b32 {vT1}, 0\ns_mov_b64 exec, 1")
                for k in range(16):
                    A(f"v_mov_b32 {vT0}, s{46+k}\nbuffer_store_dword {vT0}, {vT1}, {WS}, {s_t0} offen offset:{4*k}\ns_nop 0")
                A("s_mov_b64 exec, -1")
        def gather(vAddr, nm, body, accs):
            DPG = opt.get('dpg' + nm, -1)
            def issue(i0, dst=F):
                for i in range(i0, 4): A(f"buffer_load_dwordx4 {dst[i]}, {vAddr}, {WS}, {s_slot} offen offset:{i*1024} sc1")
            issue(0)
            y = 0
            if DPG >= 0:
                delay(DPG); issue(0, F2); y = 4
            A(f"L_{nm}s_{tg}:")
            for i in range(4):
                A(f"s_waitcnt vmcnt({3-i+y})")
                body(i, 0)
                umax([F[i][k] for k in range(4)])
                A(f"v_cmp_eq_u32 vcc, -1, {vChk}")
                body(i, 1)
                A(f"s_cbranch_vccnz L_{nm}r{i}_{tg}")
                def tail(i=i):
                    A(f"L_{nm}r{i}_{tg}:")
                    if DPG >= 0:
                        budget(); A("s_nop 7"); zero(accs); A("s_waitcnt vmcnt(0)")
                        for j in range(i, 4):
                            for k in range(4): A(f"v_mov_b32 {F[j][k]}, {F2[j][k]}")
                        issue(0, F2); A(f"s_branch L_{nm}s_{tg}")
                    else:
                        issue(i); budget(); A("s_nop 7"); zero(accs); A(f"s_nop 1\ns_branch L_{nm}s_{tg}")
                tails.append(tail)
        def kv_issue(ahead):
            A(f"s_add_u32 {s_t0}, {s_kv}, {ahead * 0x40000}")
            for u in range(2): A(f"buffer_load_dwordx4 {KX[u]}, {vKX}, {WS}, {s_t0} offen offset:{u*1024} sc1")
            for u in range(2): A(f"buffer_load_dwordx4 {VX[u]}, {vVX}, {WS}, {s_t0} offen offset:{u*1024} sc1")
        def kvm_store(so):
            A(f"buffer_store_dwordx4 {X}, {vKM}, {WS}, {so} offen {KVMF}")
            A(f"buffer_store_dword {VMo[0][0]}, {vVM}, {WS}, {so} offen {KVMF}")
            A(f"buffer_store_dword {VMo[1][0]}, {vVM}, {WS}, {so} offen offset:256 {KVMF}")
        if wk == 0:
            srd(A, 16, P_MEM0, 16384)
            A(f"v_lshrrev_b32 {vT0}, 1, {vJ}\nv_lshlrev_b32 {vT0}, 11, {vT0}\nv_lshl_add_u32 {vT0}, {vG}, 4, {vT0}\nv_and_b32 {vT1}, 1, {vJ}\nv_lshl_add_u32 {vT0}, {vT1}, 3, {vT0}")
            A(f"s_lshl_b32 {s_t0}, {s_c}, 6\ns_xor_b32 {s_t0}, {s_t0}, 128")
            A(f"buffer_load_dwordx2 {OO[0:2]}, {vT0}, {SX}, {s_t0} offen")
            zero(ACC)
            A("s_waitcnt vmcnt(0)")
            A(f"v_min_u32 {OO[0]}, -2, {OO[0]}\nv_min_u32 {OO[1]}, -2, {OO[1]}")
            A(f"buffer_store_dwordx2 {OO[0:2]}, {vMS}, {WS}, {s_slot} offen {IF}")
            if STAMP and md == 'f': A("s_memtime s[64:65]\ns_memtime s[66:67]")
            A(f"s_branch L_s1d_{tg}")
        if wk == 3:
            A(f"L_pre_{tg}:")
            for k in range(RN):
                A(f"s_mov_b32 {s_t0}, {RING0 + k * SLOT_SZ}")
                for i in (1, 2, 3): A(f"buffer_load_dwordx4 {T[i]}, {vPo[i]}, {WS}, {s_t0} offen sc1")
            A("s_waitcnt vmcnt(0)")
        if wk == 1:
            A(f"L_pre_{tg}:\nv_mov_b32 {vT2}, 0\ns_branch L_fl_{tg}")
        A(f"L_loop_{tg}:")
        st()
        if wk == 0:
            zero(ACC)
            delay(PRE[0])
            SUM = T[12]
            DP1 = opt.get('dp1', -1)
            def p1_issue(k):
                for i in range(3): A(f"buffer_load_dwordx4 {T[3*k+i]}, {vPL[i]}, {WS}, {s_kv if k == 0 else s_kvm} offen sc1")
            def p1_proc(k, y):
                A(f"s_waitcnt vmcnt({2+y})"); padd(SUM, T[3*k], OWN)
                A(f"s_waitcnt vmcnt({y})"); padd(T[3*k+1], T[3*k+1], T[3*k+2]); padd(SUM, SUM, T[3*k+1])
                umax([SUM[i] for i in range(4)])
                A(f"v_cmpx_ne_u32 vcc, -1, {vChk}")
                A(f"v_cvt_pk_bf16_f32 {OO[0]}, {SUM[0]}, {SUM[1]}\nv_cvt_pk_bf16_f32 {OO[1]}, {SUM[2]}, {SUM[3]}")
                A(f"buffer_store_dwordx2 {OO[0:2]}, {vMS}, {WS}, {s_slot} offen {IF}")
                A(f"s_mov_b64 exec, -1\ns_cmp_eq_u64 vcc, -1")
            if DP1 >= 0:
                p1_issue(0); delay(DP1); p1_issue(1)
                p1_proc(0, 3)
                A(f"s_cbranch_scc0 L_p1b_{tg}")
                A(f"L_p1ok_{tg}:")
                def tail():
                    A(f"L_p1b_{tg}:"); p1_issue(0); p1_proc(1, 4)
                    A(f"s_cbranch_scc1 L_p1ok_{tg}")
                    p1_proc(0, 1)
                    A(f"s_cbranch_scc1 L_p1ok_{tg}")
                    A(f"L_p1r_{tg}:"); budget(); p1_issue(0); p1_proc(0, 0)
                    A(f"s_cbranch_scc1 L_p1ok_{tg}\ns_branch L_p1r_{tg}")
                tails.append(tail)
            else:
                A(f"L_p1_{tg}:")
                p1_issue(0); p1_proc(0, 0)
                A(f"s_cbranch_scc0 L_p1r_{tg}")
                def tail():
                    A(f"L_p1r_{tg}:"); budget(); A(f"s_branch L_p1_{tg}")
                tails.append(tail)
            st()
            A(f"L_s1d_{tg}:")
        elif wk == 1:
            delay(opt.get('slowd', 8))
            A(f"v_readlane_b32 {s_t0}, {vT2}, 0\nv_readlane_b32 {s_t1}, {vT2}, 1\ns_min_i32 {s_known}, {s_t0}, {s_t1}")
            A(f"s_cmp_gt_i32 {s_known}, {s_step}\ns_cbranch_scc1 L_flok_{tg}")
            A(f"L_fl_{tg}:")
            A(f"buffer_load_dword {vT2}, {vFl}, {WS}, 0 offen sc1")
            budget()
            A("s_waitcnt vmcnt(0)")
            A(f"v_readlane_b32 {s_t0}, {vT2}, 0\nv_readlane_b32 {s_t1}, {vT2}, 1\ns_min_i32 {s_known}, {s_t0}, {s_t1}")
            A(f"s_cmp_gt_i32 {s_known}, {s_step}\ns_cbranch_scc0 L_fl_{tg}")
            A(f"L_flok_{tg}:")
            A(f"s_cmp_eq_u32 {s_step}, 0\ns_cbranch_scc1 L_nokvm_{tg}")
            A(f"s_sub_u32 {s_t2}, {s_kv}, 0x40000\ns_sub_u32 {s_t3}, {s_step}, 1\nv_mov_b32 {vRFv}, {s_t3}")
            kvm_store(s_t2)
            A(f"buffer_store_dword {vRFv}, {vRF}, {WS}, 0 offen sc1")
            A(f"L_nokvm_{tg}:")
            kv_issue(0)
            A(f"s_cmp_ge_i32 {s_known}, {NSEG}\ns_cbranch_scc1 L_nofl_{tg}")
            A(f"buffer_load_dword {vT2}, {vFl}, {WS}, 0 offen sc1")
            A(f"L_nofl_{tg}:")
            zero(ACC)
        else:
            delay(8 * wk); zero(ACC)
        A("s_barrier")
        st()
        delay(PRE[1])
        def body2(i, ph):
            for Tt in ((0,), (1, 2, 3))[ph]: A(f"v_smfmac_f32_16x16x64_bf16 {ACC[Tt]}, {F[i]}, {WQKV(Tt, i)}, {vIdx}")
        gather(vGM, "m", body2, ACC[0:4])
        st()
        vq = [(Tt, i) for i in range(4) for Tt in (4, 5)]
        def vs(n=1):
            for _ in range(n):
                Tt, i = vq.pop(0); A(f"v_smfmac_f32_16x16x64_bf16 {ACC[Tt]}, {F[i]}, {WQKV(Tt, i)}, {vIdx}")
        for (a, b, vw) in ((0, 1, vQw), (2, 3, vKw)):
            for hh in range(2):
                for r in (2 * hh, 2 * hh + 1): A(f"v_permlane32_swap_b32 {ACC[a][r]}, {ACC[b][r]}")
                A(f"v_pk_add_f32 {ACC[a][2*hh:2*hh+2]}, {ACC[a][2*hh:2*hh+2]}, {ACC[b][2*hh:2*hh+2]}")
                A(f"ds_write2_b32 {vw}, {ACC[a][2*hh]}, {ACC[a][2*hh+1]} offset0:{72*hh} offset1:{72*hh+36}")
        vs(3)
        A("s_waitcnt lgkmcnt(0)\ns_barrier")
        st()
        def vpart():
            for r in range(4): A(f"v_permlane32_swap_b32 {ACC[4][r]}, {ACC[5][r]}")
            padd(ACC[4], ACC[4], ACC[5])
            A(f"ds_write_b128 {vVw}, {ACC[4]}")
        if wk == 1:
            for w in range(4):
                for hh in range(2): A(f"ds_read_b128 {T[2*w+hh]}, {vQr} offset:{QK_B + w*2304 + hh*16}")
            vs(2)
            A("s_waitcnt lgkmcnt(4)")
            padd(T[0], T[0], T[2]); padd(T[1], T[1], T[3])
            vs(1)
            A("s_waitcnt lgkmcnt(2)")
            padd(T[0], T[0], T[4]); padd(T[1], T[1], T[5])
            A("s_waitcnt lgkmcnt(0)")
            for i in range(4):
                tt = T[i >> 1][2*(i&1):2*(i&1)+2]
                A(f"v_pk_add_f32 {tt}, {tt}, {T[6 + (i >> 1)][2*(i&1):2*(i&1)+2]}")
                A(f"v_cvt_pk_bf16_f32 {X[i]}, {tt[0]}, {tt[1]}")
            A(f"v_mfma_f32_16x16x32_bf16 {S[0]}, {KX[0]}, {X}, 0")
            A(f"v_mfma_f32_16x16x32_bf16 {S[1]}, {KX[1]}, {X}, 0")
            A(f"v_mfma_f32_16x16x32_bf16 {S[2]}, {X}, {X}, 0")
            A(f"buffer_store_dwordx4 {S[0]}, {vS0}, {WS}, {s_slot} offen {IF}")
            vs(1)
            A(f"buffer_store_dwordx4 {S[1]}, {vS0}, {WS}, {s_slot} offen offset:128 {IF}")
            vs(1)
            A(f"buffer_store_dwordx4 {S[2]}, {vS2}, {WS}, {s_slot} offen {IF}")
            st()
            vpart()
            zero(ACC[0:2])
        else:
            if wk == 2:
                for i in (1, 2, 3): A(f"buffer_store_dwordx4 {vPoi}, {vPo[i]}, {WS}, {s_pslot} offen {IF}")
            vs(5)
            zero(ACC[0:2])
            vpart()
        A("s_waitcnt lgkmcnt(0)\ns_barrier")
        st()
        if wk != 1:
            A(f"s_cmp_eq_u32 {s_step}, {NSEG-1}\ns_cbranch_scc1 L_last_{tg}")
        if wk == 1:
            delay(PRE[2])
            SETS = [(T[0:4], SB), (T[8:12], SB2)]
            def p3_issue(k):
                for i in range(4):
                    A(f"buffer_load_dwordx4 {SETS[k][0][i]}, {vSA[i]}, {WS}, {s_slot} offen sc1")
                    A(f"buffer_load_dword {SETS[k][1][i]}, {vSB[i]}, {WS}, {s_slot} offen sc1")
            p3_issue(0)
            for t in range(2):
                for w in range(4): A(f"ds_read_b64 {T[4+2*t+(w>>1)][2*(w&1):2*(w&1)+2]}, {vVr} offset:{w*1024 + t*128}")
            A("s_waitcnt lgkmcnt(0)")
            for t in range(2):
                padd(T[4+2*t], T[4+2*t], T[5+2*t])
                A(f"v_pk_add_f32 {T[4+2*t][0:2]}, {T[4+2*t][0:2]}, {T[4+2*t][2:4]}")
                A(f"v_cvt_pk_bf16_f32 {VMo[t][0]}, {T[4+2*t][0]}, {T[4+2*t][1]}")
            A(f"s_cmp_eq_u32 {s_step}, {NSEG-1}\ns_cbranch_scc1 L_last_{tg}")
            DP3 = opt.get('dp3', 1)
            U = T[4]; ub = T[5][0]
            vals = [U[i] for i in range(4)] + [ub]
            def p3_proc(k, y):
                TA, TB = SETS[k]
                A(f"s_waitcnt vmcnt({4 + y})")
                padd(U, TA[0], TA[1]); A(f"v_add_f32 {ub}, {TB[0]}, {TB[1]}")
                A(f"s_waitcnt vmcnt({y})")
                padd(TA[2], TA[2], TA[3]); A(f"v_add_f32 {TB[2]}, {TB[2]}, {TB[3]}")
                padd(U, U, TA[2]); A(f"v_add_f32 {ub}, {ub}, {TB[2]}")
                umax(vals)
                A(f"v_cmp_eq_u32 vcc, -1, {vChk}")
                A(f"v_max3_f32 {vM}, {U[0]}, {U[1]}, {U[2]}\nv_max3_f32 {vM}, {vM}, {U[3]}, {ub}")
                A(f"v_max_f32_dpp {vM}, {vM}, {vM} row_ror:8 row_mask:0xf bank_mask:0xf")
                A(f"v_mov_b32 {vM2}, {vM}")
            if DP3:
                p3_issue(1)
                A(f"L_p3_{tg}:")
                p3_proc(0, 8)
                A(f"s_cbranch_vccnz L_p3r_{tg}")
                A(f"L_p3ok_{tg}:")
                def tail():
                    A(f"L_p3r_{tg}:"); p3_issue(0); budget(); p3_proc(1, 8)
                    A(f"s_nop 0\ns_cbranch_vccz L_p3ok_{tg}")
                    p3_issue(1); A(f"s_branch L_p3_{tg}")
                tails.append(tail)
            else:
                A(f"L_p3_{tg}:")
                p3_proc(0, 0)
                A(f"s_cbranch_vccnz L_p3r_{tg}")
                def tail():
                    A(f"L_p3r_{tg}:"); p3_issue(0); budget(); A(f"s_branch L_p3_{tg}")
                tails.append(tail)
            st()
            A(f"v_permlane16_swap_b32 {vM}, {vM2}\nv_max_f32 {vM}, {vM}, {vM2}")
            A(f"v_mov_b32 {vM2}, {vM}\nv_permlane32_swap_b32 {vM}, {vM2}\nv_max_f32 {vM}, {vM}, {vM2}")
            A(f"v_mul_f32 {vM}, {s_c2}, {vM}")
            for v in vals: A(f"v_fma_f32 {v}, {v}, {s_c2}, -{vM}")
            for v in vals[0:2]: A(f"v_exp_f32 {v}, {v}")
            for v in vals[2:4]: A(f"v_exp_f32 {v}, {v}")
            A(f"v_cvt_pk_bf16_f32 {PB[0]}, {U[0]}, {U[1]}\nv_cvt_pk_bf16_f32 {PB[1]}, {U[2]}, {U[3]}")
            A(f"v_exp_f32 {ub}, {ub}")
            A(f"v_mov_b32_dpp {PB[2]}, {PB[0]} row_ror:8 row_mask:0xf bank_mask:0xf")
            A(f"v_mov_b32_dpp {PB[3]}, {PB[1]} row_ror:8 row_mask:0xf bank_mask:0xf")
            A(f"v_mov_b32_dpp {vM2}, {ub} row_ror:8 row_mask:0xf bank_mask:0xf")
            A(f"v_cvt_pk_bf16_f32 {PM[0]}, {ub}, {vM2}")
            A(f"v_mfma_f32_16x16x32_bf16 {S[2]}, {ONES}, {PB}, 0")
            A(f"v_mfma_f32_16x16x32_bf16 {S[2]}, {ONES}, {PM}, {S[2]}")
            for t in range(2):
                A(f"v_mfma_f32_16x16x32_bf16 {S[t]}, {VX[t]}, {PB}, 0")
                A(f"v_mfma_f32_16x16x32_bf16 {S[t]}, {VMo[t]}, {PM}, {S[t]}")
                if t == 0: A(f"v_rcp_f32 {vRL[0]}, {S[2][0]}")
            for t in range(2):
                for hh in range(2):
                    sp = S[t][2*hh:2*hh+2]
                    A(f"v_pk_mul_f32 {sp}, {sp}, {vRL} op_sel_hi:[1,0]")
                    A(f"v_cvt_pk_bf16_f32 {OO[2*t+hh]}, {sp[0]}, {sp[1]}")
            A(f"buffer_store_dwordx4 {OO}, {vOS}, {WS}, {s_slot} offen {IF}")
        A("s_barrier")
        st()
        delay(PRE[3])
        def body4(i, ph):
            A(f"v_smfmac_f32_16x16x64_bf16 {ACC[ph]}, {F[i]}, {WOr(ph, i)}, {vIdx}")
        gather(vGO, "o", body4, ACC[0:2])
        st()
        for hh in range(2):
            for r in (2 * hh, 2 * hh + 1): A(f"v_permlane32_swap_b32 {ACC[0][r]}, {ACC[1][r]}")
            A(f"v_pk_add_f32 {ACC[0][2*hh:2*hh+2]}, {ACC[0][2*hh:2*hh+2]}, {ACC[1][2*hh:2*hh+2]}")
            A(f"ds_write2_b32 {vPw}, {ACC[0][2*hh]}, {ACC[0][2*hh+1]} offset0:{72*hh} offset1:{72*hh+36}")
        A("s_waitcnt lgkmcnt(0)\ns_barrier")
        st()
        if wk == 0:
            for w in range(4): A(f"ds_read_b128 {T[w]}, {vPr} offset:{w*1152}")
            A("s_waitcnt lgkmcnt(2)"); padd(T[0], T[0], T[1])
            A("s_waitcnt lgkmcnt(1)"); padd(T[0], T[0], T[2])
            A("s_waitcnt lgkmcnt(0)"); padd(OWN, T[0], T[3])
            A(f"buffer_store_dwordx4 {OWN}, {vPS}, {WS}, {s_kv} offen sc1")
            if opt.get('dp1', -1) >= 0: A(f"buffer_store_dwordx4 {OWN}, {vPS}, {WS}, {s_kvm} offen sc1")
        st(); st_acc()
        for r in (s_slot, s_pslot):
            A(f"s_add_u32 {r}, {r}, {SLOT_SZ}\ns_cmp_eq_u32 {r}, {RING0 + RN * SLOT_SZ}\ns_cselect_b32 {r}, {RING0}, {r}")
        A(f"s_add_u32 {s_kv}, {s_kv}, 0x40000\ns_add_u32 {s_kvm}, {s_kvm}, 0x40000\ns_add_u32 {s_step}, {s_step}, 1")
        A(f"s_branch L_loop_{tg}")
        A(f"L_last_{tg}:")
        if wk == 1:
            kvm_store(s_kv)
        st_dump()
        A("s_branch L_rt7")
        for t in tails: t()

    for md in ('f', 's'):
        if md == 's': A("L_r_safe:")
        for wk in (1, 2, 3):
            A(f"s_cmp_eq_u32 {s_wave}, {wk}\ns_cbranch_scc1 L_{'pre' if wk in (1, 3) else 'loop'}_{md}{wk}")
        for wk in (0, 1, 2, 3): r_loop(wk, md)

    S0 = opt.get('s0', 60); NS = NSEG - S0
    A("L_rt7:")
    load_kernargs(A)
    A("s_waitcnt vmcnt(0)")
    V.next = vIdx.base + 3
    vRa = V.alloc('ra'); vRf = V.alloc('rf2'); vRd = V.alloc('rd'); vRw = V.alloc('rw'); vRr = V.alloc('rr'); vRs = V.alloc('rs'); vRo = V.alloc('ro'); vRk = V.alloc('rk')
    vRl = [V.alloc(f'rl{i}') for i in range(3)]
    FB = [V.alloc(f'fb{i}', 4) for i in range(16)]; FB2 = [V.alloc(f'fc{i}', 4) for i in range(16)]
    RA = [V.alloc(f'racc{i}', 4) for i in range(8)]
    G3 = [V.alloc(f'g3{i}', 4) for i in range(2)]
    s_seg, s_in, s_in2, s_sl, s_gl2, s_go, s_last = "s46", "s47", "s48", "s49", "s50", "s51", "s52"
    RW_B = 20480; RK_B = 65536
    A(f"v_lshrrev_b32 {vT1}, 1, {vG}\nv_lshlrev_b32 {vT0}, 10, {vT1}\nv_and_b32 {vT1}, 1, {vG}\nv_lshl_add_u32 {vT0}, {vT1}, 9, {vT0}")
    A(f"v_bfe_u32 {vT1}, {vLane}, 3, 1\nv_lshl_add_u32 {vT0}, {vT1}, 8, {vT0}\nv_and_b32 {vT1}, 7, {vLane}\nv_lshl_add_u32 {vT0}, {vT1}, 4, {vT0}")
    A(f"s_lshl_b32 {s_t0}, {s_x}, 15\ns_lshl_b32 {s_t1}, {s_wave}, 13\ns_add_u32 {s_t0}, {s_t0}, {s_t1}\ns_add_u32 {s_t0}, {s_t0}, {OAF + S0 * 0x40000}\nv_add_u32 {vRa}, {s_t0}, {vT0}")
    A(f"v_and_b32 {vT0}, 31, {vLane}\nv_lshlrev_b32 {vT0}, 2, {vT0}\ns_lshl_b32 {s_t0}, {s_x}, 7\ns_add_u32 {s_t0}, {s_t0}, {FLAGT}\nv_add_u32 {vRf}, {s_t0}, {vT0}")
    A(f"v_add_u32 {vRw}, {RW_B - PW_B}, {vPw}\ns_mul_i32 {s_t0}, {s_wave}, 4608\ns_add_u32 {s_t0}, {s_t0}, {RW_B - PW_B}\nv_add_u32 {vRr}, {s_t0}, {vPr}")
    A(f"s_lshl_b32 {s_t0}, {s_wave}, 14\ns_add_u32 {s_t0}, {s_t0}, {RK_B}\nv_add_u32 {vRk}, {s_t0}, {vL16}")
    A(f"s_lshl_b32 {s_t0}, {s_wave}, 18\ns_add_u32 {s_t0}, {s_t0}, {PART2 - PART0 + 0x80000}")
    A(f"s_cmp_eq_u32 {s_wave}, {s_x}\ns_cselect_b32 {s_t1}, {s_t0}, {OOB // 2}\ns_cselect_b32 {s_t0}, {OOB // 2}, {s_t0}")
    for i in range(3): A(f"v_add_u32 {vRl[i]}, {s_t1}, {vPL[i]}")
    A(f"s_sub_u32 {s_t0}, {s_t0}, 0x40000\nv_add_u32 {vRs}, {s_t0}, {vPS}")
    A(f"v_bfe_u32 {vT0}, {vLane}, 3, 1\nv_lshlrev_b32 {vT0}, 15, {vT0}\nv_bfe_u32 {vT1}, {vLane}, 1, 2\nv_lshl_add_u32 {vT0}, {vT1}, 12, {vT0}\nv_lshl_add_u32 {vT0}, {vG}, 4, {vT0}\nv_and_b32 {vT1}, 1, {vJ}\nv_lshl_add_u32 {vT0}, {vT1}, 3, {vT0}")
    A(f"s_lshl_b32 {s_t0}, {s_c}, 6\ns_xor_b32 {s_t0}, {s_t0}, 128\ns_and_b32 {s_t1}, {s_wave}, 1\ns_lshl_b32 {s_t1}, {s_t1}, 16\ns_add_u32 {s_t0}, {s_t0}, {s_t1}\ns_lshr_b32 {s_t1}, {s_wave}, 1\ns_lshl_b32 {s_t1}, {s_t1}, 14\ns_add_u32 {s_t0}, {s_t0}, {s_t1}")
    A(f"s_add_u32 {s_t0}, {s_t0}, {S0 * 0x20000}\ns_cmp_eq_u32 {s_wave}, {s_x}\ns_cselect_b32 {s_t0}, {s_t0}, {OOB // 2}\nv_add_u32 {vRo}, {s_t0}, {vT0}")
    A("s_waitcnt lgkmcnt(0)")
    srd(A, 16, P_OUT, 8 * MB)
    NB = NS - 1
    assert NB <= 5
    BUF = [[R('a', p * 64 + i * 4, 4) for i in range(16)] for p in range(3)] + [FB, FB2]
    def rt_wait(seg):
        A(f"s_cmp_lg_u32 {s_wave}, 0\ns_cbranch_scc1 L_rtw{seg}d\ns_branch L_rtw{seg}g")
        A(f"L_rtw{seg}:\ns_sleep 1\nL_rtw{seg}g:")
        A(f"buffer_load_dword {vRd}, {vRf}, {WS}, 0 offen sc1")
        budget()
        A(f"s_waitcnt vmcnt(0)\nv_cmp_ge_i32 vcc, {seg}, {vRd}\ns_cbranch_vccnz L_rtw{seg}")
        A(f"L_rtw{seg}d:\ns_barrier")
    def rt_load(n):
        for kb in range(4):
            for tg in range(4):
                if tg % 2 == 0: A(f"s_mov_b32 {s_in2}, {n * 0x40000 + (tg >> 1) * 0x20000 + (kb & 2) * 2048}")
                A(f"buffer_load_dwordx4 {BUF[n % NB][kb*4+tg]}, {vRa}, {WS}, {s_in2} offen offset:{(kb & 1) * 2048 + (tg & 1) * 128}")
    def rt_comp(n, y):
        zero(RA)
        for kb in range(4):
            A(f"s_waitcnt vmcnt({min(63, (3 - kb) * 4 + y)})")
            for tg in range(4):
                for t in range(2): A(f"v_smfmac_f32_16x16x64_bf16 {RA[tg*2+t]}, {BUF[n % NB][kb*4+tg]}, {WOr(t, kb)}, {vIdx}")
        for tg in range(4):
            a_, b_ = RA[tg * 2], RA[tg * 2 + 1]
            for hh in range(2):
                for r in (2 * hh, 2 * hh + 1): A(f"v_permlane32_swap_b32 {a_[r]}, {b_[r]}")
                A(f"v_pk_add_f32 {a_[2*hh:2*hh+2]}, {a_[2*hh:2*hh+2]}, {b_[2*hh:2*hh+2]}")
                for r in (2 * hh, 2 * hh + 1): A(f"ds_write_b32 {vRw}, {a_[r]} offset:{(n & 1) * 18432 + tg * 4608 + r * 144}")
        A("s_waitcnt lgkmcnt(0)\ns_barrier")
        for w in range(4): A(f"ds_read_b128 {RA[w]}, {vRr} offset:{(n & 1) * 18432 + w*1152}")
        A("s_waitcnt lgkmcnt(0)")
        padd(RA[0], RA[0], RA[1]); padd(RA[2], RA[2], RA[3]); padd(G3[n & 1], RA[0], RA[2])
        A(f"s_mov_b32 {s_sl}, {n << 20}\nbuffer_store_dwordx4 {G3[n & 1]}, {vRs}, {WS}, {s_sl} offen sc1")
        A(f"ds_write_b128 {vRk}, {G3[n & 1]} offset:{n * 1024}")
    rt_wait(NSEG - 3)
    for n in range(NS - 2): rt_load(n)
    for n in range(NS - 3): rt_comp(n, 16 * (NS - 3 - n))
    rt_wait(NSEG - 2); rt_load(NS - 2)
    rt_comp(NS - 3, 16); rt_comp(NS - 2, 0)
    rt_wait(NSEG - 1); rt_load(NS - 1); rt_comp(NS - 1, 0)
    A(f"s_mov_b32 {s_gl2}, 0\ns_mov_b32 {s_go}, 0")
    A(f"s_cmp_lg_u32 {s_wave}, {s_x}\ns_cbranch_scc1 L_end")
    GG = FB + FB2
    assert NS * 3 <= len(GG)
    A("L_rtg:")
    for n in range(NS):
        A(f"s_add_u32 {s_in2}, {s_gl2}, {n << 20}")
        for i in range(3): A(f"buffer_load_dwordx4 {GG[n * 3 + i]}, {vRl[i]}, {WS}, {s_in2} offen sc1")
    budget()
    A("s_waitcnt vmcnt(0)")
    for n in range(NS):
        padd(GG[n*3], GG[n*3], GG[n*3+1]); padd(GG[n*3], GG[n*3], GG[n*3+2])
        A(f"ds_read_b128 {GG[n*3+1]}, {vRk} offset:{n * 1024}")
    umax([GG[n * 3][i] for n in range(NS) for i in range(4)])
    A(f"v_cmp_eq_u32 vcc, -1, {vChk}\ns_waitcnt lgkmcnt(0)\ns_cbranch_vccnz L_rtg")
    for n in range(NS):
        q = GG[n * 3:n * 3 + 3]
        padd(q[0], q[0], q[1])
        A(f"v_cvt_pk_bf16_f32 {q[2][0]}, {q[0][0]}, {q[0][1]}\nv_cvt_pk_bf16_f32 {q[2][1]}, {q[0][2]}, {q[0][3]}")
        A(f"s_add_u32 {s_in2}, {s_go}, {n * 0x20000}\nbuffer_store_dwordx2 {q[2][0:2]}, {vRo}, s[16:19], {s_in2} offen sc1")
    if STAMP:
        A("s_waitcnt vmcnt(0)\ns_memrealtime s[100:101]\ns_waitcnt lgkmcnt(0)")
        A(f"s_lshl_b32 {s_t0}, {s_role}, 7\ns_add_u32 {s_t0}, {s_t0}, {DBGO}\nv_mov_b32 {vT1}, 0\ns_mov_b64 exec, 1\nv_mov_b32 {vT0}, s100\nbuffer_store_dword {vT0}, {vT1}, {WS}, {s_t0} offen offset:44")
    A("L_rtdone:\nL_end:\ns_endpgm")

    from gen_g import emit_g
    emit_g(A, V, opt, dict(vLane=vLane, vL16=vL16, vG=vG, vJ=vJ, vT0=vT0, vT1=vT1, vT2=vT2, confirm=confirm, dma_chunk=dma_chunk))
    A("s_endpgm")
    return A.finish() + kd(name, 512, 256)
```

```python
from asmlib import Asm, Regs, R
from layout import *
import math, struct
WS = "s[4:7]"
def f32(x): return f"0x{struct.unpack('<I', struct.pack('<f', x))[0]:08x}"

class Ctx:
    def __init__(self, A, V, vLane, vL16, vG, vJ, vT0, vT1):
        self.A = A; self.V = V
        self.vLane, self.vL16, self.vG, self.vJ, self.vT0, self.vT1 = vLane, vL16, vG, vJ, vT0, vT1
        self.vD = [V.alloc('d0'), V.alloc('d1')]; self.vNeg = V.alloc('neg'); self.vM = [V.alloc('m0'), V.alloc('m1')]; self.vM2 = V.alloc('m2')
        self.ONES = V.alloc('ones', 4)
        self.s_t0, self.s_t1, self.s_t2, self.s_c2 = "s24", "s25", "s26", "s27"
    def MK(self, uq, c): b = 64 + (uq * 8 + c) * 2; return f"s[{b}:{b+1}]"
    def setup(self):
        A = self.A; vT0, vT1, vJ, vG, vD = self.vT0, self.vT1, self.vJ, self.vG, self.vD
        A(f"v_lshrrev_b32 {vT0}, 2, {vJ}\nv_sub_u32 {vT0}, {vT0}, {vG}\nv_lshlrev_b32 {vT0}, 3, {vT0}\nv_and_b32 {vT1}, 3, {vJ}\nv_add_u32 {vD[0]}, {vT0}, {vT1}\nv_add_u32 {vD[1]}, 4, {vD[0]}")
        A(f"v_mov_b32 {self.vNeg}, {f32(-1e30)}")
        for i in range(4): A(f"v_mov_b32 {self.ONES[i]}, 0x3f803f80")
        for uq in range(2):
            for c in range(8): A(f"v_cmp_le_i32 {self.MK(uq, c)}, {c}, {vD[uq]}")
    def rowmax(self, m):
        A = self.A; vM2 = self.vM2
        A(f"v_mov_b32 {vM2}, {m}\nv_permlane16_swap_b32 {m}, {vM2}\nv_max_f32 {m}, {m}, {vM2}")
        A(f"v_mov_b32 {vM2}, {m}\nv_permlane32_swap_b32 {m}, {vM2}\nv_max_f32 {m}, {m}, {vM2}")
        A(f"v_mul_f32 {m}, {self.s_c2}, {m}")
    def maxchain(self, m, vals):
        A = self.A
        A(f"v_max3_f32 {m}, {vals[0]}, {vals[1]}, {vals[2]}"); vals = vals[3:]
        while len(vals) >= 2:
            A(f"v_max3_f32 {m}, {m}, {vals[0]}, {vals[1]}"); vals = vals[2:]
        if vals: A(f"v_max_f32 {m}, {m}, {vals[0]}")

def emit_b2(C, s_qb, s_hb, tag, stf):
    A = C.A; V = C.V; mark = V.next
    s_t0, s_t1, s_t2, s_c2 = C.s_t0, C.s_t1, C.s_t2, C.s_c2
    vT0, vL16, vM, vNeg, ONES, MK = C.vT0, C.vL16, C.vM, C.vNeg, C.ONES, C.MK
    Q = [V.alloc(f'q{u}', 4) for u in range(2)]
    Kf = [[R('a', (b * 2 + u) * 4, 4) for u in range(2)] for b in range(9)]
    Vf = [[R('a', 72 + (b * 2 + u) * 4, 4) for u in range(2)] for b in range(9)]
    S = [[[V.alloc(f's{b}{uq}{u}', 4) for u in range(2)] for uq in range(2)] for b in range(9)]
    O = [[V.alloc(f'o{uq}{t}', 4) for t in range(2)] for uq in range(2)]
    L = [V.alloc(f'l{uq}', 4) for uq in range(2)]
    A(f"s_mov_b32 {s_c2}, {f32(32 ** -0.5 * math.log2(math.e))}")
    A(f"s_lshl_b32 {s_t0}, {s_hb}, 11\nv_add_u32 {vT0}, {s_t0}, {vL16}")
    A(f"s_lshl_b32 {s_t1}, {s_qb}, 16\ns_add_u32 {s_t1}, {s_t1}, {QBF}")
    for u in range(2): A(f"buffer_load_dwordx4 {Q[u]}, {vT0}, {WS}, {s_t1} offen offset:{u*1024}")
    for base, dst in ((KBF, Kf), (VBF, Vf)):
        for b in range(9):
            A(f"s_add_i32 {s_t1}, {s_qb}, {b - 8}\ns_max_i32 {s_t1}, {s_t1}, 0\ns_lshl_b32 {s_t1}, {s_t1}, 16\ns_add_u32 {s_t1}, {s_t1}, {base}")
            for u in range(2): A(f"buffer_load_dwordx4 {dst[b][u]}, {vT0}, {WS}, {s_t1} offen offset:{u*1024}")
    for b in range(9):
        A(f"s_waitcnt vmcnt({18 + 2 * (8 - b)})")
        for uq in range(2):
            for u in range(2): A(f"v_mfma_f32_16x16x32_bf16 {S[b][uq][u]}, {Kf[b][u]}, {Q[uq]}, 0")
    for uq in range(2):
        for u in range(2):
            for r in range(4): A(f"v_cndmask_b32 {S[0][uq][u][r]}, {S[0][uq][u][r]}, {vNeg}, {MK(uq, 4*u+r)}")
    for uq in range(2):
        for u in range(2):
            for r in range(4): A(f"v_cndmask_b32 {S[8][uq][u][r]}, {vNeg}, {S[8][uq][u][r]}, {MK(uq, 4*u+r)}")
    for b in range(8):
        A(f"s_cmp_ge_u32 {s_qb}, {8 - b}\ns_cbranch_scc1 L_bm_done_{tag}")
        for uq in range(2):
            for u in range(2):
                for r in range(4): A(f"v_mov_b32 {S[b][uq][u][r]}, {vNeg}")
    A(f"L_bm_done_{tag}:")
    for uq in range(2):
        C.maxchain(vM[uq], [S[b][uq][u][r] for b in range(9) for u in range(2) for r in range(4)])
        C.rowmax(vM[uq])
    A("s_waitcnt vmcnt(0)")
    for b in range(9):
        for uq in range(2):
            vals = [S[b][uq][u][r] for u in range(2) for r in range(4)]
            for v in vals: A(f"v_fma_f32 {v}, {v}, {s_c2}, -{vM[uq]}")
            for v in vals: A(f"v_exp_f32 {v}, {v}")
            for i in range(4): A(f"v_cvt_pk_bf16_f32 {S[b][uq][0][i]}, {vals[2*i]}, {vals[2*i+1]}")
            A(f"v_mfma_f32_16x16x32_bf16 {L[uq]}, {ONES}, {S[b][uq][0]}, {'0' if b == 0 else L[uq]}")
            for t in range(2):
                A(f"v_mfma_f32_16x16x32_bf16 {O[uq][t]}, {Vf[b][t]}, {S[b][uq][0]}, {'0' if b == 0 else O[uq][t]}")
    A(f"s_lshl_b32 {s_t0}, {s_hb}, 10\nv_add_u32 {vT0}, {s_t0}, {vL16}")
    A(f"s_lshl_b32 {s_t1}, {s_qb}, 16\ns_add_u32 {s_t1}, {s_t1}, {OBF}\ns_add_u32 {s_t2}, {s_t1}, 32768")
    for uq in range(2):
        A(f"v_rcp_f32 {vM[uq]}, {L[uq][0]}")
        P = S[1][uq][1]
        for t in range(2):
            for r in range(4): A(f"v_mul_f32 {O[uq][t][r]}, {O[uq][t][r]}, {vM[uq]}")
            for hh in range(2): A(f"v_cvt_pk_bf16_f32 {P[2*t+hh]}, {O[uq][t][2*hh]}, {O[uq][t][2*hh+1]}")
        A(f"buffer_store_dwordx4 {P}, {vT0}, {WS}, {s_t1 if uq == 0 else s_t2} offen {stf}")
    V.next = mark

def emit_t6(C, s_task, stf, wait_kvm=None, wait_kv=None):
    A = C.A; V = C.V; mark = V.next
    s_t0, s_t1, s_t2, s_c2 = C.s_t0, C.s_t1, C.s_t2, C.s_c2
    vT0, vT1, vL16, vM, vNeg, ONES, MK, vJ, vG, vLane = C.vT0, C.vT1, C.vL16, C.vM, C.vNeg, C.ONES, C.MK, C.vJ, C.vG, C.vLane
    Qf = [[V.alloc(f'Q{j}{u}', 4) for u in range(2)] for j in range(4)]
    Kf = [[V.alloc(f'K{j}{u}', 4) for u in range(2)] for j in range(4)]
    Vf = [[V.alloc(f'V{j}{u}', 4) for u in range(2)] for j in range(4)]
    KM = [V.alloc(f'KM{j}', 4) for j in range(4)]
    VM = [[V.alloc(f'VM{j}{t}', 2) for t in range(2)] for j in range(4)]
    Sx = [[V.alloc(f'Sx{uq}{kt}', 4) for kt in range(3)] for uq in range(2)]
    PMr = [V.alloc(f'PM{uq}', 2) for uq in range(2)]
    Lr = [V.alloc(f'L{uq}', 4) for uq in range(2)]
    vKM = V.alloc('vkm'); vVM = V.alloc('vvm')
    A(f"s_mov_b32 {s_c2}, {f32(128 ** -0.5 * math.log2(math.e))}")
    if wait_kv: wait_kv()
    A(f"s_lshl_b32 {s_t0}, {s_task}, 13")
    def ld8(dst, base):
        for half in range(2):
            A(f"s_add_u32 {s_t1}, {s_t0}, {base + half * 4096}")
            for k in range(4):
                j, u = (half * 4 + k) >> 1, k & 1
                A(f"buffer_load_dwordx4 {dst[j][u]}, {vL16}, {WS}, {s_t1} offen offset:{k*1024}")
    ld8(Qf, QXF); ld8(Kf, KXF); ld8(Vf, VXF)
    A(f"v_lshrrev_b32 {vT0}, 2, {vJ}\nv_lshlrev_b32 {vT0}, 1, {vT0}\nv_and_b32 {vT1}, 1, {vJ}\nv_add_u32 {vT0}, {vT0}, {vT1}\nv_lshl_add_u32 {vT0}, {vG}, 3, {vT0}\nv_lshlrev_b32 {vT0}, 4, {vT0}")
    A(f"v_and_b32 {vT1}, 2, {vJ}\nv_cmp_eq_u32 vcc, 0, {vT1}\nv_mov_b32 {vT1}, {OOB}\nv_cndmask_b32 {vKM}, {vT1}, {vT0}, vcc")
    A(f"v_lshlrev_b32 {vVM}, 2, {vLane}")
    for j in range(4):
        for t in range(2): A(f"v_mov_b32 {VM[j][t][1]}, 0")
    A(f"v_mov_b32 {PMr[0][1]}, 0\nv_mov_b32 {PMr[1][1]}, 0")
    if wait_kvm: wait_kvm()
    A(f"s_lshr_b32 {s_t2}, {s_task}, 5\ns_lshl_b32 {s_t2}, {s_t2}, 18\ns_and_b32 {s_t1}, {s_task}, 31\ns_lshl_b32 {s_t1}, {s_t1}, 12\ns_add_u32 {s_t2}, {s_t2}, {s_t1}\ns_add_u32 {s_t2}, {s_t2}, {KVM}")
    def kvm_ld():
        for j in range(4): A(f"buffer_load_dwordx4 {KM[j]}, {vKM}, {WS}, {s_t2} offen offset:{j*1024} sc1")
        for j in range(4):
            for t in range(2): A(f"buffer_load_dword {VM[j][t][0]}, {vVM}, {WS}, {s_t2} offen offset:{(j ^ 2)*1024 + 512 + t*256} sc1")
    kvm_ld()
    A("s_waitcnt vmcnt(20)")
    for j in range(4):
        for uq in range(2):
            for kt in range(2): A(f"v_mfma_f32_16x16x32_bf16 {Sx[uq][kt]}, {Kf[j][kt]}, {Qf[j][uq]}, {'0' if j == 0 else Sx[uq][kt]}")
    for uq in range(2):
        for u in range(2):
            for r in range(4): A(f"v_cndmask_b32 {Sx[uq][u][r]}, {vNeg}, {Sx[uq][u][r]}, {MK(uq, 4*u+r)}")
    A("s_branch L_km_chk\nL_km_again:\ns_sleep 2")
    kvm_ld()
    A("s_sub_u32 s28, s28, 1\ns_cbranch_scc1 L_end")
    A("L_km_chk:\ns_waitcnt vmcnt(0)")
    regs = [KM[j][i] for j in range(4) for i in range(4)] + [VM[j][t][0] for j in range(4) for t in range(2)]
    A(f"v_max3_u32 {vT0}, {regs[0]}, {regs[1]}, {regs[2]}"); regs = regs[3:]
    while len(regs) >= 2: A(f"v_max3_u32 {vT0}, {vT0}, {regs[0]}, {regs[1]}"); regs = regs[2:]
    if regs: A(f"v_max_u32 {vT0}, {vT0}, {regs[0]}")
    A(f"v_cmp_eq_u32 vcc, -1, {vT0}\ns_cbranch_vccnz L_km_again")
    for j in range(4):
        for uq in range(2): A(f"v_mfma_f32_16x16x32_bf16 {Sx[uq][2]}, {KM[j]}, {Qf[j][uq]}, {'0' if j == 0 else Sx[uq][2]}")
    for uq in range(2):
        vals = [Sx[uq][u][r] for u in range(2) for r in range(4)] + [Sx[uq][2][0], Sx[uq][2][1]]
        C.maxchain(vM[uq], vals); C.rowmax(vM[uq])
        for v in vals: A(f"v_fma_f32 {v}, {v}, {s_c2}, -{vM[uq]}")
        for v in vals: A(f"v_exp_f32 {v}, {v}")
        for i in range(4): A(f"v_cvt_pk_bf16_f32 {Sx[uq][0][i]}, {vals[2*i]}, {vals[2*i+1]}")
        A(f"v_cvt_pk_bf16_f32 {PMr[uq][0]}, {vals[8]}, {vals[9]}")
    Oa = [Qf, Kf]
    A("s_waitcnt vmcnt(0)")
    for uq in range(2):
        A(f"v_mfma_f32_16x16x16_bf16 {Lr[uq]}, {ONES[0:2]}, {PMr[uq]}, 0")
        for j in range(4):
            for t in range(2): A(f"v_mfma_f32_16x16x16_bf16 {Oa[uq][j][t]}, {VM[j][t]}, {PMr[uq]}, 0")
    for uq in range(2):
        A(f"v_mfma_f32_16x16x32_bf16 {Lr[uq]}, {ONES}, {Sx[uq][0]}, {Lr[uq]}")
        for j in range(4):
            for t in range(2): A(f"v_mfma_f32_16x16x32_bf16 {Oa[uq][j][t]}, {Vf[j][t]}, {Sx[uq][0]}, {Oa[uq][j][t]}")
    A(f"s_lshr_b32 {s_t0}, {s_task}, 5\ns_lshl_b32 {s_t0}, {s_t0}, 18\ns_and_b32 {s_t1}, {s_task}, 31\ns_lshl_b32 {s_t1}, {s_t1}, 12\ns_add_u32 {s_t0}, {s_t0}, {s_t1}\ns_add_u32 {s_t0}, {s_t0}, {OAF}")
    A(f"s_add_u32 {s_t1}, {s_t0}, 0x20000")
    for uq in range(2):
        A(f"v_rcp_f32 {vM[uq]}, {Lr[uq][0]}")
        for j in range(4):
            P = KM[j] if uq == 0 else Vf[j][0]
            for t in range(2):
                for r in range(4): A(f"v_mul_f32 {Oa[uq][j][t][r]}, {Oa[uq][j][t][r]}, {vM[uq]}")
                for hh in range(2): A(f"v_cvt_pk_bf16_f32 {P[2*t+hh]}, {Oa[uq][j][t][2*hh]}, {Oa[uq][j][t][2*hh+1]}")
            A(f"buffer_store_dwordx4 {P}, {vL16}, {WS}, {s_t0 if uq == 0 else s_t1} offen offset:{j*1024} {stf}")
    V.next = mark

def emit_tile(A, V, c, tag):
    mark = V.next
    vL16, vG, vJ, vT0, vT1 = c['vL16'], c['vG'], c['vJ'], c['vT0'], c['vT1']
    s_wave, s_mb, s_nb, OUT = c['s_wave'], c['s_mb'], c['s_nb'], c['OUT']
    s_t0, s_t1, s_a0, s_a1, s_w, s_iss, s_rd, s_wr, s_cnt, s_la, s_lw = c['sg']
    vRA0 = V.alloc('ra0'); vRW0 = V.alloc('rw0'); vRA = V.alloc('ra'); vRW = V.alloc('rw'); vOut = V.alloc('out')
    AF = [[V.alloc(f'af{p}{m}', 4) for m in range(4)] for p in range(2)]
    WF = [[V.alloc(f'wf{p}{t}', 4) for t in range(2)] for p in range(2)]
    ACC = [[V.alloc(f'acc{m}{t}', 4) for t in range(2)] for m in range(4)]
    PK = [V.alloc(f'pk{m}', 4) for m in range(4)]
    STG = 49152; RING = 3 * STG
    A(f"s_add_u32 {s_t1}, {c['s_rs']}, 1")
    A(f"s_lshl_b32 {s_t0}, {s_mb}, 2\ns_add_u32 {s_t0}, {s_t0}, {s_wave}\ns_lshl_b32 {s_t0}, {s_t0}, {s_t1}\ns_add_u32 {s_a0}, {s_t0}, {c['s_abase']}")
    A(f"s_lshl_b32 {s_t0}, 1, {c['s_rs']}\ns_add_u32 {s_a1}, {s_a0}, {s_t0}")
    A(f"s_lshl_b32 {s_t0}, {s_nb}, 1\ns_lshr_b32 {s_w}, {s_wave}, 1\ns_add_u32 {s_t0}, {s_t0}, {s_w}\ns_lshl_b32 {s_t0}, {s_t0}, {s_t1}")
    A(f"s_and_b32 {s_t1}, {s_wave}, 1\ns_lshl_b32 {s_t1}, {s_t1}, 12\ns_add_u32 {s_t0}, {s_t0}, {s_t1}\ns_add_u32 {s_w}, {s_t0}, {c['s_wbase']}")
    A(f"s_lshl_b32 {s_la}, {s_wave}, 13\ns_lshl_b32 {s_lw}, {s_wave}, 12\ns_add_u32 {s_lw}, {s_lw}, 32768")
    def issue_group(g):
        src, l, lo = [(s_a0, s_la, 0), (s_a1, s_la, 4096), (s_w, s_lw, 0)][g]
        A(f"s_add_u32 {s_t0}, {s_wr}, {l}")
        if lo: A(f"s_add_u32 {s_t0}, {s_t0}, {lo}")
        A(f"s_mov_b32 m0, {s_t0}")
        for k in range(4): A(f"buffer_load_dwordx4 {vL16}, {WS}, {src} offen offset:{k*1024} lds")
        A(f"s_add_u32 {src}, {src}, {4096 if g < 2 else 8192}")
    def issue_end():
        A(f"s_add_u32 {s_wr}, {s_wr}, {STG}\ns_cmp_eq_u32 {s_wr}, {RING}\ns_cselect_b32 {s_wr}, 0, {s_wr}")
        A(f"s_add_u32 {s_iss}, {s_iss}, 1\ns_cmp_ge_u32 {s_iss}, {c['s_nst']}")
        for r in (s_a0, s_a1, s_w): A(f"s_cselect_b32 {r}, {OOB}, {r}")
    A(f"s_mov_b32 {s_wr}, 0\ns_mov_b32 {s_rd}, 0\ns_mov_b32 {s_iss}, 0\ns_mov_b32 {s_cnt}, {c['s_nst']}")
    A("s_barrier")
    for st in range(2):
        for g in range(3): issue_group(g)
        issue_end()
    A(f"s_lshr_b32 {s_t0}, {s_wave}, 1\ns_lshl_b32 {s_t0}, {s_t0}, 14\nv_add_u32 {vRA0}, {s_t0}, {vL16}")
    A(f"s_and_b32 {s_t0}, {s_wave}, 1\ns_lshl_b32 {s_t0}, {s_t0}, 13\ns_add_u32 {s_t0}, {s_t0}, 32768\nv_add_u32 {vRW0}, {s_t0}, {vL16}")
    A(f"v_lshrrev_b32 {vT0}, 2, {vJ}\nv_lshlrev_b32 {vT0}, 3, {vT0}\nv_and_b32 {vT1}, 3, {vJ}\nv_add_u32 {vT0}, {vT0}, {vT1}")
    A(f"s_lshl_b32 {s_t0}, {s_mb}, 7\ns_lshr_b32 {s_t1}, {s_wave}, 1\ns_lshl_b32 {s_t1}, {s_t1}, 6\ns_add_u32 {s_t0}, {s_t0}, {s_t1}\nv_add_u32 {vT0}, {s_t0}, {vT0}\nv_lshlrev_b32 {vT0}, 12, {vT0}")
    A(f"s_lshl_b32 {s_t0}, {s_nb}, 7\ns_and_b32 {s_t1}, {s_wave}, 1\ns_lshl_b32 {s_t1}, {s_t1}, 6\ns_add_u32 {s_t0}, {s_t0}, {s_t1}\nv_lshl_add_u32 {vT0}, {vG}, 4, {vT0}\nv_add_u32 {vOut}, {s_t0}, {vT0}")
    for m in range(4):
        for t in range(2):
            for r in range(4): A(f"v_mov_b32 {ACC[m][t][r]}, 0")
    A(f"L_oloop_{tag}:")
    A(f"v_add_u32 {vRA}, {s_rd}, {vRA0}\nv_add_u32 {vRW}, {s_rd}, {vRW0}")
    A("s_waitcnt vmcnt(12)\ns_barrier")
    def reads(ks):
        p = ks & 1
        for t in range(2): A(f"ds_read_b128 {WF[p][t]}, {vRW} offset:{(ks*2+t)*1024}")
        for m in range(4): A(f"ds_read_b128 {AF[p][m]}, {vRA} offset:{m*4096 + ks*1024}")
    reads(0)
    for ks in range(4):
        p = ks & 1
        if ks < 3: reads(ks + 1)
        if ks < 3: issue_group(ks)
        A(f"s_waitcnt lgkmcnt({6 if ks < 3 else 0})")
        for m in range(4):
            for t in range(2): A(f"v_mfma_f32_16x16x32_bf16 {ACC[m][t]}, {WF[p][t]}, {AF[p][m]}, {ACC[m][t]}")
    issue_end()
    A(f"s_add_u32 {s_rd}, {s_rd}, {STG}\ns_cmp_eq_u32 {s_rd}, {RING}\ns_cselect_b32 {s_rd}, 0, {s_rd}")
    A(f"s_sub_u32 {s_cnt}, {s_cnt}, 1\ns_cmp_lg_u32 {s_cnt}, 0\ns_cbranch_scc1 L_oloop_{tag}")
    A("s_nop 7")
    for m in range(4):
        for t in range(2):
            for hh in range(2): A(f"v_cvt_pk_bf16_f32 {PK[m][2*t+hh]}, {ACC[m][t][2*hh]}, {ACC[m][t][2*hh+1]}")
        A(f"s_add_u32 {s_t0}, {c['s_ocol']}, {((m >> 1) * 32 + 4 * (m & 1)) * 4096}")
        A(f"buffer_store_dwordx4 {PK[m]}, {vOut}, {OUT}, {s_t0} offen")
    A("s_waitcnt vmcnt(0)")
    V.next = mark
```
